```python
import torch

def _softmax(x, axis=-1):
    return torch.softmax(x, dim=axis)
def _gelu(x):
    return torch.nn.functional.gelu(x, approximate="tanh")
def _silu(x):
    return torch.nn.functional.silu(x)
def _sigmoid(x):
    return torch.sigmoid(x)
def _layernorm(x, axis=-1, eps=1e-5):
    m = x.mean(dim=axis, keepdim=True)
    v = x.var(dim=axis, keepdim=True, unbiased=False)
    return (x - m) / torch.sqrt(v + eps)
def _scatter_add(tgt, idx, src, axis=0):
    return tgt.clone().index_add_(axis, idx, src)
def _segment_sum(src, seg, n):
    out = torch.zeros((n,) + src.shape[1:], dtype=src.dtype)
    return out.index_add_(0, seg, src)
def _pad(x, pw):
    flat = tuple(v for pair in reversed(pw) for v in pair)
    return torch.nn.functional.pad(x, flat)

kernel_name = 'standalone__linear_kernel_rfa__sampling'

def setup_inputs():

    _w = (lambda a: (lambda t: t.to(torch.bfloat16) if t.is_floating_point() else t)(torch.as_tensor(a)))
    B, H, Sq, Sk, D, M = 8, 32, 32, 2048, 128, 8
    return {
        "q": _w((lambda *s: torch.randn(*s, dtype=torch.bfloat16) * 0.05)(B, H, Sq, D)),
        "k": _w((lambda *s: torch.randn(*s, dtype=torch.bfloat16) * 0.4)(B, H, Sk, D)),
        "v": _w((lambda *s: torch.randn(*s, dtype=torch.bfloat16) * 0.4)(B, H, Sk, D)),
        "omega": _w((lambda *s: torch.randn(*s, dtype=torch.bfloat16) * 0.8)(M, D)),
    }

def reference(q, k, v, omega):
    d = q.shape[-1]
    m = omega.shape[0]
    scale = float(d) ** -0.25
    qs = q * scale
    ks = k * scale
    q_proj = torch.einsum("bhsd,md->bhsm", qs, omega)
    k_proj = torch.einsum("bhsd,md->bhsm", ks, omega)
    q_sq = 0.5 * torch.einsum("bhsd,bhsd->bhs", qs, qs)[..., None]
    k_sq = 0.5 * torch.einsum("bhsd,bhsd->bhs", ks, ks)[..., None]
    inv_sqrt_m = float(m) ** -0.5
    phi_q = torch.exp(q_proj - q_sq) * inv_sqrt_m + 1e-6
    phi_k = torch.exp(k_proj - k_sq) * inv_sqrt_m + 1e-6
    kv = torch.einsum("bhsm,bhsd->bhmd", phi_k, v)
    z  = torch.einsum("bhsm->bhm", phi_k)
    num = torch.einsum("bhqm,bhmd->bhqd", phi_q, kv)
    den = torch.einsum("bhqm,bhm->bhq", phi_q, z)[..., None] + 1e-6
    return num / den
```

```python
import sys, struct, math
KN = "standalone__linear_kernel_rfa__sampling_kernel"

def f2u(x):
    return struct.unpack("<I", struct.pack("<f", x))[0]

HEADER = """; Kernarg layout for this problem (56 bytes, ptrs only, base s[0:1]):
"""

def gen(nw=4, kmode="p1", fine=0, pol="nt", stamps=0, lds_min=0, opol="", qpol="", spol=""):
    L = []
    A = L.append
    nsteps = 2048 // (32 * nw)
    STEPB = 32 * nw * 256
    WSTR = 9 * 576
    lds = max(nw * WSTR, lds_min)
    scale = 128.0 ** -0.25
    C1 = scale * math.log2(math.e)
    C2 = -1.5
    CF = -0.5 * scale
    EPS = f2u(1e-6)

    vK, vV = 10, 11
    OM, ONES, vCF, vC2, PQ = 12, 28, 32, 33, 34
    KR, VR, VT, ACC = 40, 72, 104, 136
    G = [172, 176]; S = [180, 184]; PD = [188, 189]; P = 192
    T1 = 196
    NV = 228 if kmode == "dpp" else 196
    sK, sV, sQ, sO, sOUT = 16, 20, 24, 28, 32
    sM = 36
    sSELLO, sSELHI, sC1, sW, sCNT = 44, 45, 46, 47, 48
    sOFF0 = 50
    soffs = {}
    def soff(c):
        hi, lo = c & ~4095, c & 4095
        if hi == 0:
            return "0", lo
        if hi not in soffs:
            soffs[hi] = sOFF0 + len(soffs)
        return f"s{soffs[hi]}", lo
    def vr(b, n=4):
        return f"v[{b}:{b+n-1}]"

    def koff(j8):
        T, j = j8 >> 2, j8 & 3
        if kmode == "p1":
            return T * nw * 4096 + j * 64
        if fine:
            return j8 * nw * 1024
        return T * nw * 4096 + j * 1024
    def voff(j8):
        T, j = j8 >> 2, j8 & 3
        if kmode == "dpp" and fine:
            return j8 * nw * 1024
        return T * nw * 4096 + j * 1024
    for j8 in range(8):
        soff(koff(j8)); soff(voff(j8))

    def kload(j8):
        so, im = soff(koff(j8))
        A(f"buffer_load_dwordx4 {vr(KR+4*j8)}, v{vK}, s[{sK}:{sK+3}], {so} offen offset:{im} {pol}")
    def vload(j8):
        so, im = soff(voff(j8))
        A(f"buffer_load_dwordx4 {vr(VR+4*j8)}, v{vV}, s[{sV}:{sV+3}], {so} offen offset:{im} {pol}")
    def stamp(i):
        if stamps:
            A(f"s_memrealtime s[{64+2*i}:{65+2*i}]")

    A(HEADER + f"; @launch grid=(256,1,1) block=({nw*64},1,1) lds={lds}")
    A('.amdgcn_target "amdgcn-amd-amdhsa--gfx950"')
    A(".text"); A(f".globl {KN}"); A(".p2align 8"); A(f".type {KN},@function"); A(f"{KN}:")
    stamp(0)
    A("s_cmp_ge_u32 s2, 256"); A("s_cbranch_scc1 L_end")
    A("s_load_dwordx8 s[4:11], s[0:1], 0")
    A("s_load_dwordx2 s[12:13], s[0:1], 32")
    if stamps:
        A("s_load_dwordx2 s[14:15], s[0:1], 48")
    A("v_lshrrev_b32 v1, 6, v0            ; wave")
    A("v_and_b32 v2, 63, v0               ; lane")
    A("v_and_b32 v3, 15, v2               ; l&15")
    A("v_lshrrev_b32 v4, 4, v2            ; g = l>>4")
    A(f"v_readfirstlane_b32 s{sW}, v1")
    wstride = 1024 if (kmode == "dpp" and fine) else 4096
    wsh = wstride.bit_length() - 1
    A(f"v_lshlrev_b32 v{vV}, 4, v2")
    A(f"v_lshl_add_u32 v{vV}, v1, {wsh}, v{vV}")
    if kmode == "p1":
        A("v_and_b32 v5, 3, v2"); A("v_lshlrev_b32 v5, 10, v5")
        A("v_bfe_u32 v6, v2, 2, 2"); A("v_lshl_add_u32 v5, v6, 8, v5")
        A("v_lshl_add_u32 v5, v4, 4, v5")
        A(f"v_lshl_add_u32 v{vK}, v1, {wsh}, v5")
        chunk_g, chunk_j = 16, 64
    else:
        A("v_lshlrev_b32 v5, 6, v4"); A("v_bfe_u32 v6, v2, 2, 2"); A("v_lshl_add_u32 v5, v6, 8, v5")
        A("v_and_b32 v6, 3, v2"); A("v_lshl_add_u32 v5, v6, 4, v5")
        A(f"v_lshl_add_u32 v{vK}, v1, {wsh}, v5")
        chunk_g, chunk_j = 64, 16
    gsh = chunk_g.bit_length() - 1
    A("v_and_b32 v7, 7, v2"); A("v_lshlrev_b32 v7, 8, v7"); A(f"v_lshl_add_u32 v7, v4, {gsh}, v7")
    A("v_lshlrev_b32 v8, 8, v3"); A(f"v_lshl_add_u32 v8, v4, {gsh}, v8")
    if nw == 8:
        A("v_and_b32 v9, 1, v1"); A("v_lshl_add_u32 v8, v9, 12, v8")
    for hi, s in soffs.items():
        A(f"s_mov_b32 s{s}, {hi}")
    A("s_lshl_b32 s3, s2, 19")
    for sr in (sK, sV):
        A(f"s_mov_b32 s{sr+2}, 524288"); A(f"s_mov_b32 s{sr+3}, 0x20000")
    A(f"s_mov_b32 s{sO+2}, 2048"); A(f"s_mov_b32 s{sO+3}, 0x20000")
    A(f"s_mov_b32 s{sQ+2}, 8192"); A(f"s_mov_b32 s{sQ+3}, 0x20000")
    A(f"s_mov_b32 s{sOUT+2}, 8192"); A(f"s_mov_b32 s{sOUT+3}, 0x20000")
    A("s_waitcnt lgkmcnt(0)")
    stamp(1)
    A(f"s_add_u32 s{sK}, s6, s3"); A(f"s_addc_u32 s{sK+1}, s7, 0")
    A(f"s_add_u32 s{sV}, s8, s3"); A(f"s_addc_u32 s{sV+1}, s9, 0")
    A(f"s_mov_b32 s{sO}, s10"); A(f"s_mov_b32 s{sO+1}, s11")
    A("s_lshl_b32 s3, s2, 13")
    A(f"s_add_u32 s{sQ}, s4, s3"); A(f"s_addc_u32 s{sQ+1}, s5, 0")
    nqt = 2 if nw == 4 else 1
    for jj in range(4):
        A(f"buffer_load_dwordx4 {vr(OM+4*jj)}, v7, s[{sO}:{sO+3}], 0 offen offset:{jj*chunk_j} {opol}")
    for t in range(nqt):
        if t == 1:
            A("v_add_u32 v8, 4096, v8")
        for jj in range(4):
            A(f"buffer_load_dwordx4 {vr(VT+16*t+4*jj)}, v8, s[{sQ}:{sQ+3}], 0 offen offset:{jj*chunk_j} {qpol}")
    for j8 in range(8): kload(j8)
    for j8 in range(8): vload(j8)
    A(f"s_add_u32 s{sOUT}, s12, s3"); A(f"s_addc_u32 s{sOUT+1}, s13, 0")
    A(f"v_add_u32 v{vK}, {STEPB}, v{vK}"); A(f"v_add_u32 v{vV}, {STEPB}, v{vV}")
    for r in range(4):
        A(f"s_mov_b32 s{sM+2*r}, {(1<<r)|(1<<(20+r))}"); A(f"s_mov_b32 s{sM+2*r+1}, {(1<<(8+r))|(1<<(28+r))}")
    A(f"s_mov_b32 s{sSELLO}, 0x05040100"); A(f"s_mov_b32 s{sSELHI}, 0x07060302")
    A(f"s_mov_b32 s{sC1}, {f2u(C1):#x}")
    A(f"v_mov_b32 v{vCF}, {f2u(CF):#x}"); A(f"v_mov_b32 v{vC2}, {f2u(C2):#x}")
    for r in range(4): A(f"v_mov_b32 v{ONES+r}, 0x3f803f80")
    for r in range(36): A(f"v_mov_b32 v{ACC+r}, 0")

    def diag(t):
        A(f"v_cndmask_b32 v{PD[t]}, 0, v{G[t]}, s[{sM}:{sM+1}]")
        for r in range(1, 4):
            A(f"v_cndmask_b32 v{PD[t]}, v{PD[t]}, v{G[t]+r}, s[{sM+2*r}:{sM+2*r+1}]")
    def phi(regs):
        for r in regs: A(f"v_fma_f32 v{r}, v{r}, s{sC1}, v{vC2}")
        for r in regs: A(f"v_exp_f32 v{r}, v{r}")
        if len(regs) < 2: A("s_nop 0")
        for r in regs: A(f"v_add_f32 v{r}, {EPS:#x}, v{r}")

    A("s_waitcnt vmcnt(16)")
    stamp(2)
    for t in range(nqt):
        for jj in range(4):
            q = VT + 16*t + 4*jj
            A(f"v_mfma_f32_16x16x32_bf16 {vr(G[t])}, {vr(q)}, {vr(q)}, {'0' if jj==0 else vr(G[t])}")
        for jj in range(4):
            q = VT + 16*t + 4*jj
            A(f"v_mfma_f32_16x16x32_bf16 {vr(S[t])}, {vr(OM+4*jj)}, {vr(q)}, {'0' if jj==0 else vr(S[t])}")
    A("s_nop 7")
    for t in range(nqt): diag(t)
    A("s_nop 1")
    for t in range(nqt):
        A(f"v_mfma_f32_16x16x4_f32 {vr(S[t])}, v{vCF}, v{PD[t]}, {vr(S[t])}")
    A("s_nop 9")
    phi([S[t]+r for t in range(nqt) for r in range(4)])
    for t in range(nqt):
        A(f"v_cvt_pk_bf16_f32 v{PQ+2*t}, v{S[t]}, v{S[t]+1}")
        A(f"v_cvt_pk_bf16_f32 v{PQ+2*t+1}, v{S[t]+2}, v{S[t]+3}")

    def dppsel(dst, own, other, perm):
        A(f"v_cndmask_b32_dpp v{dst}, v{other}, v{own}, vcc quad_perm:{perm} row_mask:0xf bank_mask:0xf")

    def step(last):
        if kmode == "p1":
            for T in range(2):
                A(f"s_waitcnt vmcnt({12 if (T == 0 or not last) else 8})")
                for jj in range(4):
                    k = KR + 16*T + 4*jj
                    A(f"v_mfma_f32_16x16x32_bf16 {vr(G[T])}, {vr(k)}, {vr(k)}, {'0' if jj==0 else vr(G[T])}")
                for jj in range(4):
                    k = KR + 16*T + 4*jj
                    A(f"v_mfma_f32_16x16x32_bf16 {vr(S[T])}, {vr(k)}, {vr(OM+4*jj)}, {'0' if jj==0 else vr(S[T])}")
                if not last:
                    for jj in range(4): kload(4*T + jj)
                if T == 1 and not last:
                    A(f"v_add_u32 v{vK}, {STEPB}, v{vK}")
            diag(0)
            if last: A("s_nop 1")
            diag(1)
        else:
            for T in range(2):
                A(f"s_waitcnt vmcnt({12 if (T == 0 or not last) else 8})")
                X = KR + 16*T; U = T1 + 16*T; Y = VT + 16*T
                A("s_mov_b32 vcc_lo, 0x55555555"); A("s_mov_b32 vcc_hi, 0x55555555")
                for j in (0, 2):
                    for dw in range(4): dppsel(U+4*j+dw, X+4*j+dw, X+4*(j+1)+dw, "[1,0,3,2]")
                A("s_not_b64 vcc, vcc")
                for j in (0, 2):
                    for dw in range(4): dppsel(U+4*(j+1)+dw, X+4*(j+1)+dw, X+4*j+dw, "[1,0,3,2]")
                if not last:
                    for jj in range(4): kload(4*T + jj)
                    if T == 1: A(f"v_add_u32 v{vK}, {STEPB}, v{vK}")
                A("s_mov_b32 vcc_lo, 0x33333333"); A("s_mov_b32 vcc_hi, 0x33333333")
                for j in (0, 1):
                    for dw in range(4): dppsel(Y+4*j+dw, U+4*j+dw, U+4*(j+2)+dw, "[2,3,0,1]")
                A("s_not_b64 vcc, vcc")
                for j in (0, 1):
                    for dw in range(4): dppsel(Y+4*(j+2)+dw, U+4*(j+2)+dw, U+4*j+dw, "[2,3,0,1]")
                A("s_nop 1")
                for jj in range(4):
                    k = Y + 4*jj
                    A(f"v_mfma_f32_16x16x32_bf16 {vr(G[T])}, {vr(k)}, {vr(k)}, {'0' if jj==0 else vr(G[T])}")
                for jj in range(4):
                    k = Y + 4*jj
                    A(f"v_mfma_f32_16x16x32_bf16 {vr(S[T])}, {vr(k)}, {vr(OM+4*jj)}, {'0' if jj==0 else vr(S[T])}")
            diag(0)
            diag(1)
        A("s_nop 1")
        A(f"v_mfma_f32_16x16x4_f32 {vr(S[0])}, v{PD[0]}, v{vCF}, {vr(S[0])}")
        A(f"v_mfma_f32_16x16x4_f32 {vr(S[1])}, v{PD[1]}, v{vCF}, {vr(S[1])}")
        A("s_nop 9")
        phi([S[0]+r for r in range(4)] + [S[1]+r for r in range(4)])
        for t in range(2):
            A(f"v_cvt_pk_bf16_f32 v{P+2*t}, v{S[t]}, v{S[t]+1}")
            A(f"v_cvt_pk_bf16_f32 v{P+2*t+1}, v{S[t]+2}, v{S[t]+3}")
        for jp in range(4):
            A(f"s_waitcnt vmcnt({14 if not last else 6 - 2*jp})")
            a, b = VR + 8*jp, VR + 8*jp + 4
            for i in range(8):
                A(f"v_perm_b32 v{VT+4*i+jp}, v{b+(i>>1)}, v{a+(i>>1)}, s{sSELHI if i&1 else sSELLO}")
            if not last:
                vload(2*jp); vload(2*jp+1)
        if not last:
            A(f"v_add_u32 v{vV}, {STEPB}, v{vV}")
        A(f"v_mfma_f32_16x16x32_bf16 {vr(ACC+32)}, {vr(P)}, {vr(ONES)}, {vr(ACC+32)}")
        for i in range(8):
            A(f"v_mfma_f32_16x16x32_bf16 {vr(ACC+4*i)}, {vr(P)}, {vr(VT+4*i)}, {vr(ACC+4*i)}")

    A(f"s_mov_b32 s{sCNT}, {nsteps-1}")
    A("L_loop:")
    step(False)
    A(f"s_sub_u32 s{sCNT}, s{sCNT}, 1"); A(f"s_cmp_lg_u32 s{sCNT}, 0"); A("s_cbranch_scc1 L_loop")
    step(True)
    stamp(3)
    A(f"v_lshlrev_b32 v5, 4, v2")
    A(f"s_mul_i32 s3, s{sW}, {WSTR}")
    A("v_add_u32 v5, s3, v5")
    A("v_and_b32 v6, 3, v2"); A("v_mul_u32_u24 v6, 576, v6")
    A("v_bfe_u32 v7, v2, 2, 2"); A("v_lshl_add_u32 v6, v7, 4, v6")
    A("v_and_b32 v7, 1, v4"); A("v_lshl_add_u32 v6, v7, 8, v6")
    A("v_lshrrev_b32 v8, 1, v4"); A(f"v_mul_u32_u24 v8, {(nw//2)*WSTR}, v8")
    A("v_add_u32 v6, v6, v8")
    A("v_lshl_add_u32 v7, v7, 8, v8")
    if nw == 8:
        A(f"s_lshr_b32 s3, s{sW}, 1")
    else:
        A(f"s_mov_b32 s3, s{sW}")
    A("s_lshl_b32 s3, s3, 6"); A("v_add_u32 v6, s3, v6     ; + blk*4*16")
    A("v_lshlrev_b32 v9, 8, v3"); A("v_lshl_add_u32 v9, v4, 4, v9"); A("v_add_u32 v9, s3, v9")
    if nw == 8:
        A(f"s_and_b32 s3, s{sW}, 1"); A("s_lshl_b32 s3, s3, 12"); A("v_add_u32 v9, s3, v9")
    A("s_mov_b32 exec_hi, 0")
    order = [8] + list(range(8))
    for i in order:
        A(f"ds_write_b128 v5, {vr(ACC+4*i)} offset:{i*576}")
    A("s_mov_b32 exec_hi, -1")
    A("s_waitcnt lgkmcnt(0)")
    A("s_barrier")
    nr = nw // 2
    RA, RB, RZ = KR, KR + 16, VR
    for x in range(nr): A(f"ds_read_b128 {vr(RZ+4*x)}, v7 offset:{x*WSTR + 8*576}")
    for x in range(nr): A(f"ds_read_b128 {vr(RA+4*x)}, v6 offset:{x*WSTR}")
    for x in range(nr): A(f"ds_read_b128 {vr(RB+4*x)}, v6 offset:{x*WSTR + 4*576}")
    PA = VT
    for n, R in enumerate((RZ, RA, RB)):
        A(f"s_waitcnt lgkmcnt({(2-n)*nr})")
        if nr == 4:
            for r in range(4): A(f"v_add_f32 v{R+r}, v{R+r}, v{R+4+r}")
            for r in range(4): A(f"v_add_f32 v{R+8+r}, v{R+8+r}, v{R+12+r}")
            for r in range(4): A(f"v_add_f32 v{R+r}, v{R+r}, v{R+8+r}")
        else:
            for r in range(4): A(f"v_add_f32 v{R+r}, v{R+r}, v{R+4+r}")
        A(f"v_cvt_pk_bf16_f32 v{PA+2*n}, v{R}, v{R+1}")
        A(f"v_cvt_pk_bf16_f32 v{PA+2*n+1}, v{R+2}, v{R+3}")
    A("s_nop 1")
    DZ = [ACC, ACC+12]; DA = [ACC+4, ACC+16]; DB = [ACC+8, ACC+20]
    for t in range(nqt):
        A(f"v_mfma_f32_16x16x16_bf16 {vr(DZ[t])}, {vr(PA,2)}, {vr(PQ+2*t,2)}, 0")
        A(f"v_mfma_f32_16x16x16_bf16 {vr(DA[t])}, {vr(PA+2,2)}, {vr(PQ+2*t,2)}, 0")
        A(f"v_mfma_f32_16x16x16_bf16 {vr(DB[t])}, {vr(PA+4,2)}, {vr(PQ+2*t,2)}, 0")
    A("s_nop 7")
    for t in range(nqt):
        A(f"v_add_f32 v{DZ[t]}, {EPS:#x}, v{DZ[t]}")
        A(f"v_rcp_f32 v{DZ[t]}, v{DZ[t]}")
        A("s_nop 0")
        for r in range(4): A(f"v_mul_f32 v{DA[t]+r}, v{DA[t]+r}, v{DZ[t]}")
        for r in range(4): A(f"v_mul_f32 v{DB[t]+r}, v{DB[t]+r}, v{DZ[t]}")
        O = KR + 4*t
        A(f"v_cvt_pk_bf16_f32 v{O}, v{DA[t]}, v{DA[t]+1}"); A(f"v_cvt_pk_bf16_f32 v{O+1}, v{DA[t]+2}, v{DA[t]+3}")
        A(f"v_cvt_pk_bf16_f32 v{O+2}, v{DB[t]}, v{DB[t]+1}"); A(f"v_cvt_pk_bf16_f32 v{O+3}, v{DB[t]+2}, v{DB[t]+3}")
        if t == 1: A("v_add_u32 v9, 4096, v9")
        A(f"buffer_store_dwordx4 {vr(O)}, v9, s[{sOUT}:{sOUT+3}], 0 offen {spol}")
    if stamps:
        A("s_waitcnt vmcnt(0)")
        stamp(4)
        A(f"s_cmp_lg_u32 s{sW}, 0"); A("s_cbranch_scc1 L_end")
        A("s_getreg_b32 s3, hwreg(HW_REG_XCC_ID)")
        A("s_waitcnt lgkmcnt(0)")
        A("v_mov_b32 v12, s64"); A("v_mov_b32 v13, s65"); A("v_mov_b32 v14, s72"); A("v_mov_b32 v15, s73")
        A("v_mov_b32 v16, s3"); A("v_mov_b32 v17, 0")
        A("s_sub_u32 s66, s66, s64"); A("s_sub_u32 s68, s68, s64"); A("s_sub_u32 s70, s70, s64")
        A("s_lshl_b32 s68, s68, 16"); A("s_or_b32 s66, s66, s68")
        A("v_mov_b32 v18, s66"); A("v_mov_b32 v19, s70")
        A("s_lshl_b32 s3, s2, 5"); A("v_mov_b32 v11, s3")
        A("s_mov_b64 exec, 1")
        A("global_store_dwordx4 v11, v[12:15], s[14:15]")
        A("global_store_dwordx4 v11, v[16:19], s[14:15] offset:16")
    A("L_end:")
    A("s_endpgm")
    nv = (NV + 7) // 8 * 8
    A('.section .rodata,"a"'); A(".p2align 6"); A(f".amdhsa_kernel {KN}")
    A(f"  .amdhsa_next_free_vgpr {nv}"); A("  .amdhsa_next_free_sgpr 80"); A(f"  .amdhsa_accum_offset {nv}")
    A("  .amdhsa_group_segment_fixed_size 0"); A("  .amdhsa_kernarg_size 56"); A("  .amdhsa_user_sgpr_count 2")
    A("  .amdhsa_user_sgpr_kernarg_segment_ptr 1"); A("  .amdhsa_system_sgpr_workgroup_id_x 1")
    A("  .amdhsa_float_denorm_mode_32 3")
    A(".end_amdhsa_kernel")
    return "\n".join(L) + "\n"

if __name__ == "__main__":
    name = sys.argv[1]; kw = {}
    for a in sys.argv[2:]:
        k, v = a.split("="); kw[k] = int(v) if v.lstrip("-").isdigit() else v.replace("+", " ")
    open(name, "w").write(gen(**kw))
```

```python
import sys, struct, math
KN = "standalone__linear_kernel_rfa__sampling_kernel"

def f2u(x):
    return struct.unpack("<I", struct.pack("<f", x))[0]

HEADER = """; Kernarg layout for this problem (56 bytes, ptrs only, base s[0:1]):
"""

def gen(nw=4, kmode="p1", fine=0, pol="nt", stamps=0, lds_min=0, opol="", qpol="", spol=""):
    L = []
    A = L.append
    nsteps = 2048 // (32 * nw)
    STEPB = 32 * nw * 256
    WSTR = 9 * 576
    lds = max(nw * WSTR, lds_min)
    scale = 128.0 ** -0.25
    C1 = scale * math.log2(math.e)
    C2 = -1.5
    CF = -0.5 * scale
    EPS = f2u(1e-6)

    vK, vV = 10, 11
    OM, ONES, vCF, vC2, PQ = 12, 28, 32, 33, 34
    KR, VR, VT, ACC = 40, 72, 104, 136
    G = [172, 176]; S = [180, 184]; PD = [188, 189]; P = 192
    T1 = 196
    NV = 228 if kmode == "dpp" else 196
    sK, sV, sQ, sO, sOUT = 16, 20, 24, 28, 32
    sM = 36
    sSELLO, sSELHI, sC1, sW, sCNT = 44, 45, 46, 47, 48
    sOFF0 = 50
    soffs = {}
    def soff(c):
        hi, lo = c & ~4095, c & 4095
        if hi == 0:
            return "0", lo
        if hi not in soffs:
            soffs[hi] = sOFF0 + len(soffs)
        return f"s{soffs[hi]}", lo
    def vr(b, n=4):
        return f"v[{b}:{b+n-1}]"

    def koff(j8):
        T, j = j8 >> 2, j8 & 3
        if kmode == "p1":
            return T * nw * 4096 + j * 64
        if fine:
            return j8 * nw * 1024
        return T * nw * 4096 + j * 1024
    def voff(j8):
        T, j = j8 >> 2, j8 & 3
        if kmode == "dpp" and fine:
            return j8 * nw * 1024
        return T * nw * 4096 + j * 1024
    for j8 in range(8):
        soff(koff(j8)); soff(voff(j8))

    def kload(j8):
        so, im = soff(koff(j8))
        A(f"buffer_load_dwordx4 {vr(KR+4*j8)}, v{vK}, s[{sK}:{sK+3}], {so} offen offset:{im} {pol}")
    def vload(j8):
        so, im = soff(voff(j8))
        A(f"buffer_load_dwordx4 {vr(VR+4*j8)}, v{vV}, s[{sV}:{sV+3}], {so} offen offset:{im} {pol}")
    def stamp(i):
        if stamps:
            A(f"s_memrealtime s[{64+2*i}:{65+2*i}]")

    A(HEADER + f"; @launch grid=(256,1,1) block=({nw*64},1,1) lds={lds}")
    A('.amdgcn_target "amdgcn-amd-amdhsa--gfx950"')
    A(".text"); A(f".globl {KN}"); A(".p2align 8"); A(f".type {KN},@function"); A(f"{KN}:")
    stamp(0)
    A("s_cmp_ge_u32 s2, 256"); A("s_cbranch_scc1 L_end")
    A("s_load_dwordx8 s[4:11], s[0:1], 0")
    A("s_load_dwordx2 s[12:13], s[0:1], 32")
    if stamps:
        A(f"s_load_dwordx2 s[14:15], s[0:1], {48 if stamps==1 else 40}")
    A("v_lshrrev_b32 v1, 6, v0            ; wave")
    A("v_and_b32 v2, 63, v0               ; lane")
    A("v_and_b32 v3, 15, v2               ; l&15")
    A("v_lshrrev_b32 v4, 4, v2            ; g = l>>4")
    A(f"v_readfirstlane_b32 s{sW}, v1")
    wstride = 1024 if (kmode == "dpp" and fine) else 4096
    wsh = wstride.bit_length() - 1
    A(f"v_lshlrev_b32 v{vV}, 4, v2")
    A(f"v_lshl_add_u32 v{vV}, v1, {wsh}, v{vV}")
    if kmode == "p1":
        A("v_and_b32 v5, 3, v2"); A("v_lshlrev_b32 v5, 10, v5")
        A("v_bfe_u32 v6, v2, 2, 2"); A("v_lshl_add_u32 v5, v6, 8, v5")
        A("v_lshl_add_u32 v5, v4, 4, v5")
        A(f"v_lshl_add_u32 v{vK}, v1, {wsh}, v5")
        chunk_g, chunk_j = 16, 64
    else:
        A("v_lshlrev_b32 v5, 6, v4"); A("v_bfe_u32 v6, v2, 2, 2"); A("v_lshl_add_u32 v5, v6, 8, v5")
        A("v_and_b32 v6, 3, v2"); A("v_lshl_add_u32 v5, v6, 4, v5")
        A(f"v_lshl_add_u32 v{vK}, v1, {wsh}, v5")
        chunk_g, chunk_j = 64, 16
    gsh = chunk_g.bit_length() - 1
    A("v_and_b32 v7, 7, v2"); A("v_lshlrev_b32 v7, 8, v7"); A(f"v_lshl_add_u32 v7, v4, {gsh}, v7")
    A("v_lshlrev_b32 v8, 8, v3"); A(f"v_lshl_add_u32 v8, v4, {gsh}, v8")
    if nw == 8:
        A("v_and_b32 v9, 1, v1"); A("v_lshl_add_u32 v8, v9, 12, v8")
    for hi, s in soffs.items():
        A(f"s_mov_b32 s{s}, {hi}")
    A("s_lshl_b32 s3, s2, 19")
    for sr in (sK, sV):
        A(f"s_mov_b32 s{sr+2}, 524288"); A(f"s_mov_b32 s{sr+3}, 0x20000")
    A(f"s_mov_b32 s{sO+2}, 2048"); A(f"s_mov_b32 s{sO+3}, 0x20000")
    A(f"s_mov_b32 s{sQ+2}, 8192"); A(f"s_mov_b32 s{sQ+3}, 0x20000")
    A(f"s_mov_b32 s{sOUT+2}, 8192"); A(f"s_mov_b32 s{sOUT+3}, 0x20000")
    A("s_waitcnt lgkmcnt(0)")
    stamp(1)
    A(f"s_add_u32 s{sK}, s6, s3"); A(f"s_addc_u32 s{sK+1}, s7, 0")
    A(f"s_add_u32 s{sV}, s8, s3"); A(f"s_addc_u32 s{sV+1}, s9, 0")
    A(f"s_mov_b32 s{sO}, s10"); A(f"s_mov_b32 s{sO+1}, s11")
    A("s_lshl_b32 s3, s2, 13")
    A(f"s_add_u32 s{sQ}, s4, s3"); A(f"s_addc_u32 s{sQ+1}, s5, 0")
    nqt = 2 if nw == 4 else 1
    for jj in range(4):
        A(f"buffer_load_dwordx4 {vr(OM+4*jj)}, v7, s[{sO}:{sO+3}], 0 offen offset:{jj*chunk_j} {opol}")
    for t in range(nqt):
        if t == 1:
            A("v_add_u32 v8, 4096, v8")
        for jj in range(4):
            A(f"buffer_load_dwordx4 {vr(VT+16*t+4*jj)}, v8, s[{sQ}:{sQ+3}], 0 offen offset:{jj*chunk_j} {qpol}")
    for j8 in range(8): kload(j8)
    for j8 in range(8): vload(j8)
    A(f"s_add_u32 s{sOUT}, s12, s3"); A(f"s_addc_u32 s{sOUT+1}, s13, 0")
    A(f"v_add_u32 v{vK}, {STEPB}, v{vK}"); A(f"v_add_u32 v{vV}, {STEPB}, v{vV}")
    for r in range(4):
        A(f"s_mov_b32 s{sM+2*r}, {(1<<r)|(1<<(20+r))}"); A(f"s_mov_b32 s{sM+2*r+1}, {(1<<(8+r))|(1<<(28+r))}")
    A(f"s_mov_b32 s{sSELLO}, 0x05040100"); A(f"s_mov_b32 s{sSELHI}, 0x07060302")
    A(f"s_mov_b32 s{sC1}, {f2u(C1):#x}")
    A(f"v_mov_b32 v{vCF}, {f2u(CF):#x}"); A(f"v_mov_b32 v{vC2}, {f2u(C2):#x}")
    for r in range(4): A(f"v_mov_b32 v{ONES+r}, 0x3f803f80")
    for r in range(36): A(f"v_mov_b32 v{ACC+r}, 0")

    def diag(t):
        A(f"v_cndmask_b32 v{PD[t]}, 0, v{G[t]}, s[{sM}:{sM+1}]")
        for r in range(1, 4):
            A(f"v_cndmask_b32 v{PD[t]}, v{PD[t]}, v{G[t]+r}, s[{sM+2*r}:{sM+2*r+1}]")
    def phi(regs):
        for r in regs: A(f"v_fma_f32 v{r}, v{r}, s{sC1}, v{vC2}")
        for r in regs: A(f"v_exp_f32 v{r}, v{r}")
        if len(regs) < 2: A("s_nop 0")
        for r in regs: A(f"v_add_f32 v{r}, {EPS:#x}, v{r}")

    A("s_waitcnt vmcnt(16)")
    stamp(2)
    for t in range(nqt):
        for jj in range(4):
            q = VT + 16*t + 4*jj
            A(f"v_mfma_f32_16x16x32_bf16 {vr(G[t])}, {vr(q)}, {vr(q)}, {'0' if jj==0 else vr(G[t])}")
        for jj in range(4):
            q = VT + 16*t + 4*jj
            A(f"v_mfma_f32_16x16x32_bf16 {vr(S[t])}, {vr(OM+4*jj)}, {vr(q)}, {'0' if jj==0 else vr(S[t])}")
    A("s_nop 7")
    for t in range(nqt): diag(t)
    A("s_nop 1")
    for t in range(nqt):
        A(f"v_mfma_f32_16x16x4_f32 {vr(S[t])}, v{vCF}, v{PD[t]}, {vr(S[t])}")
    A("s_nop 9")
    phi([S[t]+r for t in range(nqt) for r in range(4)])
    for t in range(nqt):
        A(f"v_cvt_pk_bf16_f32 v{PQ+2*t}, v{S[t]}, v{S[t]+1}")
        A(f"v_cvt_pk_bf16_f32 v{PQ+2*t+1}, v{S[t]+2}, v{S[t]+3}")

    def dppsel(dst, own, other, perm):
        A(f"v_cndmask_b32_dpp v{dst}, v{other}, v{own}, vcc quad_perm:{perm} row_mask:0xf bank_mask:0xf")

    def step(last):
        if kmode == "p1":
            for T in range(2):
                A(f"s_waitcnt vmcnt({12 if (T == 0 or not last) else 8})")
                for jj in range(4):
                    k = KR + 16*T + 4*jj
                    A(f"v_mfma_f32_16x16x32_bf16 {vr(G[T])}, {vr(k)}, {vr(k)}, {'0' if jj==0 else vr(G[T])}")
                for jj in range(4):
                    k = KR + 16*T + 4*jj
                    A(f"v_mfma_f32_16x16x32_bf16 {vr(S[T])}, {vr(k)}, {vr(OM+4*jj)}, {'0' if jj==0 else vr(S[T])}")
                if not last:
                    for jj in range(4): kload(4*T + jj)
                if T == 1 and not last:
                    A(f"v_add_u32 v{vK}, {STEPB}, v{vK}")
            diag(0)
            if last: A("s_nop 1")
            diag(1)
        else:
            for T in range(2):
                A(f"s_waitcnt vmcnt({12 if (T == 0 or not last) else 8})")
                X = KR + 16*T; U = T1 + 16*T; Y = VT + 16*T
                A("s_mov_b32 vcc_lo, 0x55555555"); A("s_mov_b32 vcc_hi, 0x55555555")
                for j in (0, 2):
                    for dw in range(4): dppsel(U+4*j+dw, X+4*j+dw, X+4*(j+1)+dw, "[1,0,3,2]")
                A("s_not_b64 vcc, vcc")
                for j in (0, 2):
                    for dw in range(4): dppsel(U+4*(j+1)+dw, X+4*(j+1)+dw, X+4*j+dw, "[1,0,3,2]")
                if not last:
                    for jj in range(4): kload(4*T + jj)
                    if T == 1: A(f"v_add_u32 v{vK}, {STEPB}, v{vK}")
                A("s_mov_b32 vcc_lo, 0x33333333"); A("s_mov_b32 vcc_hi, 0x33333333")
                for j in (0, 1):
                    for dw in range(4): dppsel(Y+4*j+dw, U+4*j+dw, U+4*(j+2)+dw, "[2,3,0,1]")
                A("s_not_b64 vcc, vcc")
                for j in (0, 1):
                    for dw in range(4): dppsel(Y+4*(j+2)+dw, U+4*(j+2)+dw, U+4*j+dw, "[2,3,0,1]")
                A("s_nop 1")
                for jj in range(4):
                    k = Y + 4*jj
                    A(f"v_mfma_f32_16x16x32_bf16 {vr(G[T])}, {vr(k)}, {vr(k)}, {'0' if jj==0 else vr(G[T])}")
                for jj in range(4):
                    k = Y + 4*jj
                    A(f"v_mfma_f32_16x16x32_bf16 {vr(S[T])}, {vr(k)}, {vr(OM+4*jj)}, {'0' if jj==0 else vr(S[T])}")
            diag(0)
            diag(1)
        A("s_nop 1")
        A(f"v_mfma_f32_16x16x4_f32 {vr(S[0])}, v{PD[0]}, v{vCF}, {vr(S[0])}")
        A(f"v_mfma_f32_16x16x4_f32 {vr(S[1])}, v{PD[1]}, v{vCF}, {vr(S[1])}")
        A("s_nop 9")
        phi([S[0]+r for r in range(4)] + [S[1]+r for r in range(4)])
        for t in range(2):
            A(f"v_cvt_pk_bf16_f32 v{P+2*t}, v{S[t]}, v{S[t]+1}")
            A(f"v_cvt_pk_bf16_f32 v{P+2*t+1}, v{S[t]+2}, v{S[t]+3}")
        for jp in range(4):
            A(f"s_waitcnt vmcnt({14 if not last else 6 - 2*jp})")
            a, b = VR + 8*jp, VR + 8*jp + 4
            for i in range(8):
                A(f"v_perm_b32 v{VT+4*i+jp}, v{b+(i>>1)}, v{a+(i>>1)}, s{sSELHI if i&1 else sSELLO}")
            if not last:
                vload(2*jp); vload(2*jp+1)
        if not last:
            A(f"v_add_u32 v{vV}, {STEPB}, v{vV}")
        A(f"v_mfma_f32_16x16x32_bf16 {vr(ACC+32)}, {vr(P)}, {vr(ONES)}, {vr(ACC+32)}")
        for i in range(8):
            A(f"v_mfma_f32_16x16x32_bf16 {vr(ACC+4*i)}, {vr(P)}, {vr(VT+4*i)}, {vr(ACC+4*i)}")

    A(f"s_mov_b32 s{sCNT}, {nsteps-1}")
    A("L_loop:")
    step(False)
    A(f"s_sub_u32 s{sCNT}, s{sCNT}, 1"); A(f"s_cmp_lg_u32 s{sCNT}, 0"); A("s_cbranch_scc1 L_loop")
    step(True)
    stamp(3)
    A(f"v_lshlrev_b32 v5, 4, v2")
    A(f"s_mul_i32 s3, s{sW}, {WSTR}")
    A("v_add_u32 v5, s3, v5")
    A("v_and_b32 v6, 3, v2"); A("v_mul_u32_u24 v6, 576, v6")
    A("v_bfe_u32 v7, v2, 2, 2"); A("v_lshl_add_u32 v6, v7, 4, v6")
    A("v_and_b32 v7, 1, v4"); A("v_lshl_add_u32 v6, v7, 8, v6")
    A("v_lshrrev_b32 v8, 1, v4"); A(f"v_mul_u32_u24 v8, {(nw//2)*WSTR}, v8")
    A("v_add_u32 v6, v6, v8")
    A("v_lshl_add_u32 v7, v7, 8, v8")
    if nw == 8:
        A(f"s_lshr_b32 s3, s{sW}, 1")
    else:
        A(f"s_mov_b32 s3, s{sW}")
    A("s_lshl_b32 s3, s3, 6"); A("v_add_u32 v6, s3, v6     ; + blk*4*16")
    A("v_lshlrev_b32 v9, 8, v3"); A("v_lshl_add_u32 v9, v4, 4, v9"); A("v_add_u32 v9, s3, v9")
    if nw == 8:
        A(f"s_and_b32 s3, s{sW}, 1"); A("s_lshl_b32 s3, s3, 12"); A("v_add_u32 v9, s3, v9")
    A("s_mov_b32 exec_hi, 0")
    order = [8] + list(range(8))
    for i in order:
        A(f"ds_write_b128 v5, {vr(ACC+4*i)} offset:{i*576}")
    A("s_mov_b32 exec_hi, -1")
    A("s_waitcnt lgkmcnt(0)")
    A("s_barrier")
    nr = nw // 2
    RA, RB, RZ = KR, KR + 16, VR
    for x in range(nr): A(f"ds_read_b128 {vr(RZ+4*x)}, v7 offset:{x*WSTR + 8*576}")
    for x in range(nr): A(f"ds_read_b128 {vr(RA+4*x)}, v6 offset:{x*WSTR}")
    for x in range(nr): A(f"ds_read_b128 {vr(RB+4*x)}, v6 offset:{x*WSTR + 4*576}")
    PA = VT
    for n, R in enumerate((RZ, RA, RB)):
        A(f"s_waitcnt lgkmcnt({(2-n)*nr})")
        if nr == 4:
            for r in range(4): A(f"v_add_f32 v{R+r}, v{R+r}, v{R+4+r}")
            for r in range(4): A(f"v_add_f32 v{R+8+r}, v{R+8+r}, v{R+12+r}")
            for r in range(4): A(f"v_add_f32 v{R+r}, v{R+r}, v{R+8+r}")
        else:
            for r in range(4): A(f"v_add_f32 v{R+r}, v{R+r}, v{R+4+r}")
        A(f"v_cvt_pk_bf16_f32 v{PA+2*n}, v{R}, v{R+1}")
        A(f"v_cvt_pk_bf16_f32 v{PA+2*n+1}, v{R+2}, v{R+3}")
    A("s_nop 1")
    DZ = [ACC, ACC+12]; DA = [ACC+4, ACC+16]; DB = [ACC+8, ACC+20]
    for t in range(nqt):
        A(f"v_mfma_f32_16x16x16_bf16 {vr(DZ[t])}, {vr(PA,2)}, {vr(PQ+2*t,2)}, 0")
        A(f"v_mfma_f32_16x16x16_bf16 {vr(DA[t])}, {vr(PA+2,2)}, {vr(PQ+2*t,2)}, 0")
        A(f"v_mfma_f32_16x16x16_bf16 {vr(DB[t])}, {vr(PA+4,2)}, {vr(PQ+2*t,2)}, 0")
    A("s_nop 7")
    for t in range(nqt):
        A(f"v_add_f32 v{DZ[t]}, {EPS:#x}, v{DZ[t]}")
        A(f"v_rcp_f32 v{DZ[t]}, v{DZ[t]}")
        A("s_nop 0")
        for r in range(4): A(f"v_mul_f32 v{DA[t]+r}, v{DA[t]+r}, v{DZ[t]}")
        for r in range(4): A(f"v_mul_f32 v{DB[t]+r}, v{DB[t]+r}, v{DZ[t]}")
        O = KR + 4*t
        A(f"v_cvt_pk_bf16_f32 v{O}, v{DA[t]}, v{DA[t]+1}"); A(f"v_cvt_pk_bf16_f32 v{O+1}, v{DA[t]+2}, v{DA[t]+3}")
        A(f"v_cvt_pk_bf16_f32 v{O+2}, v{DB[t]}, v{DB[t]+1}"); A(f"v_cvt_pk_bf16_f32 v{O+3}, v{DB[t]+2}, v{DB[t]+3}")
        if t == 1: A("v_add_u32 v9, 4096, v9")
        A(f"buffer_store_dwordx4 {vr(O)}, v9, s[{sOUT}:{sOUT+3}], 0 offen {spol}")
    if stamps == 2:
        A("s_waitcnt vmcnt(0)")
        stamp(4)
        A(f"s_cmp_lg_u32 s{sW}, 0"); A("s_cbranch_scc1 L_end")
        A("s_waitcnt lgkmcnt(0)")
        A("s_not_b32 s3, s64"); A("v_mov_b32 v12, s3"); A("v_mov_b32 v13, s72")
        A("s_sub_u32 s66, s66, s64"); A("s_sub_u32 s68, s68, s64"); A("s_sub_u32 s70, s72, s70"); A("s_sub_u32 s72, s72, s64")
        A("v_mov_b32 v14, s66"); A("v_mov_b32 v15, s68"); A("v_mov_b32 v16, s72"); A("s_not_b32 s3, s72"); A("v_mov_b32 v17, s3")
        A("v_mov_b32 v18, s70"); A("v_mov_b32 v19, s64")
        A("v_mov_b32 v11, 0")
        A("s_mov_b64 exec, 1")
        for i in range(8):
            A(f"global_atomic_umax v11, v{12+i}, s[14:15] offset:{4*i} sc1")
        A("global_atomic_add v11, v14, s[14:15] offset:32 sc1")
        A("global_atomic_add v11, v15, s[14:15] offset:36 sc1")
        A("global_atomic_add v11, v16, s[14:15] offset:40 sc1")
        A("global_atomic_add v11, v18, s[14:15] offset:44 sc1")
    if stamps == 1:
        A("s_waitcnt vmcnt(0)")
        stamp(4)
        A(f"s_cmp_lg_u32 s{sW}, 0"); A("s_cbranch_scc1 L_end")
        A("s_getreg_b32 s3, hwreg(HW_REG_XCC_ID)")
        A("s_waitcnt lgkmcnt(0)")
        A("v_mov_b32 v12, s64"); A("v_mov_b32 v13, s65"); A("v_mov_b32 v14, s72"); A("v_mov_b32 v15, s73")
        A("v_mov_b32 v16, s3"); A("v_mov_b32 v17, 0")
        A("s_sub_u32 s66, s66, s64"); A("s_sub_u32 s68, s68, s64"); A("s_sub_u32 s70, s70, s64")
        A("s_lshl_b32 s68, s68, 16"); A("s_or_b32 s66, s66, s68")
        A("v_mov_b32 v18, s66"); A("v_mov_b32 v19, s70")
        A("s_lshl_b32 s3, s2, 5"); A("v_mov_b32 v11, s3")
        A("s_mov_b64 exec, 1")
        A("global_store_dwordx4 v11, v[12:15], s[14:15]")
        A("global_store_dwordx4 v11, v[16:19], s[14:15] offset:16")
    A("L_end:")
    A("s_endpgm")
    nv = (NV + 7) // 8 * 8
    A('.section .rodata,"a"'); A(".p2align 6"); A(f".amdhsa_kernel {KN}")
    A(f"  .amdhsa_next_free_vgpr {nv}"); A("  .amdhsa_next_free_sgpr 80"); A(f"  .amdhsa_accum_offset {nv}")
    A("  .amdhsa_group_segment_fixed_size 0"); A("  .amdhsa_kernarg_size 56"); A("  .amdhsa_user_sgpr_count 2")
    A("  .amdhsa_user_sgpr_kernarg_segment_ptr 1"); A("  .amdhsa_system_sgpr_workgroup_id_x 1")
    A("  .amdhsa_float_denorm_mode_32 3")
    A(".end_amdhsa_kernel")
    return "\n".join(L) + "\n"

if __name__ == "__main__":
    name = sys.argv[1]; kw = {}
    for a in sys.argv[2:]:
        k, v = a.split("="); kw[k] = int(v) if v.lstrip("-").isdigit() else v.replace("+", " ")
    open(name, "w").write(gen(**kw))
```

```python
import sys, struct, math
KN = "standalone__linear_kernel_rfa__sampling_kernel"

def f2u(x):
    return struct.unpack("<I", struct.pack("<f", x))[0]

HEADER = """; Kernarg layout for this problem (56 bytes, ptrs only, base s[0:1]):
"""

def gen(nw=4, kmode="p1", fine=0, pol="nt", stamps=0, lds_min=0, opol="", qpol="", spol=""):
    L = []
    A = L.append
    nsteps = 2048 // (32 * nw)
    STEPB = 32 * nw * 256
    WSTR = 9 * 576
    lds = max(nw * WSTR, lds_min)
    scale = 128.0 ** -0.25
    C1 = scale * math.log2(math.e)
    C2 = -1.5
    CF = -0.5 * scale
    EPS = f2u(1e-6)

    vK, vV = 10, 11
    OM, ONES, vCF, vC2, PQ = 12, 28, 32, 33, 34
    KR, VR, VT, ACC = 40, 72, 104, 136
    G = [172, 176]; S = [180, 184]; PD = [188, 189]; P = 192
    T1 = 196
    NV = 228 if kmode == "dpp" else 196
    sK, sV, sQ, sO, sOUT = 16, 20, 24, 28, 32
    sM = 36
    sSELLO, sSELHI, sC1, sW, sCNT = 44, 45, 46, 47, 48
    sOFF0 = 50
    soffs = {}
    def soff(c):
        hi, lo = c & ~4095, c & 4095
        if hi == 0:
            return "0", lo
        if hi not in soffs:
            soffs[hi] = sOFF0 + len(soffs)
        return f"s{soffs[hi]}", lo
    def vr(b, n=4):
        return f"v[{b}:{b+n-1}]"

    def koff(j8):
        T, j = j8 >> 2, j8 & 3
        if kmode == "p1":
            return T * nw * 4096 + j * 64
        if fine:
            return j8 * nw * 1024
        return T * nw * 4096 + j * 1024
    def voff(j8):
        T, j = j8 >> 2, j8 & 3
        if kmode == "dpp" and fine:
            return j8 * nw * 1024
        return T * nw * 4096 + j * 1024
    for j8 in range(8):
        soff(koff(j8)); soff(voff(j8))

    def kload(j8):
        so, im = soff(koff(j8))
        A(f"buffer_load_dwordx4 {vr(KR+4*j8)}, v{vK}, s[{sK}:{sK+3}], {so} offen offset:{im} {pol}")
    def vload(j8):
        so, im = soff(voff(j8))
        A(f"buffer_load_dwordx4 {vr(VR+4*j8)}, v{vV}, s[{sV}:{sV+3}], {so} offen offset:{im} {pol}")
    def stamp(i):
        if stamps:
            A(f"s_memrealtime s[{64+2*i}:{65+2*i}]")

    A(HEADER + f"; @launch grid=(256,1,1) block=({nw*64},1,1) lds={lds}")
    A('.amdgcn_target "amdgcn-amd-amdhsa--gfx950"')
    A(".text"); A(f".globl {KN}"); A(".p2align 8"); A(f".type {KN},@function"); A(f"{KN}:")
    stamp(0)
    A("s_cmp_ge_u32 s2, 256"); A("s_cbranch_scc1 L_end")
    A("s_load_dwordx8 s[4:11], s[0:1], 0")
    A("s_load_dwordx2 s[12:13], s[0:1], 32")
    if stamps:
        A(f"s_load_dwordx2 s[14:15], s[0:1], {48 if stamps==1 else 40}")
    A("v_lshrrev_b32 v1, 6, v0            ; wave")
    A("v_and_b32 v2, 63, v0               ; lane")
    A("v_and_b32 v3, 15, v2               ; l&15")
    A("v_lshrrev_b32 v4, 4, v2            ; g = l>>4")
    A(f"v_readfirstlane_b32 s{sW}, v1")
    wstride = 1024 if (kmode == "dpp" and fine) else 4096
    wsh = wstride.bit_length() - 1
    A(f"v_lshlrev_b32 v{vV}, 4, v2")
    A(f"v_lshl_add_u32 v{vV}, v1, {wsh}, v{vV}")
    if kmode == "p1":
        A("v_and_b32 v5, 3, v2"); A("v_lshlrev_b32 v5, 10, v5")
        A("v_bfe_u32 v6, v2, 2, 2"); A("v_lshl_add_u32 v5, v6, 8, v5")
        A("v_lshl_add_u32 v5, v4, 4, v5")
        A(f"v_lshl_add_u32 v{vK}, v1, {wsh}, v5")
        chunk_g, chunk_j = 16, 64
    else:
        A("v_lshlrev_b32 v5, 6, v4"); A("v_bfe_u32 v6, v2, 2, 2"); A("v_lshl_add_u32 v5, v6, 8, v5")
        A("v_and_b32 v6, 3, v2"); A("v_lshl_add_u32 v5, v6, 4, v5")
        A(f"v_lshl_add_u32 v{vK}, v1, {wsh}, v5")
        chunk_g, chunk_j = 64, 16
    gsh = chunk_g.bit_length() - 1
    A("v_and_b32 v7, 7, v2"); A("v_lshlrev_b32 v7, 8, v7"); A(f"v_lshl_add_u32 v7, v4, {gsh}, v7")
    A("v_lshlrev_b32 v8, 8, v3"); A(f"v_lshl_add_u32 v8, v4, {gsh}, v8")
    if nw == 8:
        A("v_and_b32 v9, 1, v1"); A("v_lshl_add_u32 v8, v9, 12, v8")
    for hi, s in soffs.items():
        A(f"s_mov_b32 s{s}, {hi}")
    A("s_lshl_b32 s3, s2, 19")
    for sr in (sK, sV):
        A(f"s_mov_b32 s{sr+2}, 524288"); A(f"s_mov_b32 s{sr+3}, 0x20000")
    A(f"s_mov_b32 s{sO+2}, 2048"); A(f"s_mov_b32 s{sO+3}, 0x20000")
    A(f"s_mov_b32 s{sQ+2}, 8192"); A(f"s_mov_b32 s{sQ+3}, 0x20000")
    A(f"s_mov_b32 s{sOUT+2}, 8192"); A(f"s_mov_b32 s{sOUT+3}, 0x20000")
    A("s_waitcnt lgkmcnt(0)")
    stamp(1)
    A(f"s_add_u32 s{sK}, s6, s3"); A(f"s_addc_u32 s{sK+1}, s7, 0")
    A(f"s_add_u32 s{sV}, s8, s3"); A(f"s_addc_u32 s{sV+1}, s9, 0")
    A(f"s_mov_b32 s{sO}, s10"); A(f"s_mov_b32 s{sO+1}, s11")
    A("s_lshl_b32 s3, s2, 13")
    A(f"s_add_u32 s{sQ}, s4, s3"); A(f"s_addc_u32 s{sQ+1}, s5, 0")
    nqt = 2 if nw == 4 else 1
    for jj in range(4):
        A(f"buffer_load_dwordx4 {vr(OM+4*jj)}, v7, s[{sO}:{sO+3}], 0 offen offset:{jj*chunk_j} {opol}")
    for t in range(nqt):
        if t == 1:
            A("v_add_u32 v8, 4096, v8")
        for jj in range(4):
            A(f"buffer_load_dwordx4 {vr(VT+16*t+4*jj)}, v8, s[{sQ}:{sQ+3}], 0 offen offset:{jj*chunk_j} {qpol}")
    for j8 in range(8): kload(j8)
    for j8 in range(8): vload(j8)
    A(f"s_add_u32 s{sOUT}, s12, s3"); A(f"s_addc_u32 s{sOUT+1}, s13, 0")
    A(f"v_add_u32 v{vK}, {STEPB}, v{vK}"); A(f"v_add_u32 v{vV}, {STEPB}, v{vV}")
    for r in range(4):
        A(f"s_mov_b32 s{sM+2*r}, {(1<<r)|(1<<(20+r))}"); A(f"s_mov_b32 s{sM+2*r+1}, {(1<<(8+r))|(1<<(28+r))}")
    A(f"s_mov_b32 s{sSELLO}, 0x05040100"); A(f"s_mov_b32 s{sSELHI}, 0x07060302")
    A(f"s_mov_b32 s{sC1}, {f2u(C1):#x}")
    A(f"v_mov_b32 v{vCF}, {f2u(CF):#x}"); A(f"v_mov_b32 v{vC2}, {f2u(C2):#x}")
    for r in range(4): A(f"v_mov_b32 v{ONES+r}, 0x3f803f80")
    for r in range(36): A(f"v_mov_b32 v{ACC+r}, 0")

    def diag(t):
        A(f"v_cndmask_b32 v{PD[t]}, 0, v{G[t]}, s[{sM}:{sM+1}]")
        for r in range(1, 4):
            A(f"v_cndmask_b32 v{PD[t]}, v{PD[t]}, v{G[t]+r}, s[{sM+2*r}:{sM+2*r+1}]")
    def phi(regs):
        for r in regs: A(f"v_fma_f32 v{r}, v{r}, s{sC1}, v{vC2}")
        for r in regs: A(f"v_exp_f32 v{r}, v{r}")
        if len(regs) < 2: A("s_nop 0")
        for r in regs: A(f"v_add_f32 v{r}, {EPS:#x}, v{r}")

    A("s_waitcnt vmcnt(16)")
    stamp(2)
    for t in range(nqt):
        for jj in range(4):
            q = VT + 16*t + 4*jj
            A(f"v_mfma_f32_16x16x32_bf16 {vr(G[t])}, {vr(q)}, {vr(q)}, {'0' if jj==0 else vr(G[t])}")
        for jj in range(4):
            q = VT + 16*t + 4*jj
            A(f"v_mfma_f32_16x16x32_bf16 {vr(S[t])}, {vr(OM+4*jj)}, {vr(q)}, {'0' if jj==0 else vr(S[t])}")
    A("s_nop 7")
    for t in range(nqt): diag(t)
    A("s_nop 1")
    for t in range(nqt):
        A(f"v_mfma_f32_16x16x4_f32 {vr(S[t])}, v{vCF}, v{PD[t]}, {vr(S[t])}")
    A("s_nop 9")
    phi([S[t]+r for t in range(nqt) for r in range(4)])
    for t in range(nqt):
        A(f"v_cvt_pk_bf16_f32 v{PQ+2*t}, v{S[t]}, v{S[t]+1}")
        A(f"v_cvt_pk_bf16_f32 v{PQ+2*t+1}, v{S[t]+2}, v{S[t]+3}")

    def dppsel(dst, own, other, perm):
        A(f"v_cndmask_b32_dpp v{dst}, v{other}, v{own}, vcc quad_perm:{perm} row_mask:0xf bank_mask:0xf")

    def step(last):
        if kmode == "p1":
            for T in range(2):
                A(f"s_waitcnt vmcnt({12 if (T == 0 or not last) else 8})")
                for jj in range(4):
                    k = KR + 16*T + 4*jj
                    A(f"v_mfma_f32_16x16x32_bf16 {vr(G[T])}, {vr(k)}, {vr(k)}, {'0' if jj==0 else vr(G[T])}")
                for jj in range(4):
                    k = KR + 16*T + 4*jj
                    A(f"v_mfma_f32_16x16x32_bf16 {vr(S[T])}, {vr(k)}, {vr(OM+4*jj)}, {'0' if jj==0 else vr(S[T])}")
                if not last:
                    for jj in range(4): kload(4*T + jj)
                if T == 1 and not last:
                    A(f"v_add_u32 v{vK}, {STEPB}, v{vK}")
            diag(0)
            if last: A("s_nop 1")
            diag(1)
        else:
            for T in range(2):
                A(f"s_waitcnt vmcnt({12 if (T == 0 or not last) else 8})")
                X = KR + 16*T; U = T1 + 16*T; Y = VT + 16*T
                A("s_mov_b32 vcc_lo, 0x55555555"); A("s_mov_b32 vcc_hi, 0x55555555")
                for j in (0, 2):
                    for dw in range(4): dppsel(U+4*j+dw, X+4*j+dw, X+4*(j+1)+dw, "[1,0,3,2]")
                A("s_not_b64 vcc, vcc")
                for j in (0, 2):
                    for dw in range(4): dppsel(U+4*(j+1)+dw, X+4*(j+1)+dw, X+4*j+dw, "[1,0,3,2]")
                if not last:
                    for jj in range(4): kload(4*T + jj)
                    if T == 1: A(f"v_add_u32 v{vK}, {STEPB}, v{vK}")
                A("s_mov_b32 vcc_lo, 0x33333333"); A("s_mov_b32 vcc_hi, 0x33333333")
                for j in (0, 1):
                    for dw in range(4): dppsel(Y+4*j+dw, U+4*j+dw, U+4*(j+2)+dw, "[2,3,0,1]")
                A("s_not_b64 vcc, vcc")
                for j in (0, 1):
                    for dw in range(4): dppsel(Y+4*(j+2)+dw, U+4*(j+2)+dw, U+4*j+dw, "[2,3,0,1]")
                A("s_nop 1")
                for jj in range(4):
                    k = Y + 4*jj
                    A(f"v_mfma_f32_16x16x32_bf16 {vr(G[T])}, {vr(k)}, {vr(k)}, {'0' if jj==0 else vr(G[T])}")
                for jj in range(4):
                    k = Y + 4*jj
                    A(f"v_mfma_f32_16x16x32_bf16 {vr(S[T])}, {vr(k)}, {vr(OM+4*jj)}, {'0' if jj==0 else vr(S[T])}")
            diag(0)
            diag(1)
        A("s_nop 1")
        A(f"v_mfma_f32_16x16x4_f32 {vr(S[0])}, v{PD[0]}, v{vCF}, {vr(S[0])}")
        A(f"v_mfma_f32_16x16x4_f32 {vr(S[1])}, v{PD[1]}, v{vCF}, {vr(S[1])}")
        A("s_nop 9")
        phi([S[0]+r for r in range(4)] + [S[1]+r for r in range(4)])
        for t in range(2):
            A(f"v_cvt_pk_bf16_f32 v{P+2*t}, v{S[t]}, v{S[t]+1}")
            A(f"v_cvt_pk_bf16_f32 v{P+2*t+1}, v{S[t]+2}, v{S[t]+3}")
        for jp in range(4):
            A(f"s_waitcnt vmcnt({14 if not last else 6 - 2*jp})")
            a, b = VR + 8*jp, VR + 8*jp + 4
            for i in range(8):
                A(f"v_perm_b32 v{VT+4*i+jp}, v{b+(i>>1)}, v{a+(i>>1)}, s{sSELHI if i&1 else sSELLO}")
            if not last:
                vload(2*jp); vload(2*jp+1)
        if not last:
            A(f"v_add_u32 v{vV}, {STEPB}, v{vV}")
        A(f"v_mfma_f32_16x16x32_bf16 {vr(ACC+32)}, {vr(P)}, {vr(ONES)}, {vr(ACC+32)}")
        for i in range(8):
            A(f"v_mfma_f32_16x16x32_bf16 {vr(ACC+4*i)}, {vr(P)}, {vr(VT+4*i)}, {vr(ACC+4*i)}")

    A(f"s_mov_b32 s{sCNT}, {nsteps-1}")
    A("L_loop:")
    step(False)
    A(f"s_sub_u32 s{sCNT}, s{sCNT}, 1"); A(f"s_cmp_lg_u32 s{sCNT}, 0"); A("s_cbranch_scc1 L_loop")
    step(True)
    stamp(3)
    A(f"v_lshlrev_b32 v5, 4, v2")
    A(f"s_mul_i32 s3, s{sW}, {WSTR}")
    A("v_add_u32 v5, s3, v5")
    A("v_and_b32 v6, 3, v2"); A("v_mul_u32_u24 v6, 576, v6")
    A("v_bfe_u32 v7, v2, 2, 2"); A("v_lshl_add_u32 v6, v7, 4, v6")
    A("v_and_b32 v7, 1, v4"); A("v_lshl_add_u32 v6, v7, 8, v6")
    A("v_lshrrev_b32 v8, 1, v4"); A(f"v_mul_u32_u24 v8, {(nw//2)*WSTR}, v8")
    A("v_add_u32 v6, v6, v8")
    A("v_lshl_add_u32 v7, v7, 8, v8")
    if nw == 8:
        A(f"s_lshr_b32 s3, s{sW}, 1")
    else:
        A(f"s_mov_b32 s3, s{sW}")
    A("s_lshl_b32 s3, s3, 6"); A("v_add_u32 v6, s3, v6     ; + blk*4*16")
    A("v_lshlrev_b32 v9, 8, v3"); A("v_lshl_add_u32 v9, v4, 4, v9"); A("v_add_u32 v9, s3, v9")
    if nw == 8:
        A(f"s_and_b32 s3, s{sW}, 1"); A("s_lshl_b32 s3, s3, 12"); A("v_add_u32 v9, s3, v9")
    A("s_mov_b32 exec_hi, 0")
    order = [8] + list(range(8))
    for i in order:
        A(f"ds_write_b128 v5, {vr(ACC+4*i)} offset:{i*576}")
    A("s_mov_b32 exec_hi, -1")
    A("s_waitcnt lgkmcnt(0)")
    A("s_barrier")
    nr = nw // 2
    RA, RB, RZ = KR, KR + 16, VR
    for x in range(nr): A(f"ds_read_b128 {vr(RZ+4*x)}, v7 offset:{x*WSTR + 8*576}")
    for x in range(nr): A(f"ds_read_b128 {vr(RA+4*x)}, v6 offset:{x*WSTR}")
    for x in range(nr): A(f"ds_read_b128 {vr(RB+4*x)}, v6 offset:{x*WSTR + 4*576}")
    PA = VT
    for n, R in enumerate((RZ, RA, RB)):
        A(f"s_waitcnt lgkmcnt({(2-n)*nr})")
        if nr == 4:
            for r in range(4): A(f"v_add_f32 v{R+r}, v{R+r}, v{R+4+r}")
            for r in range(4): A(f"v_add_f32 v{R+8+r}, v{R+8+r}, v{R+12+r}")
            for r in range(4): A(f"v_add_f32 v{R+r}, v{R+r}, v{R+8+r}")
        else:
            for r in range(4): A(f"v_add_f32 v{R+r}, v{R+r}, v{R+4+r}")
        A(f"v_cvt_pk_bf16_f32 v{PA+2*n}, v{R}, v{R+1}")
        A(f"v_cvt_pk_bf16_f32 v{PA+2*n+1}, v{R+2}, v{R+3}")
    A("s_nop 1")
    DZ = [ACC, ACC+12]; DA = [ACC+4, ACC+16]; DB = [ACC+8, ACC+20]
    for t in range(nqt):
        A(f"v_mfma_f32_16x16x16_bf16 {vr(DZ[t])}, {vr(PA,2)}, {vr(PQ+2*t,2)}, 0")
        A(f"v_mfma_f32_16x16x16_bf16 {vr(DA[t])}, {vr(PA+2,2)}, {vr(PQ+2*t,2)}, 0")
        A(f"v_mfma_f32_16x16x16_bf16 {vr(DB[t])}, {vr(PA+4,2)}, {vr(PQ+2*t,2)}, 0")
    A("s_nop 7")
    for t in range(nqt):
        A(f"v_add_f32 v{DZ[t]}, {EPS:#x}, v{DZ[t]}")
        A(f"v_rcp_f32 v{DZ[t]}, v{DZ[t]}")
        A("s_nop 0")
        for r in range(4): A(f"v_mul_f32 v{DA[t]+r}, v{DA[t]+r}, v{DZ[t]}")
        for r in range(4): A(f"v_mul_f32 v{DB[t]+r}, v{DB[t]+r}, v{DZ[t]}")
        O = KR + 4*t
        A(f"v_cvt_pk_bf16_f32 v{O}, v{DA[t]}, v{DA[t]+1}"); A(f"v_cvt_pk_bf16_f32 v{O+1}, v{DA[t]+2}, v{DA[t]+3}")
        A(f"v_cvt_pk_bf16_f32 v{O+2}, v{DB[t]}, v{DB[t]+1}"); A(f"v_cvt_pk_bf16_f32 v{O+3}, v{DB[t]+2}, v{DB[t]+3}")
        if t == 1: A("v_add_u32 v9, 4096, v9")
        A(f"buffer_store_dwordx4 {vr(O)}, v9, s[{sOUT}:{sOUT+3}], 0 offen {spol}")
    if stamps >= 3:
        A("s_waitcnt vmcnt(0)")
        stamp(4)
        A(f"s_cmp_lg_u32 s{sW}, 0"); A("s_cbranch_scc1 L_end")
        A("s_waitcnt lgkmcnt(0)")
        if stamps == 3: A("s_sub_u32 s3, s72, s64")
        if stamps == 4: A("s_sub_u32 s3, s68, s64"); A("s_mul_i32 s3, s3, 10")
        if stamps == 5: A("s_sub_u32 s3, s72, s70"); A("s_mul_i32 s3, s3, 10")
        if stamps == 6: A("s_sub_u32 s3, s66, s64"); A("s_mul_i32 s3, s3, 10")
        A("s_min_u32 s3, s3, 50000")
        A("L_spin:")
        A("s_memrealtime s[74:75]"); A("s_waitcnt lgkmcnt(0)")
        A("s_sub_u32 s74, s74, s72"); A("s_cmp_lt_u32 s74, s3"); A("s_cbranch_scc1 L_spin")
    if stamps == 2:
        A("s_waitcnt vmcnt(0)")
        stamp(4)
        A(f"s_cmp_lg_u32 s{sW}, 0"); A("s_cbranch_scc1 L_end")
        A("s_waitcnt lgkmcnt(0)")
        A("s_not_b32 s3, s64"); A("v_mov_b32 v12, s3"); A("v_mov_b32 v13, s72")
        A("s_sub_u32 s66, s66, s64"); A("s_sub_u32 s68, s68, s64"); A("s_sub_u32 s70, s72, s70"); A("s_sub_u32 s72, s72, s64")
        A("v_mov_b32 v14, s66"); A("v_mov_b32 v15, s68"); A("v_mov_b32 v16, s72"); A("s_not_b32 s3, s72"); A("v_mov_b32 v17, s3")
        A("v_mov_b32 v18, s70"); A("v_mov_b32 v19, s64")
        A("v_mov_b32 v11, 0")
        A("s_mov_b64 exec, 1")
        for i in range(8):
            A(f"global_atomic_umax v11, v{12+i}, s[14:15] offset:{4*i} sc1")
        A("global_atomic_add v11, v14, s[14:15] offset:32 sc1")
        A("global_atomic_add v11, v15, s[14:15] offset:36 sc1")
        A("global_atomic_add v11, v16, s[14:15] offset:40 sc1")
        A("global_atomic_add v11, v18, s[14:15] offset:44 sc1")
    if stamps == 1:
        A("s_waitcnt vmcnt(0)")
        stamp(4)
        A(f"s_cmp_lg_u32 s{sW}, 0"); A("s_cbranch_scc1 L_end")
        A("s_getreg_b32 s3, hwreg(HW_REG_XCC_ID)")
        A("s_waitcnt lgkmcnt(0)")
        A("v_mov_b32 v12, s64"); A("v_mov_b32 v13, s65"); A("v_mov_b32 v14, s72"); A("v_mov_b32 v15, s73")
        A("v_mov_b32 v16, s3"); A("v_mov_b32 v17, 0")
        A("s_sub_u32 s66, s66, s64"); A("s_sub_u32 s68, s68, s64"); A("s_sub_u32 s70, s70, s64")
        A("s_lshl_b32 s68, s68, 16"); A("s_or_b32 s66, s66, s68")
        A("v_mov_b32 v18, s66"); A("v_mov_b32 v19, s70")
        A("s_lshl_b32 s3, s2, 5"); A("v_mov_b32 v11, s3")
        A("s_mov_b64 exec, 1")
        A("global_store_dwordx4 v11, v[12:15], s[14:15]")
        A("global_store_dwordx4 v11, v[16:19], s[14:15] offset:16")
    A("L_end:")
    A("s_endpgm")
    nv = (NV + 7) // 8 * 8
    A('.section .rodata,"a"'); A(".p2align 6"); A(f".amdhsa_kernel {KN}")
    A(f"  .amdhsa_next_free_vgpr {nv}"); A("  .amdhsa_next_free_sgpr 80"); A(f"  .amdhsa_accum_offset {nv}")
    A("  .amdhsa_group_segment_fixed_size 0"); A("  .amdhsa_kernarg_size 56"); A("  .amdhsa_user_sgpr_count 2")
    A("  .amdhsa_user_sgpr_kernarg_segment_ptr 1"); A("  .amdhsa_system_sgpr_workgroup_id_x 1")
    A("  .amdhsa_float_denorm_mode_32 3")
    A(".end_amdhsa_kernel")
    return "\n".join(L) + "\n"

if __name__ == "__main__":
    name = sys.argv[1]; kw = {}
    for a in sys.argv[2:]:
        k, v = a.split("="); kw[k] = int(v) if v.lstrip("-").isdigit() else v.replace("+", " ")
    open(name, "w").write(gen(**kw))
```

```python
import sys, struct, math
KN = "standalone__linear_kernel_rfa__sampling_kernel"

def f2u(x):
    return struct.unpack("<I", struct.pack("<f", x))[0]

HEADER = """; FAVOR+ linear attention (positive random features), one workgroup of 4 waves per (b,h).
"""

def gen(d=5, strict="", fine=0, pol="nt", stamps=0, lds_min=0, opol="", qpol="nt", spol="", qit=1, qstag=1, dlast=0,
        align=0, pf=0, st2=0, epist=0):
    nw = 4
    L = []
    A = L.append
    nsteps = 16
    STEPB = 32 * nw * 256
    WSTR = 9 * 576
    lds = max(nw * WSTR, lds_min)
    scale = 128.0 ** -0.25
    C1 = scale * math.log2(math.e)
    C2 = -1.5
    CF = -0.5 * scale
    EPS = f2u(1e-6)
    strict = (str(strict) if strict != "" else "0") * 16

    vK, vV = 10, 11
    OM, ONES, vCF, vC2, PQ = 12, 28, 32, 33, 34
    KR, VR, VT, QR = 40, 72, 104, 136
    U, Y = 168, 184
    G, S, PD, P = 200, 204, 208, 212
    NV = 216
    sK, sV, sQ, sO, sOUT = 16, 20, 24, 28, 32
    sM = 36
    sSELLO, sSELHI, sC1, sW, sCNT, sQIT = 44, 45, 46, 47, 48, 49
    sOFF0 = 50
    sX1, sX2 = 60, 62
    soffs = {}
    def soff(c):
        hi, lo = c & ~4095, c & 4095
        if hi == 0:
            return "0", lo
        if hi not in soffs:
            soffs[hi] = sOFF0 + len(soffs)
        return f"s{soffs[hi]}", lo
    def vr(b, n=4): return f"v[{b}:{b+n-1}]"
    def ar(b, n=4): return f"a[{b}:{b+n-1}]"
    def off(j8):
        T, j = j8 >> 2, j8 & 3
        return j8 * nw * 1024 if fine else T * nw * 4096 + j * 1024
    for j8 in range(8): soff(off(j8))
    def load(n):
        so, im = soff(off(n & 7))
        if n < 8:
            A(f"buffer_load_dwordx4 {vr(KR+4*n)}, v{vK}, s[{sK}:{sK+3}], {so} offen offset:{im} {pol}")
        else:
            A(f"buffer_load_dwordx4 {vr(VR+4*(n-8))}, v{vV}, s[{sV}:{sV+3}], {so} offen offset:{im} {pol}")
    def stamp(i):
        if stamps: A(f"s_memrealtime s[{64+2*i}:{65+2*i}]")

    def dppsel(dst, own, other, perm):
        A(f"v_cndmask_b32_dpp v{dst}, v{other}, v{own}, vcc quad_perm:{perm} row_mask:0xf bank_mask:0xf")
    def stage1(X, j):
        A(f"s_mov_b64 vcc, s[{sX1}:{sX1+1}]")
        for dw in range(4): dppsel(U+4*j+dw, X+4*j+dw, X+4*(j+1)+dw, "[1,0,3,2]")
        A("s_not_b64 vcc, vcc")
        for dw in range(4): dppsel(U+4*(j+1)+dw, X+4*(j+1)+dw, X+4*j+dw, "[1,0,3,2]")
    def stage2(dst, nop=False):
        if nop: A("s_nop 0")
        A(f"s_mov_b64 vcc, s[{sX2}:{sX2+1}]")
        for j in (0, 1):
            for dw in range(4): dppsel(dst+4*j+dw, U+4*j+dw, U+4*(j+2)+dw, "[2,3,0,1]")
        A("s_not_b64 vcc, vcc")
        for j in (0, 1):
            for dw in range(4): dppsel(dst+4*(j+2)+dw, U+4*(j+2)+dw, U+4*j+dw, "[2,3,0,1]")
    def chains(isq=False):
        for jj in range(4):
            k = Y + 4*jj
            A(f"v_mfma_f32_16x16x32_bf16 {vr(G)}, {vr(k)}, {vr(k)}, {'0' if jj==0 else vr(G)}")
        for jj in range(4):
            k = Y + 4*jj
            a, b = (OM+4*jj, k) if isq else (k, OM+4*jj)
            A(f"v_mfma_f32_16x16x32_bf16 {vr(S)}, {vr(a)}, {vr(b)}, {'0' if jj==0 else vr(S)}")
    def diag(isq=False):
        A(f"v_cndmask_b32 v{PD}, 0, v{G}, s[{sM}:{sM+1}]")
        for r in range(1, 4):
            A(f"v_cndmask_b32 v{PD}, v{PD}, v{G+r}, s[{sM+2*r}:{sM+2*r+1}]")
        A("s_nop 1")
        a, b = (vCF, PD) if isq else (PD, vCF)
        A(f"v_mfma_f32_16x16x4_f32 {vr(S)}, v{a}, v{b}, {vr(S)}")
    def phi(dst):
        for r in range(4): A(f"v_fma_f32 v{S+r}, v{S+r}, s{sC1}, v{vC2}")
        for r in range(4): A(f"v_exp_f32 v{S+r}, v{S+r}")
        for r in range(4): A(f"v_add_f32 v{S+r}, {EPS:#x}, v{S+r}")
        A(f"v_cvt_pk_bf16_f32 v{dst}, v{S}, v{S+1}")
        A(f"v_cvt_pk_bf16_f32 v{dst+1}, v{S+2}, v{S+3}")
    def perms(jp, mf=False):
        a, b = VR + 8*jp, VR + 8*jp + 4
        for i in range(8):
            A(f"v_perm_b32 v{VT+4*i+jp}, v{b+(i>>1)}, v{a+(i>>1)}, s{sSELHI if i&1 else sSELLO}")
            if mf and i >= 2: vmfma(i-2)
        if mf:
            vmfma(6); vmfma(7)
    def vmfma(i):
        A(f"v_mfma_f32_16x16x32_bf16 {ar(4*i)}, {vr(P)}, {vr(VT+4*i)}, {ar(4*i)}")

    A(HEADER + f"; @launch grid=(256,1,1) block=({nw*64},1,1) lds={lds}")
    A('.amdgcn_target "amdgcn-amd-amdhsa--gfx950"')
    A(".text"); A(f".globl {KN}"); A(".p2align 8"); A(f".type {KN},@function"); A(f"{KN}:")
    stamp(0)
    A("s_cmp_ge_u32 s2, 256"); A("s_cbranch_scc1 L_end")
    A("s_load_dwordx8 s[4:11], s[0:1], 0         ; q k v omega")
    if pf:
        A("s_getpc_b64 s[76:77]")
        A("L_pc:")
        A(f"v_lshlrev_b32 v3, {7 if pf == 1 else 6}, v0")
        A("v_min_u32 v3, L_codeend-L_pc-4, v3")
        A(f"global_load_dword v{PD}, v3, s[76:77]")
    A("s_load_dwordx2 s[12:13], s[0:1], 32       ; out")
    if stamps:
        A(f"s_load_dwordx2 s[14:15], s[0:1], {48 if stamps==1 else 40}")
    A("v_lshrrev_b32 v1, 6, v0            ; wave")
    A("v_and_b32 v2, 63, v0               ; lane")
    A("v_lshrrev_b32 v4, 4, v2            ; g = l>>4")
    A("v_bfe_u32 v6, v2, 2, 2             ; a = l3l2")
    A(f"v_readfirstlane_b32 s{sW}, v1")
    wsh = 10 if fine else 12
    A("v_and_b32 v5, 3, v2"); A("v_lshlrev_b32 v5, 4, v5"); A("v_lshl_add_u32 v5, v4, 6, v5")
    A(f"v_lshl_add_u32 v{vK}, v6, 8, v5")
    A(f"v_lshl_add_u32 v{vK}, v1, {wsh}, v{vK}")
    A("v_and_b32 v7, 1, v6"); A("v_lshl_add_u32 v7, v7, 10, v5")
    A("v_lshl_add_u32 v8, v6, 10, v5")
    A(f"v_lshlrev_b32 v{vV}, 4, v2")
    A(f"v_lshl_add_u32 v{vV}, v1, {wsh}, v{vV}")
    for hi, s in soffs.items():
        A(f"s_mov_b32 s{s}, {hi}")
    A("s_lshl_b32 s3, s2, 19")
    for sr in (sK, sV):
        A(f"s_mov_b32 s{sr+2}, 524288"); A(f"s_mov_b32 s{sr+3}, 0x20000")
    A(f"s_mov_b32 s{sO+2}, 2048"); A(f"s_mov_b32 s{sO+3}, 0x20000")
    A(f"s_mov_b32 s{sQ+2}, 8192"); A(f"s_mov_b32 s{sQ+3}, 0x20000")
    A("s_waitcnt lgkmcnt(0)")
    if not epist: stamp(1)
    A(f"s_mov_b32 s{sO}, s10"); A(f"s_mov_b32 s{sO+1}, s11")
    A(f"s_add_u32 s{sK}, s6, s3"); A(f"s_addc_u32 s{sK+1}, s7, 0")
    for j in range(4):
        A(f"buffer_load_dwordx4 {vr(Y+4*j)}, v7, s[{sO}:{sO+3}], 0 offen offset:{j*256} {opol}")
    for n in range(d): load(n)
    A(f"s_add_u32 s{sV}, s8, s3"); A(f"s_addc_u32 s{sV+1}, s9, 0")
    A("s_lshl_b32 s3, s2, 13")
    A(f"s_add_u32 s{sQ}, s4, s3"); A(f"s_addc_u32 s{sQ+1}, s5, 0")
    A("v_add_u32 v9, 4096, v8")
    for t in range(2):
        for j in range(4):
            A(f"buffer_load_dwordx4 {vr(QR+16*t+4*j)}, v{8+t}, s[{sQ}:{sQ+3}], 0 offen offset:{j*256} {qpol}")
    A(f"s_add_u32 s{sOUT}, s12, s3"); A(f"s_addc_u32 s{sOUT+1}, s13, 0")
    A(f"s_mov_b32 s{sOUT+2}, 8192"); A(f"s_mov_b32 s{sOUT+3}, 0x20000")
    for r in range(4):
        A(f"s_mov_b32 s{sM+2*r}, {(1<<r)|(1<<(20+r))}"); A(f"s_mov_b32 s{sM+2*r+1}, {(1<<(8+r))|(1<<(28+r))}")
    A(f"s_mov_b32 s{sSELLO}, 0x05040100"); A(f"s_mov_b32 s{sSELHI}, 0x07060302")
    A(f"s_mov_b32 s{sC1}, {f2u(C1):#x}")
    A(f"s_mov_b32 s{sX1}, 0x55555555"); A(f"s_mov_b32 s{sX1+1}, 0x55555555")
    A(f"s_mov_b32 s{sX2}, 0x33333333"); A(f"s_mov_b32 s{sX2+1}, 0x33333333")
    A(f"v_mov_b32 v{vCF}, {f2u(CF):#x}"); A(f"v_mov_b32 v{vC2}, {f2u(C2):#x}")
    for r in range(4): A(f"v_mov_b32 v{ONES+r}, 0x3f803f80")
    for r in range(36): A(f"v_accvgpr_write_b32 a{r}, 0")
    if qstag:
        A(f"s_sub_u32 s{sQIT}, {nsteps-1-qit}, s{sW}")
    else:
        A(f"s_mov_b32 s{sQIT}, {nsteps-1-qit}")
    A(f"s_mov_b32 s{sCNT}, {nsteps-1}")
    A("v_and_b32 v3, 15, v2               ; l&15")
    A("v_lshlrev_b32 v5, 4, v2")
    A(f"s_mul_i32 s3, s{sW}, {WSTR}")
    A("v_add_u32 v5, s3, v5")
    A("v_and_b32 v7, 3, v2"); A("v_mul_u32_u24 v7, 576, v7")
    A("v_lshl_add_u32 v6, v6, 4, v7")
    A("v_and_b32 v7, 1, v4"); A("v_lshl_add_u32 v6, v7, 8, v6")
    A("v_lshrrev_b32 v8, 1, v4"); A(f"v_mul_u32_u24 v8, {2*WSTR}, v8")
    A("v_add_u32 v6, v6, v8")
    A("v_lshl_add_u32 v7, v7, 8, v8")
    A(f"s_lshl_b32 s3, s{sW}, 6"); A("v_add_u32 v6, s3, v6")
    A("v_lshlrev_b32 v9, 8, v3"); A("v_lshl_add_u32 v9, v4, 4, v9"); A("v_add_u32 v9, s3, v9")
    A(f"s_waitcnt vmcnt({d+8})")
    if not st2 and not epist: stamp(2)
    stage1(Y, 0); stage1(Y, 2); stage2(OM, nop=True)

    def step(last):
        dd = dlast if (last and dlast) else d
        for r in range(16):
            n = r + d
            if last:
                x = min(d - 1, 15 - r)
            else:
                x = d - 1
            if strict[r] == "1" and x == d - 1 and x > 0: x -= 1
            A(f"s_waitcnt vmcnt({x})")
            if n < 16: load(n)
            elif not last: load(n - 16)
            elif r in (11, 12): A("s_nop 0")
            if not last and r == 8: A(f"v_add_u32 v{vK}, {STEPB}, v{vK}")
            if not last and r == 15: A(f"v_add_u32 v{vV}, {STEPB}, v{vV}")
            if r == 1: stage1(KR, 0)
            if r == 3: stage1(KR, 2)
            if r == 4: stage2(Y)
            if r == 5: chains(); stage1(KR+16, 0)
            if r == 6: diag()
            if r == 7: stage1(KR+16, 2); phi(P)
            if r == 8: stage2(Y)
            if r == 9: chains(); perms(0)
            if r == 10: diag()
            if r == 11: perms(1); phi(P+2)
            if r == 12:
                A(f"v_mfma_f32_16x16x32_bf16 {ar(32)}, {vr(P)}, {vr(ONES)}, {ar(32)}")
                if not last:
                    A(f"s_cmp_eq_u32 s{sCNT}, s{sQIT}"); A("s_cbranch_scc1 L_q"); A("L_qret:")
            if r == 13: perms(2)
            if r == 15: perms(3, mf=True)
    assert 16 - d > 8 >= 8 - d, "vK advance placement"

    if align: A(f".p2align {align}")
    A("L_loop:")
    step(False)
    if st2:
        A(f"s_cmp_lg_u32 s{sCNT}, {nsteps - st2}"); A("s_cbranch_scc1 L_nost"); stamp(2); A("L_nost:")
    A(f"s_sub_u32 s{sCNT}, s{sCNT}, 1"); A(f"s_cmp_lg_u32 s{sCNT}, 0"); A("s_cbranch_scc1 L_loop")
    step(True)
    stamp(3)
    A("s_mov_b32 exec_hi, 0")
    A(f"ds_write_b128 v5, {ar(32)} offset:{8*576}")
    for i in range(8):
        A(f"ds_write_b128 v5, {ar(4*i)} offset:{i*576}")
    A("s_mov_b32 exec_hi, -1")
    A("s_waitcnt lgkmcnt(0)")
    A("s_barrier")
    if epist: stamp(1)
    nr = 2
    RA, RB, RZ = KR, KR + 8, KR + 16
    for x in range(nr): A(f"ds_read_b128 {vr(RZ+4*x)}, v7 offset:{x*WSTR + 8*576}")
    for x in range(nr): A(f"ds_read_b128 {vr(RA+4*x)}, v6 offset:{x*WSTR}")
    for x in range(nr): A(f"ds_read_b128 {vr(RB+4*x)}, v6 offset:{x*WSTR + 4*576}")
    PA = VT
    DZ = [U, U+12]; DA = [U+4, U+16]; DB = [U+8, U+20]
    for n, (R, DD) in enumerate(((RZ, DZ), (RA, DA), (RB, DB))):
        A(f"s_waitcnt lgkmcnt({(2-n)*nr})")
        for r in range(4): A(f"v_add_f32 v{R+r}, v{R+r}, v{R+4+r}")
        A(f"v_cvt_pk_bf16_f32 v{PA+2*n}, v{R}, v{R+1}")
        A(f"v_cvt_pk_bf16_f32 v{PA+2*n+1}, v{R+2}, v{R+3}")
        A("s_nop 1")
        for t in range(2):
            A(f"v_mfma_f32_16x16x16_bf16 {vr(DD[t])}, {vr(PA+2*n,2)}, {vr(PQ+2*t,2)}, 0")
    for t in range(2):
        A(f"v_add_f32 v{DZ[t]}, {EPS:#x}, v{DZ[t]}")
    for t in range(2):
        A(f"v_rcp_f32 v{DZ[t]}, v{DZ[t]}")
    A("v_add_u32 v8, 4096, v9")
    for t in range(2):
        for r in range(4): A(f"v_mul_f32 v{DA[t]+r}, v{DA[t]+r}, v{DZ[t]}")
    for t in range(2):
        O = VR + 4*t
        A(f"v_cvt_pk_bf16_f32 v{O}, v{DA[t]}, v{DA[t]+1}"); A(f"v_cvt_pk_bf16_f32 v{O+1}, v{DA[t]+2}, v{DA[t]+3}")
    for t in range(2):
        O = VR + 4*t
        for r in range(4): A(f"v_mul_f32 v{DB[t]+r}, v{DB[t]+r}, v{DZ[t]}")
        A(f"v_cvt_pk_bf16_f32 v{O+2}, v{DB[t]}, v{DB[t]+1}"); A(f"v_cvt_pk_bf16_f32 v{O+3}, v{DB[t]+2}, v{DB[t]+3}")
        A(f"buffer_store_dwordx4 {vr(O)}, v{9-t}, s[{sOUT}:{sOUT+3}], 0 offen {spol}")
    if epist: stamp(2)
    if stamps >= 3:
        A("s_waitcnt vmcnt(0)")
        stamp(4)
        A(f"s_cmp_lg_u32 s{sW}, 0"); A("s_cbranch_scc1 L_end")
        A("s_waitcnt lgkmcnt(0)")
        if stamps == 7: A("s_sub_u32 s3, s72, s64"); A("s_lshl_b32 s3, s3, 1"); A("s_sub_u32 s3, 12000, s3")
        if stamps == 3: A("s_sub_u32 s3, s72, s64")
        A("s_min_u32 s3, s3, 50000")
        A("L_spin:")
        A("s_memrealtime s[74:75]"); A("s_waitcnt lgkmcnt(0)")
        A("s_sub_u32 s74, s74, s72"); A("s_cmp_lt_u32 s74, s3"); A("s_cbranch_scc1 L_spin")
    if stamps == 1:
        A("s_waitcnt vmcnt(0)")
        stamp(4)
        A(f"s_cmp_lg_u32 s{sW}, 0"); A("s_cbranch_scc1 L_end")
        A("s_getreg_b32 s3, hwreg(HW_REG_XCC_ID)")
        A("s_waitcnt lgkmcnt(0)")
        A("v_mov_b32 v12, s64"); A("v_mov_b32 v13, s65"); A("v_mov_b32 v14, s72"); A("v_mov_b32 v15, s73")
        A("v_mov_b32 v16, s3"); A("v_mov_b32 v17, 0")
        A("s_sub_u32 s66, s66, s64"); A("s_sub_u32 s68, s68, s64"); A("s_sub_u32 s70, s70, s64")
        A("s_lshl_b32 s68, s68, 16"); A("s_or_b32 s66, s66, s68")
        A("v_mov_b32 v18, s66"); A("v_mov_b32 v19, s70")
        A("s_lshl_b32 s3, s2, 5"); A("v_mov_b32 v11, s3")
        A("s_mov_b64 exec, 1")
        A("global_store_dwordx4 v11, v[12:15], s[14:15]")
        A("global_store_dwordx4 v11, v[16:19], s[14:15] offset:16")
    A("L_end:")
    A("s_endpgm")
    A("L_q:")
    for t in range(2):
        stage1(QR+16*t, 0); stage1(QR+16*t, 2); stage2(Y, nop=True)
        A("s_nop 1")
        chains(isq=True)
        A("s_nop 3")
        diag(isq=True)
        A("s_nop 9")
        phi(PQ+2*t)
    A("s_branch L_qret")
    A("L_codeend:")
    A('.section .rodata,"a"'); A(".p2align 6"); A(f".amdhsa_kernel {KN}")
    A(f"  .amdhsa_next_free_vgpr {NV+40}"); A("  .amdhsa_next_free_sgpr 80"); A(f"  .amdhsa_accum_offset {NV}")
    A("  .amdhsa_group_segment_fixed_size 0"); A("  .amdhsa_kernarg_size 56"); A("  .amdhsa_user_sgpr_count 2")
    A("  .amdhsa_user_sgpr_kernarg_segment_ptr 1"); A("  .amdhsa_system_sgpr_workgroup_id_x 1")
    A("  .amdhsa_float_denorm_mode_32 3")
    A(".end_amdhsa_kernel")
    return "\n".join(L) + "\n"

if __name__ == "__main__":
    name = sys.argv[1]; kw = {}
    for a in sys.argv[2:]:
        k, v = a.split("=")
        kw[k] = v if k == "strict" else (int(v) if v.lstrip("-").isdigit() else v.replace("+", " "))
    open(name, "w").write(gen(**kw))
```

```python
import sys, struct, math
KN = "standalone__linear_kernel_rfa__sampling_kernel"

def f2u(x):
    return struct.unpack("<I", struct.pack("<f", x))[0]

HEADER = """; FAVOR+ linear attention (positive random features), one workgroup of 4 waves per (b,h).
"""

def gen(dk=6, dv=6, sk="0", sv="0", fine=0, pol="nt", stamps=0, opol="", qpol="nt", spol="", qit=1, qstag=1,
        align=0, pf=1, st2=0, epist=0):
    nw = 4
    L = []
    A = L.append
    nsteps = 16
    STEPB = 32 * nw * 256
    WSTR = 9 * 576
    PSTR = 17 * 1024
    PBASE = nw * WSTR
    lds = PBASE + nw * PSTR
    scale = 128.0 ** -0.25
    C1 = scale * math.log2(math.e)
    C2 = -1.5
    CF = -0.5 * scale
    EPS = f2u(1e-6)
    sk = str(sk) * 8; sv = str(sv) * 8
    assert dk <= 6 and dv <= 6

    vA, vV0, vP = 10, 11, 38
    OM, ONES, vCF, vC2, PQ = 12, 28, 32, 33, 34
    R, VT, QR = 40, 72, 104
    U, Y = 136, 152
    G, S, PD, P, PV = 168, 172, 176, 180, 184
    NV = 192
    sS, sQ, sO, sOUT = 16, 24, 28, 32
    sVB = 20
    sM = 36
    sSELLO, sSELHI, sC1, sW, sCNT, sQIT = 44, 45, 46, 47, 48, 49
    sOFF0 = 50
    sX1, sX2 = 60, 62
    soffs = {}
    def soff(c):
        hi, lo = c & ~4095, c & 4095
        if hi == 0:
            return "0", lo
        if hi not in soffs:
            soffs[hi] = sOFF0 + len(soffs)
        return f"s{soffs[hi]}", lo
    def vr(b, n=4): return f"v[{b}:{b+n-1}]"
    def ar(b, n=4): return f"a[{b}:{b+n-1}]"
    def off(j8):
        T, j = j8 >> 2, j8 & 3
        return j8 * nw * 1024 if fine else T * nw * 4096 + j * 1024
    for j8 in range(8): soff(off(j8))
    def load(n):
        so, im = soff(off(n))
        A(f"buffer_load_dwordx4 {vr(R+4*n)}, v{vA}, s[{sS}:{sS+3}], {so} offen offset:{im} {pol}")
    def stamp(i):
        if stamps: A(f"s_memrealtime s[{64+2*i}:{65+2*i}]")

    def dppsel(dst, own, other, perm):
        A(f"v_cndmask_b32_dpp v{dst}, v{other}, v{own}, vcc quad_perm:{perm} row_mask:0xf bank_mask:0xf")
    def stage1(X, j):
        A(f"s_mov_b64 vcc, s[{sX1}:{sX1+1}]")
        for dw in range(4): dppsel(U+4*j+dw, X+4*j+dw, X+4*(j+1)+dw, "[1,0,3,2]")
        A("s_not_b64 vcc, vcc")
        for dw in range(4): dppsel(U+4*(j+1)+dw, X+4*(j+1)+dw, X+4*j+dw, "[1,0,3,2]")
    def stage2(dst, nop=False):
        if nop: A("s_nop 0")
        A(f"s_mov_b64 vcc, s[{sX2}:{sX2+1}]")
        for j in (0, 1):
            for dw in range(4): dppsel(dst+4*j+dw, U+4*j+dw, U+4*(j+2)+dw, "[2,3,0,1]")
        A("s_not_b64 vcc, vcc")
        for j in (0, 1):
            for dw in range(4): dppsel(dst+4*(j+2)+dw, U+4*(j+2)+dw, U+4*j+dw, "[2,3,0,1]")
    def chains(isq=False):
        for jj in range(4):
            k = Y + 4*jj
            A(f"v_mfma_f32_16x16x32_bf16 {vr(G)}, {vr(k)}, {vr(k)}, {'0' if jj==0 else vr(G)}")
        for jj in range(4):
            k = Y + 4*jj
            a, b = (OM+4*jj, k) if isq else (k, OM+4*jj)
            A(f"v_mfma_f32_16x16x32_bf16 {vr(S)}, {vr(a)}, {vr(b)}, {'0' if jj==0 else vr(S)}")
    def diag(isq=False):
        A(f"v_cndmask_b32 v{PD}, 0, v{G}, s[{sM}:{sM+1}]")
        for r in range(1, 4):
            A(f"v_cndmask_b32 v{PD}, v{PD}, v{G+r}, s[{sM+2*r}:{sM+2*r+1}]")
        A("s_nop 1")
        a, b = (vCF, PD) if isq else (PD, vCF)
        A(f"v_mfma_f32_16x16x4_f32 {vr(S)}, v{a}, v{b}, {vr(S)}")
    def phi(dst):
        for r in range(4): A(f"v_fma_f32 v{S+r}, v{S+r}, s{sC1}, v{vC2}")
        for r in range(4): A(f"v_exp_f32 v{S+r}, v{S+r}")
        for r in range(4): A(f"v_add_f32 v{S+r}, {EPS:#x}, v{S+r}")
        A(f"v_cvt_pk_bf16_f32 v{dst}, v{S}, v{S+1}")
        A(f"v_cvt_pk_bf16_f32 v{dst+1}, v{S+2}, v{S+3}")
    def vmfma(i):
        A(f"v_mfma_f32_16x16x32_bf16 {ar(4*i)}, {vr(PV)}, {vr(VT+4*i)}, {ar(4*i)}")
    def perms(jp, mf=False):
        a, b = R + 8*jp, R + 8*jp + 4
        for i in range(8):
            A(f"v_perm_b32 v{VT+4*i+jp}, v{b+(i>>1)}, v{a+(i>>1)}, s{sSELHI if i&1 else sSELLO}")
            if mf and i >= 2: vmfma(i-2)
        if mf:
            vmfma(6); vmfma(7)
    def pstore():
        A(f"ds_write_b128 v{vP}, {vr(P)}")
        A(f"v_add_u32 v{vP}, 1024, v{vP}")

    A(HEADER + f"; @launch grid=(256,1,1) block=({nw*64},1,1) lds={lds}")
    A('.amdgcn_target "amdgcn-amd-amdhsa--gfx950"')
    A(".text"); A(f".globl {KN}"); A(".p2align 8"); A(f".type {KN},@function"); A(f"{KN}:")
    stamp(0)
    A("s_cmp_ge_u32 s2, 256"); A("s_cbranch_scc1 L_end")
    A("s_load_dwordx8 s[4:11], s[0:1], 0         ; q k v omega")
    if pf:
        A("s_getpc_b64 s[76:77]")
        A("L_pc:")
        A(f"v_lshlrev_b32 v3, {7 if pf == 1 else 6}, v0")
        A("v_min_u32 v3, L_codeend-L_pc-4, v3")
        A(f"global_load_dword v{PD}, v3, s[76:77]")
    A("s_load_dwordx2 s[12:13], s[0:1], 32       ; out")
    if stamps:
        A(f"s_load_dwordx2 s[14:15], s[0:1], {48 if stamps==1 else 40}")
    A("v_lshrrev_b32 v1, 6, v0            ; wave")
    A("v_and_b32 v2, 63, v0               ; lane")
    A("v_lshrrev_b32 v4, 4, v2            ; g = l>>4")
    A("v_bfe_u32 v6, v2, 2, 2             ; a = l3l2")
    A(f"v_readfirstlane_b32 s{sW}, v1")
    wsh = 10 if fine else 12
    A("v_and_b32 v5, 3, v2"); A("v_lshlrev_b32 v5, 4, v5"); A("v_lshl_add_u32 v5, v4, 6, v5")
    A(f"v_lshl_add_u32 v{vA}, v6, 8, v5")
    A(f"v_lshl_add_u32 v{vA}, v1, {wsh}, v{vA}")
    A("v_and_b32 v7, 1, v6"); A("v_lshl_add_u32 v7, v7, 10, v5")
    A("v_lshl_add_u32 v8, v6, 10, v5")
    for hi, s in soffs.items():
        A(f"s_mov_b32 s{s}, {hi}")
    A("s_lshl_b32 s3, s2, 19")
    A(f"s_mov_b32 s{sS+2}, 524288"); A(f"s_mov_b32 s{sS+3}, 0x20000")
    A(f"s_mov_b32 s{sO+2}, 2048"); A(f"s_mov_b32 s{sO+3}, 0x20000")
    A(f"s_mov_b32 s{sQ+2}, 8192"); A(f"s_mov_b32 s{sQ+3}, 0x20000")
    A("s_waitcnt lgkmcnt(0)")
    if not epist: stamp(1)
    A(f"s_mov_b32 s{sO}, s10"); A(f"s_mov_b32 s{sO+1}, s11")
    A(f"s_add_u32 s{sS}, s6, s3"); A(f"s_addc_u32 s{sS+1}, s7, 0")
    for j in range(4):
        A(f"buffer_load_dwordx4 {vr(Y+4*j)}, v7, s[{sO}:{sO+3}], 0 offen offset:{j*256} {opol}")
    for n in range(dk): load(n)
    A(f"s_add_u32 s{sVB}, s8, s3"); A(f"s_addc_u32 s{sVB+1}, s9, 0")
    A("s_lshl_b32 s3, s2, 13")
    A(f"s_add_u32 s{sQ}, s4, s3"); A(f"s_addc_u32 s{sQ+1}, s5, 0")
    A("v_add_u32 v9, 4096, v8")
    for t in range(2):
        for j in range(4):
            A(f"buffer_load_dwordx4 {vr(QR+16*t+4*j)}, v{8+t}, s[{sQ}:{sQ+3}], 0 offen offset:{j*256} {qpol}")
    A(f"s_add_u32 s{sOUT}, s12, s3"); A(f"s_addc_u32 s{sOUT+1}, s13, 0")
    A(f"s_mov_b32 s{sOUT+2}, 8192"); A(f"s_mov_b32 s{sOUT+3}, 0x20000")
    for r in range(4):
        A(f"s_mov_b32 s{sM+2*r}, {(1<<r)|(1<<(20+r))}"); A(f"s_mov_b32 s{sM+2*r+1}, {(1<<(8+r))|(1<<(28+r))}")
    A(f"s_mov_b32 s{sSELLO}, 0x05040100"); A(f"s_mov_b32 s{sSELHI}, 0x07060302")
    A(f"s_mov_b32 s{sC1}, {f2u(C1):#x}")
    A(f"s_mov_b32 s{sX1}, 0x55555555"); A(f"s_mov_b32 s{sX1+1}, 0x55555555")
    A(f"s_mov_b32 s{sX2}, 0x33333333"); A(f"s_mov_b32 s{sX2+1}, 0x33333333")
    A(f"v_mov_b32 v{vCF}, {f2u(CF):#x}"); A(f"v_mov_b32 v{vC2}, {f2u(C2):#x}")
    for r in range(4): A(f"v_mov_b32 v{ONES+r}, 0x3f803f80")
    for r in range(36): A(f"v_accvgpr_write_b32 a{r}, 0")
    if qstag:
        A(f"s_sub_u32 s{sQIT}, {nsteps-qit}, s{sW}")
    else:
        A(f"s_mov_b32 s{sQIT}, {nsteps-qit}")
    A(f"s_mov_b32 s{sCNT}, {nsteps}")
    A(f"v_lshlrev_b32 v5, 4, v2")
    A(f"v_lshl_add_u32 v{vV0}, v1, {wsh}, v5")
    A(f"s_mul_i32 s3, s{sW}, {PSTR}"); A(f"s_add_u32 s3, s3, {PBASE}")
    A(f"v_add_u32 v{vP}, s3, v5")
    A("v_and_b32 v3, 15, v2               ; l&15")
    A(f"s_mul_i32 s3, s{sW}, {WSTR}")
    A("v_add_u32 v5, s3, v5")
    A("v_and_b32 v7, 3, v2"); A("v_mul_u32_u24 v7, 576, v7")
    A("v_lshl_add_u32 v6, v6, 4, v7")
    A("v_and_b32 v7, 1, v4"); A("v_lshl_add_u32 v6, v7, 8, v6")
    A("v_lshrrev_b32 v8, 1, v4"); A(f"v_mul_u32_u24 v8, {2*WSTR}, v8")
    A("v_add_u32 v6, v6, v8")
    A("v_lshl_add_u32 v7, v7, 8, v8")
    A(f"s_lshl_b32 s3, s{sW}, 6"); A("v_add_u32 v6, s3, v6")
    A("v_lshlrev_b32 v9, 8, v3"); A("v_lshl_add_u32 v9, v4, 4, v9"); A("v_add_u32 v9, s3, v9")
    A(f"s_waitcnt vmcnt({dk+8})")
    if not st2 and not epist: stamp(2)
    stage1(Y, 0); stage1(Y, 2); stage2(OM, nop=True)

    if align: A(f".p2align {align}")
    A("L_kloop:")
    for r in range(8):
        x = dk - 1
        if sk[r] == "1": x -= 1
        A(f"s_waitcnt vmcnt({x})")
        if r == 8 - dk:
            A(f"v_add_u32 v{vA}, {STEPB}, v{vA}")
            A(f"s_cmp_lg_u32 s{sCNT}, 1"); A("s_cbranch_scc1 L_nosw")
            A(f"s_mov_b32 s{sS}, s{sVB}"); A(f"s_mov_b32 s{sS+1}, s{sVB+1}"); A(f"v_mov_b32 v{vA}, v{vV0}")
            A("L_nosw:")
        load((r + dk) & 7)
        if r == 0: stage2(Y)
        if r == 1: chains(); stage1(R, 0)
        if r == 2: diag()
        if r == 3: stage1(R, 2); phi(P+2)
        if r == 4: pstore(); stage2(Y)
        if r == 5: chains(); stage1(R+16, 0)
        if r == 6: diag()
        if r == 7: stage1(R+16, 2); phi(P)
    if st2 and st2 <= 16:
        A(f"s_cmp_lg_u32 s{sCNT}, {nsteps + 1 - st2}"); A("s_cbranch_scc1 L_nost"); stamp(2); A("L_nost:")
    A(f"s_sub_u32 s{sCNT}, s{sCNT}, 1"); A(f"s_cmp_lg_u32 s{sCNT}, 0"); A("s_cbranch_scc1 L_kloop")

    def vstep(first):
        issued = dk if first else dv
        for r in range(8):
            n = r + dv
            x = min(dv - 1 - (sv[r] == "1"), issued - r - 1) if issued <= n else issued - r - 1
            A(f"s_waitcnt vmcnt({x})")
            if r == 8 - dv: A(f"v_add_u32 v{vA}, {STEPB}, v{vA}")
            did = False
            while issued <= n:
                assert issued < 8 or r >= 8 - dv
                load(issued & 7); issued += 1; did = True
            if not did: A("s_nop 0")
            if first:
                if r == 0: stage2(Y)
                if r == 1: chains()
                if r == 2: diag()
                if r == 3: perms(1); phi(P+2)
                if r == 4: pstore(); A(f"v_subrev_u32 v{vP}, {16*1024}, v{vP}")
                if r == 5: A(f"ds_read_b128 {vr(PV)}, v{vP}"); A(f"v_add_u32 v{vP}, 1024, v{vP}")
            else:
                if r == 2: A(f"ds_read_b128 {vr(PV)}, v{vP}"); A(f"v_add_u32 v{vP}, 1024, v{vP}")
                if r == 3: perms(1)
                if r == 4:
                    A(f"s_cmp_eq_u32 s{sCNT}, s{sQIT}"); A("s_cbranch_scc1 L_q"); A("L_qret:")
            if r == 1: perms(0)
            if r == 5: perms(2)
            if r == 6:
                A("s_waitcnt lgkmcnt(0)")
                A(f"v_mfma_f32_16x16x32_bf16 {ar(32)}, {vr(PV)}, {vr(ONES)}, {ar(32)}")
            if r == 7: perms(3, mf=True)
    vstep(True)
    A(f"s_mov_b32 s{sCNT}, {nsteps-1}")
    if align: A(f".p2align {align}")
    A("L_vloop:")
    vstep(False)
    if st2 > 16:
        A(f"s_cmp_lg_u32 s{sCNT}, {33 - st2}"); A("s_cbranch_scc1 L_nost"); stamp(2); A("L_nost:")
    A(f"s_sub_u32 s{sCNT}, s{sCNT}, 1"); A(f"s_cmp_lg_u32 s{sCNT}, 0"); A("s_cbranch_scc1 L_vloop")
    stamp(3)
    A("s_mov_b32 exec_hi, 0")
    A(f"ds_write_b128 v5, {ar(32)} offset:{8*576}")
    for i in range(8):
        A(f"ds_write_b128 v5, {ar(4*i)} offset:{i*576}")
    A("s_mov_b32 exec_hi, -1")
    A("s_waitcnt lgkmcnt(0)")
    A("s_barrier")
    if epist: stamp(1)
    nr = 2
    RA, RB, RZ = QR, QR + 8, QR + 16
    for x in range(nr): A(f"ds_read_b128 {vr(RZ+4*x)}, v7 offset:{x*WSTR + 8*576}")
    for x in range(nr): A(f"ds_read_b128 {vr(RA+4*x)}, v6 offset:{x*WSTR}")
    for x in range(nr): A(f"ds_read_b128 {vr(RB+4*x)}, v6 offset:{x*WSTR + 4*576}")
    PA = VT
    DZ = [U, U+12]; DA = [U+4, U+16]; DB = [U+8, U+20]
    for n, (RR, DD) in enumerate(((RZ, DZ), (RA, DA), (RB, DB))):
        A(f"s_waitcnt lgkmcnt({(2-n)*nr})")
        for r in range(4): A(f"v_add_f32 v{RR+r}, v{RR+r}, v{RR+4+r}")
        A(f"v_cvt_pk_bf16_f32 v{PA+2*n}, v{RR}, v{RR+1}")
        A(f"v_cvt_pk_bf16_f32 v{PA+2*n+1}, v{RR+2}, v{RR+3}")
        A("s_nop 1")
        for t in range(2):
            A(f"v_mfma_f32_16x16x16_bf16 {vr(DD[t])}, {vr(PA+2*n,2)}, {vr(PQ+2*t,2)}, 0")
    for t in range(2):
        A(f"v_add_f32 v{DZ[t]}, {EPS:#x}, v{DZ[t]}")
    for t in range(2):
        A(f"v_rcp_f32 v{DZ[t]}, v{DZ[t]}")
    A("v_add_u32 v8, 4096, v9")
    OB = VT + 8
    for t in range(2):
        for r in range(4): A(f"v_mul_f32 v{DA[t]+r}, v{DA[t]+r}, v{DZ[t]}")
    for t in range(2):
        O = OB + 4*t
        A(f"v_cvt_pk_bf16_f32 v{O}, v{DA[t]}, v{DA[t]+1}"); A(f"v_cvt_pk_bf16_f32 v{O+1}, v{DA[t]+2}, v{DA[t]+3}")
    for t in range(2):
        O = OB + 4*t
        for r in range(4): A(f"v_mul_f32 v{DB[t]+r}, v{DB[t]+r}, v{DZ[t]}")
        A(f"v_cvt_pk_bf16_f32 v{O+2}, v{DB[t]}, v{DB[t]+1}"); A(f"v_cvt_pk_bf16_f32 v{O+3}, v{DB[t]+2}, v{DB[t]+3}")
        A(f"buffer_store_dwordx4 {vr(O)}, v{9-t}, s[{sOUT}:{sOUT+3}], 0 offen {spol}")
    if epist: stamp(2)
    if stamps >= 3:
        A("s_waitcnt vmcnt(0)")
        stamp(4)
        A(f"s_cmp_lg_u32 s{sW}, 0"); A("s_cbranch_scc1 L_end")
        A("s_waitcnt lgkmcnt(0)")
        if stamps == 7: A("s_sub_u32 s3, s72, s64"); A("s_lshl_b32 s3, s3, 1"); A("s_sub_u32 s3, 12000, s3")
        if stamps == 3: A("s_sub_u32 s3, s72, s64")
        A("s_min_u32 s3, s3, 50000")
        A("L_spin:")
        A("s_memrealtime s[74:75]"); A("s_waitcnt lgkmcnt(0)")
        A("s_sub_u32 s74, s74, s72"); A("s_cmp_lt_u32 s74, s3"); A("s_cbranch_scc1 L_spin")
    if stamps == 1:
        A("s_waitcnt vmcnt(0)")
        stamp(4)
        A(f"s_cmp_lg_u32 s{sW}, 0"); A("s_cbranch_scc1 L_end")
        A("s_getreg_b32 s3, hwreg(HW_REG_XCC_ID)")
        A("s_waitcnt lgkmcnt(0)")
        A("v_mov_b32 v12, s64"); A("v_mov_b32 v13, s65"); A("v_mov_b32 v14, s72"); A("v_mov_b32 v15, s73")
        A("v_mov_b32 v16, s3"); A("v_mov_b32 v17, 0")
        A("s_sub_u32 s66, s66, s64"); A("s_sub_u32 s68, s68, s64"); A("s_sub_u32 s70, s70, s64")
        A("s_lshl_b32 s68, s68, 16"); A("s_or_b32 s66, s66, s68")
        A("v_mov_b32 v18, s66"); A("v_mov_b32 v19, s70")
        A("s_lshl_b32 s3, s2, 5"); A("v_mov_b32 v11, s3")
        A("s_mov_b64 exec, 1")
        A("global_store_dwordx4 v11, v[12:15], s[14:15]")
        A("global_store_dwordx4 v11, v[16:19], s[14:15] offset:16")
    A("L_end:")
    A("s_endpgm")
    A("L_q:")
    for t in range(2):
        stage1(QR+16*t, 0); stage1(QR+16*t, 2); stage2(Y, nop=True)
        A("s_nop 1")
        chains(isq=True)
        A("s_nop 3")
        diag(isq=True)
        A("s_nop 9")
        phi(PQ+2*t)
    A("s_branch L_qret")
    A("L_codeend:")
    A('.section .rodata,"a"'); A(".p2align 6"); A(f".amdhsa_kernel {KN}")
    A(f"  .amdhsa_next_free_vgpr {NV+40}"); A("  .amdhsa_next_free_sgpr 80"); A(f"  .amdhsa_accum_offset {NV}")
    A("  .amdhsa_group_segment_fixed_size 0"); A("  .amdhsa_kernarg_size 56"); A("  .amdhsa_user_sgpr_count 2")
    A("  .amdhsa_user_sgpr_kernarg_segment_ptr 1"); A("  .amdhsa_system_sgpr_workgroup_id_x 1")
    A("  .amdhsa_float_denorm_mode_32 3")
    A(".end_amdhsa_kernel")
    return "\n".join(L) + "\n"

if __name__ == "__main__":
    name = sys.argv[1]; kw = {}
    for a in sys.argv[2:]:
        k, v = a.split("=")
        kw[k] = v if k in ("sk", "sv") else (int(v) if v.lstrip("-").isdigit() else v.replace("+", " "))
    open(name, "w").write(gen(**kw))
```

```python
import sys, struct, math
KN = "standalone__linear_kernel_rfa__sampling_kernel"

def f2u(x):
    return struct.unpack("<I", struct.pack("<f", x))[0]

HEADER = """; FAVOR+ linear attention (positive random features), one workgroup of 4 waves per (b,h).
"""

def gen(dk=6, dv=6, sk="0", sv="0", fine=0, pol="nt", stamps=0, opol="", qpol="nt", spol="", qit=1, qstag=1,
        align=0, pf=1, st2=0, epist=0):
    nw = 4
    L = []
    A = L.append
    nsteps = 16
    STEPB = 32 * nw * 256
    WSTR = 9 * 576
    PSTR = 17 * 1024
    PBASE = nw * WSTR
    lds = PBASE + nw * PSTR
    scale = 128.0 ** -0.25
    C1 = scale * math.log2(math.e)
    C2 = -1.5
    CF = -0.5 * scale
    EPS = f2u(1e-6)
    sk = str(sk) * 8; sv = str(sv) * 8
    assert dk <= 6 and dv <= 6

    vA, vV0, vP = 10, 11, 38
    OM, ONES, vCF, vC2, PQ = 12, 28, 32, 33, 34
    R, VT, QR = 40, 72, 104
    U, Y = 136, 152
    G, S, PD, P, PV = 168, 172, 176, 180, 184
    NV = 192
    sS, sQ, sO, sOUT = 16, 24, 28, 32
    sVB = 20
    sM = 36
    sSELLO, sSELHI, sC1, sW, sCNT, sQIT = 44, 45, 46, 47, 48, 49
    sOFF0 = 50
    sX1, sX2 = 60, 62
    soffs = {}
    def soff(c):
        hi, lo = c & ~4095, c & 4095
        if hi == 0:
            return "0", lo
        if hi not in soffs:
            soffs[hi] = sOFF0 + len(soffs)
        return f"s{soffs[hi]}", lo
    def vr(b, n=4): return f"v[{b}:{b+n-1}]"
    def ar(b, n=4): return f"a[{b}:{b+n-1}]"
    def off(j8):
        T, j = j8 >> 2, j8 & 3
        return j8 * nw * 1024 if fine else T * nw * 4096 + j * 1024
    for j8 in range(8): soff(off(j8))
    def load(n):
        so, im = soff(off(n))
        A(f"buffer_load_dwordx4 {vr(R+4*n)}, v{vA}, s[{sS}:{sS+3}], {so} offen offset:{im} {pol}")
    def stamp(i):
        if stamps: A(f"s_memrealtime s[{64+2*i}:{65+2*i}]")

    def dppsel(dst, own, other, perm):
        A(f"v_cndmask_b32_dpp v{dst}, v{other}, v{own}, vcc quad_perm:{perm} row_mask:0xf bank_mask:0xf")
    def stage1(X, j):
        A(f"s_mov_b64 vcc, s[{sX1}:{sX1+1}]")
        for dw in range(4): dppsel(U+4*j+dw, X+4*j+dw, X+4*(j+1)+dw, "[1,0,3,2]")
        A("s_not_b64 vcc, vcc")
        for dw in range(4): dppsel(U+4*(j+1)+dw, X+4*(j+1)+dw, X+4*j+dw, "[1,0,3,2]")
    def stage2(dst, nop=False):
        if nop: A("s_nop 0")
        A(f"s_mov_b64 vcc, s[{sX2}:{sX2+1}]")
        for j in (0, 1):
            for dw in range(4): dppsel(dst+4*j+dw, U+4*j+dw, U+4*(j+2)+dw, "[2,3,0,1]")
        A("s_not_b64 vcc, vcc")
        for j in (0, 1):
            for dw in range(4): dppsel(dst+4*(j+2)+dw, U+4*(j+2)+dw, U+4*j+dw, "[2,3,0,1]")
    def chains(isq=False):
        for jj in range(4):
            k = Y + 4*jj
            A(f"v_mfma_f32_16x16x32_bf16 {vr(G)}, {vr(k)}, {vr(k)}, {'0' if jj==0 else vr(G)}")
        for jj in range(4):
            k = Y + 4*jj
            a, b = (OM+4*jj, k) if isq else (k, OM+4*jj)
            A(f"v_mfma_f32_16x16x32_bf16 {vr(S)}, {vr(a)}, {vr(b)}, {'0' if jj==0 else vr(S)}")
    def diag(isq=False):
        A(f"v_cndmask_b32 v{PD}, 0, v{G}, s[{sM}:{sM+1}]")
        for r in range(1, 4):
            A(f"v_cndmask_b32 v{PD}, v{PD}, v{G+r}, s[{sM+2*r}:{sM+2*r+1}]")
        A("s_nop 1")
        a, b = (vCF, PD) if isq else (PD, vCF)
        A(f"v_mfma_f32_16x16x4_f32 {vr(S)}, v{a}, v{b}, {vr(S)}")
    def phi(dst):
        for r in range(4): A(f"v_fma_f32 v{S+r}, v{S+r}, s{sC1}, v{vC2}")
        for r in range(4): A(f"v_exp_f32 v{S+r}, v{S+r}")
        for r in range(4): A(f"v_add_f32 v{S+r}, {EPS:#x}, v{S+r}")
        A(f"v_cvt_pk_bf16_f32 v{dst}, v{S}, v{S+1}")
        A(f"v_cvt_pk_bf16_f32 v{dst+1}, v{S+2}, v{S+3}")
    def vmfma(i):
        A(f"v_mfma_f32_16x16x32_bf16 {ar(4*i)}, {vr(PV)}, {vr(VT+4*i)}, {ar(4*i)}")
    def perms(jp, mf=False):
        a, b = R + 8*jp, R + 8*jp + 4
        for i in range(8):
            A(f"v_perm_b32 v{VT+4*i+jp}, v{b+(i>>1)}, v{a+(i>>1)}, s{sSELHI if i&1 else sSELLO}")
            if mf and i >= 2: vmfma(i-2)
        if mf:
            vmfma(6); vmfma(7)
    def pstore():
        A(f"ds_write_b128 v{vP}, {vr(P)}")
        A(f"v_add_u32 v{vP}, 1024, v{vP}")

    A(HEADER + f"; @launch grid=(256,1,1) block=({nw*64},1,1) lds={lds}")
    A('.amdgcn_target "amdgcn-amd-amdhsa--gfx950"')
    A(".text"); A(f".globl {KN}"); A(".p2align 8"); A(f".type {KN},@function"); A(f"{KN}:")
    stamp(0)
    A("s_cmp_ge_u32 s2, 256"); A("s_cbranch_scc1 L_end")
    A("s_load_dwordx8 s[4:11], s[0:1], 0         ; q k v omega")
    if pf:
        A("s_getpc_b64 s[76:77]")
        A("L_pc:")
        A(f"v_lshlrev_b32 v3, {7 if pf == 1 else 6}, v0")
        A("v_min_u32 v3, L_codeend-L_pc-4, v3")
        A(f"global_load_dword v{PD}, v3, s[76:77]")
    A("s_load_dwordx2 s[12:13], s[0:1], 32       ; out")
    if stamps:
        A(f"s_load_dwordx2 s[14:15], s[0:1], {48 if stamps==1 else 40}")
    A("v_lshrrev_b32 v1, 6, v0            ; wave")
    A("v_and_b32 v2, 63, v0               ; lane")
    A("v_lshrrev_b32 v4, 4, v2            ; g = l>>4")
    A("v_bfe_u32 v6, v2, 2, 2             ; a = l3l2")
    A(f"v_readfirstlane_b32 s{sW}, v1")
    wsh = 10 if fine else 12
    A("v_and_b32 v5, 3, v2"); A("v_lshlrev_b32 v5, 4, v5"); A("v_lshl_add_u32 v5, v4, 6, v5")
    A(f"v_lshl_add_u32 v{vA}, v6, 8, v5")
    A(f"v_lshl_add_u32 v{vA}, v1, {wsh}, v{vA}")
    A("v_and_b32 v7, 1, v6"); A("v_lshl_add_u32 v7, v7, 10, v5")
    A("v_lshl_add_u32 v8, v6, 10, v5")
    for hi, s in soffs.items():
        A(f"s_mov_b32 s{s}, {hi}")
    A("s_lshl_b32 s3, s2, 19")
    A(f"s_mov_b32 s{sS+2}, 524288"); A(f"s_mov_b32 s{sS+3}, 0x20000")
    A(f"s_mov_b32 s{sO+2}, 2048"); A(f"s_mov_b32 s{sO+3}, 0x20000")
    A(f"s_mov_b32 s{sQ+2}, 8192"); A(f"s_mov_b32 s{sQ+3}, 0x20000")
    A("s_waitcnt lgkmcnt(0)")
    if not epist: stamp(1)
    if stamps in (8, 9):
        A("s_not_b32 s78, s64"); A("v_mov_b32 v38, s78" if False else "v_mov_b32 v39, s78"); A("v_mov_b32 v3, 0")
        A(f"s_cmp_lg_u32 s{sW}, 0"); A("s_cbranch_scc1 L_nopub")
        A("s_mov_b64 exec, 1"); A("global_atomic_umax v3, v39, s[14:15] sc1"); A("s_mov_b64 exec, -1")
        A("L_nopub:")
    A(f"s_mov_b32 s{sO}, s10"); A(f"s_mov_b32 s{sO+1}, s11")
    A(f"s_add_u32 s{sS}, s6, s3"); A(f"s_addc_u32 s{sS+1}, s7, 0")
    for j in range(4):
        A(f"buffer_load_dwordx4 {vr(Y+4*j)}, v7, s[{sO}:{sO+3}], 0 offen offset:{j*256} {opol}")
    for n in range(dk): load(n)
    A(f"s_add_u32 s{sVB}, s8, s3"); A(f"s_addc_u32 s{sVB+1}, s9, 0")
    A("s_lshl_b32 s3, s2, 13")
    A(f"s_add_u32 s{sQ}, s4, s3"); A(f"s_addc_u32 s{sQ+1}, s5, 0")
    A("v_add_u32 v9, 4096, v8")
    for t in range(2):
        for j in range(4):
            A(f"buffer_load_dwordx4 {vr(QR+16*t+4*j)}, v{8+t}, s[{sQ}:{sQ+3}], 0 offen offset:{j*256} {qpol}")
    A(f"s_add_u32 s{sOUT}, s12, s3"); A(f"s_addc_u32 s{sOUT+1}, s13, 0")
    A(f"s_mov_b32 s{sOUT+2}, 8192"); A(f"s_mov_b32 s{sOUT+3}, 0x20000")
    for r in range(4):
        A(f"s_mov_b32 s{sM+2*r}, {(1<<r)|(1<<(20+r))}"); A(f"s_mov_b32 s{sM+2*r+1}, {(1<<(8+r))|(1<<(28+r))}")
    A(f"s_mov_b32 s{sSELLO}, 0x05040100"); A(f"s_mov_b32 s{sSELHI}, 0x07060302")
    A(f"s_mov_b32 s{sC1}, {f2u(C1):#x}")
    A(f"s_mov_b32 s{sX1}, 0x55555555"); A(f"s_mov_b32 s{sX1+1}, 0x55555555")
    A(f"s_mov_b32 s{sX2}, 0x33333333"); A(f"s_mov_b32 s{sX2+1}, 0x33333333")
    A(f"v_mov_b32 v{vCF}, {f2u(CF):#x}"); A(f"v_mov_b32 v{vC2}, {f2u(C2):#x}")
    for r in range(4): A(f"v_mov_b32 v{ONES+r}, 0x3f803f80")
    for r in range(36): A(f"v_accvgpr_write_b32 a{r}, 0")
    if qstag:
        A(f"s_sub_u32 s{sQIT}, {nsteps-qit}, s{sW}")
    else:
        A(f"s_mov_b32 s{sQIT}, {nsteps-qit}")
    A(f"s_mov_b32 s{sCNT}, {nsteps}")
    A(f"v_lshlrev_b32 v5, 4, v2")
    A(f"v_lshl_add_u32 v{vV0}, v1, {wsh}, v5")
    A(f"s_mul_i32 s3, s{sW}, {PSTR}"); A(f"s_add_u32 s3, s3, {PBASE}")
    A(f"v_add_u32 v{vP}, s3, v5")
    A("v_and_b32 v3, 15, v2               ; l&15")
    A(f"s_mul_i32 s3, s{sW}, {WSTR}")
    A("v_add_u32 v5, s3, v5")
    A("v_and_b32 v7, 3, v2"); A("v_mul_u32_u24 v7, 576, v7")
    A("v_lshl_add_u32 v6, v6, 4, v7")
    A("v_and_b32 v7, 1, v4"); A("v_lshl_add_u32 v6, v7, 8, v6")
    A("v_lshrrev_b32 v8, 1, v4"); A(f"v_mul_u32_u24 v8, {2*WSTR}, v8")
    A("v_add_u32 v6, v6, v8")
    A("v_lshl_add_u32 v7, v7, 8, v8")
    A(f"s_lshl_b32 s3, s{sW}, 6"); A("v_add_u32 v6, s3, v6")
    A("v_lshlrev_b32 v9, 8, v3"); A("v_lshl_add_u32 v9, v4, 4, v9"); A("v_add_u32 v9, s3, v9")
    A(f"s_waitcnt vmcnt({dk+8})")
    if not st2 and not epist: stamp(2)
    stage1(Y, 0); stage1(Y, 2); stage2(OM, nop=True)

    if align: A(f".p2align {align}")
    A("L_kloop:")
    for r in range(8):
        x = dk - 1
        if sk[r] == "1": x -= 1
        A(f"s_waitcnt vmcnt({x})")
        if r == 8 - dk:
            A(f"v_add_u32 v{vA}, {STEPB}, v{vA}")
            A(f"s_cmp_lg_u32 s{sCNT}, 1"); A("s_cbranch_scc1 L_nosw")
            A(f"s_mov_b32 s{sS}, s{sVB}"); A(f"s_mov_b32 s{sS+1}, s{sVB+1}"); A(f"v_mov_b32 v{vA}, v{vV0}")
            A("L_nosw:")
        load((r + dk) & 7)
        if r == 0: stage2(Y)
        if r == 1: chains(); stage1(R, 0)
        if r == 2: diag()
        if r == 3: stage1(R, 2); phi(P+2)
        if r == 4: pstore(); stage2(Y)
        if r == 5: chains(); stage1(R+16, 0)
        if r == 6: diag()
        if r == 7: stage1(R+16, 2); phi(P)
    if st2 and st2 <= 16:
        A(f"s_cmp_lg_u32 s{sCNT}, {nsteps + 1 - st2}"); A("s_cbranch_scc1 L_nost"); stamp(2); A("L_nost:")
    A(f"s_sub_u32 s{sCNT}, s{sCNT}, 1"); A(f"s_cmp_lg_u32 s{sCNT}, 0"); A("s_cbranch_scc1 L_kloop")

    def vstep(first):
        issued = dk if first else dv
        for r in range(8):
            n = r + dv
            x = min(dv - 1 - (sv[r] == "1"), issued - r - 1) if issued <= n else issued - r - 1
            A(f"s_waitcnt vmcnt({x})")
            if r == 8 - dv: A(f"v_add_u32 v{vA}, {STEPB}, v{vA}")
            did = False
            while issued <= n:
                assert issued < 8 or r >= 8 - dv
                load(issued & 7); issued += 1; did = True
            if not did: A("s_nop 0")
            if first:
                if r == 0: stage2(Y)
                if r == 1: chains()
                if r == 2: diag()
                if r == 3: perms(1); phi(P+2)
                if r == 4: pstore(); A(f"v_subrev_u32 v{vP}, {16*1024}, v{vP}")
                if r == 5: A(f"ds_read_b128 {vr(PV)}, v{vP}"); A(f"v_add_u32 v{vP}, 1024, v{vP}")
            else:
                if r == 2: A(f"ds_read_b128 {vr(PV)}, v{vP}"); A(f"v_add_u32 v{vP}, 1024, v{vP}")
                if r == 3: perms(1)
                if r == 4:
                    A(f"s_cmp_eq_u32 s{sCNT}, s{sQIT}"); A("s_cbranch_scc1 L_q"); A("L_qret:")
            if r == 1: perms(0)
            if r == 5: perms(2)
            if r == 6:
                A("s_waitcnt lgkmcnt(0)")
                A(f"v_mfma_f32_16x16x32_bf16 {ar(32)}, {vr(PV)}, {vr(ONES)}, {ar(32)}")
            if r == 7: perms(3, mf=True)
    vstep(True)
    A(f"s_mov_b32 s{sCNT}, {nsteps-1}")
    if align: A(f".p2align {align}")
    A("L_vloop:")
    vstep(False)
    if st2 > 16:
        A(f"s_cmp_lg_u32 s{sCNT}, {33 - st2}"); A("s_cbranch_scc1 L_nost"); stamp(2); A("L_nost:")
    A(f"s_sub_u32 s{sCNT}, s{sCNT}, 1"); A(f"s_cmp_lg_u32 s{sCNT}, 0"); A("s_cbranch_scc1 L_vloop")
    stamp(3)
    A("s_mov_b32 exec_hi, 0")
    A(f"ds_write_b128 v5, {ar(32)} offset:{8*576}")
    for i in range(8):
        A(f"ds_write_b128 v5, {ar(4*i)} offset:{i*576}")
    A("s_mov_b32 exec_hi, -1")
    A("s_waitcnt lgkmcnt(0)")
    A("s_barrier")
    if epist: stamp(1)
    nr = 2
    RA, RB, RZ = QR, QR + 8, QR + 16
    for x in range(nr): A(f"ds_read_b128 {vr(RZ+4*x)}, v7 offset:{x*WSTR + 8*576}")
    for x in range(nr): A(f"ds_read_b128 {vr(RA+4*x)}, v6 offset:{x*WSTR}")
    for x in range(nr): A(f"ds_read_b128 {vr(RB+4*x)}, v6 offset:{x*WSTR + 4*576}")
    PA = VT
    DZ = [U, U+12]; DA = [U+4, U+16]; DB = [U+8, U+20]
    for n, (RR, DD) in enumerate(((RZ, DZ), (RA, DA), (RB, DB))):
        A(f"s_waitcnt lgkmcnt({(2-n)*nr})")
        for r in range(4): A(f"v_add_f32 v{RR+r}, v{RR+r}, v{RR+4+r}")
        A(f"v_cvt_pk_bf16_f32 v{PA+2*n}, v{RR}, v{RR+1}")
        A(f"v_cvt_pk_bf16_f32 v{PA+2*n+1}, v{RR+2}, v{RR+3}")
        A("s_nop 1")
        for t in range(2):
            A(f"v_mfma_f32_16x16x16_bf16 {vr(DD[t])}, {vr(PA+2*n,2)}, {vr(PQ+2*t,2)}, 0")
    for t in range(2):
        A(f"v_add_f32 v{DZ[t]}, {EPS:#x}, v{DZ[t]}")
    for t in range(2):
        A(f"v_rcp_f32 v{DZ[t]}, v{DZ[t]}")
    A("v_add_u32 v8, 4096, v9")
    OB = VT + 8
    for t in range(2):
        for r in range(4): A(f"v_mul_f32 v{DA[t]+r}, v{DA[t]+r}, v{DZ[t]}")
    for t in range(2):
        O = OB + 4*t
        A(f"v_cvt_pk_bf16_f32 v{O}, v{DA[t]}, v{DA[t]+1}"); A(f"v_cvt_pk_bf16_f32 v{O+1}, v{DA[t]+2}, v{DA[t]+3}")
    for t in range(2):
        O = OB + 4*t
        for r in range(4): A(f"v_mul_f32 v{DB[t]+r}, v{DB[t]+r}, v{DZ[t]}")
        A(f"v_cvt_pk_bf16_f32 v{O+2}, v{DB[t]}, v{DB[t]+1}"); A(f"v_cvt_pk_bf16_f32 v{O+3}, v{DB[t]+2}, v{DB[t]+3}")
        A(f"buffer_store_dwordx4 {vr(O)}, v{9-t}, s[{sOUT}:{sOUT+3}], 0 offen {spol}")
    if epist: stamp(2)
    if stamps >= 3:
        A("s_waitcnt vmcnt(0)")
        stamp(4)
        A(f"s_cmp_lg_u32 s{sW}, 0"); A("s_cbranch_scc1 L_end")
        A("s_waitcnt lgkmcnt(0)")
        if stamps == 7: A("s_sub_u32 s3, s72, s64"); A("s_lshl_b32 s3, s3, 1"); A("s_sub_u32 s3, 12000, s3")
        if stamps in (8, 9):
            A("v_mov_b32 v3, 0"); A("global_load_dword v39, v3, s[14:15] sc0 sc1"); A("s_waitcnt vmcnt(0)")
            A("v_readfirstlane_b32 s78, v39"); A("s_nop 3"); A("s_not_b32 s78, s78")
            if stamps == 8: A("s_sub_u32 s3, s72, s78")
            if stamps == 9: A("s_sub_u32 s3, s64, s78"); A("s_mul_i32 s3, s3, 10")
        if stamps == 3: A("s_sub_u32 s3, s72, s64")
        A("s_min_u32 s3, s3, 50000")
        A("L_spin:")
        A("s_memrealtime s[74:75]"); A("s_waitcnt lgkmcnt(0)")
        A("s_sub_u32 s74, s74, s72"); A("s_cmp_lt_u32 s74, s3"); A("s_cbranch_scc1 L_spin")
    if stamps == 1:
        A("s_waitcnt vmcnt(0)")
        stamp(4)
        A(f"s_cmp_lg_u32 s{sW}, 0"); A("s_cbranch_scc1 L_end")
        A("s_getreg_b32 s3, hwreg(HW_REG_XCC_ID)")
        A("s_waitcnt lgkmcnt(0)")
        A("v_mov_b32 v12, s64"); A("v_mov_b32 v13, s65"); A("v_mov_b32 v14, s72"); A("v_mov_b32 v15, s73")
        A("v_mov_b32 v16, s3"); A("v_mov_b32 v17, 0")
        A("s_sub_u32 s66, s66, s64"); A("s_sub_u32 s68, s68, s64"); A("s_sub_u32 s70, s70, s64")
        A("s_lshl_b32 s68, s68, 16"); A("s_or_b32 s66, s66, s68")
        A("v_mov_b32 v18, s66"); A("v_mov_b32 v19, s70")
        A("s_lshl_b32 s3, s2, 5"); A("v_mov_b32 v11, s3")
        A("s_mov_b64 exec, 1")
        A("global_store_dwordx4 v11, v[12:15], s[14:15]")
        A("global_store_dwordx4 v11, v[16:19], s[14:15] offset:16")
    A("L_end:")
    A("s_endpgm")
    A("L_q:")
    for t in range(2):
        stage1(QR+16*t, 0); stage1(QR+16*t, 2); stage2(Y, nop=True)
        A("s_nop 1")
        chains(isq=True)
        A("s_nop 3")
        diag(isq=True)
        A("s_nop 9")
        phi(PQ+2*t)
    A("s_branch L_qret")
    A("L_codeend:")
    A('.section .rodata,"a"'); A(".p2align 6"); A(f".amdhsa_kernel {KN}")
    A(f"  .amdhsa_next_free_vgpr {NV+40}"); A("  .amdhsa_next_free_sgpr 80"); A(f"  .amdhsa_accum_offset {NV}")
    A("  .amdhsa_group_segment_fixed_size 0"); A("  .amdhsa_kernarg_size 56"); A("  .amdhsa_user_sgpr_count 2")
    A("  .amdhsa_user_sgpr_kernarg_segment_ptr 1"); A("  .amdhsa_system_sgpr_workgroup_id_x 1")
    A("  .amdhsa_float_denorm_mode_32 3")
    A(".end_amdhsa_kernel")
    return "\n".join(L) + "\n"

if __name__ == "__main__":
    name = sys.argv[1]; kw = {}
    for a in sys.argv[2:]:
        k, v = a.split("=")
        kw[k] = v if k in ("sk", "sv") else (int(v) if v.lstrip("-").isdigit() else v.replace("+", " "))
    open(name, "w").write(gen(**kw))
```

```python
import sys, struct, math
KN = "standalone__linear_kernel_rfa__sampling_kernel"

def f2u(x):
    return struct.unpack("<I", struct.pack("<f", x))[0]

HEADER = """; FAVOR+ linear attention (positive random features), one workgroup of 4 waves per (b,h).
"""

def gen(dk=6, dv=5, sk="0", sv="0", pol="nt", stamps=0, opol="", qpol="nt", spol="", qit=1, qstag=1,
        align=0, pf=1, st2=0, st1=0, epist=0, lpol=None, kfirst=0, prost=0, rw=0, spread=1):
    nw = 4
    L = []
    A = L.append
    nsteps = 16
    STEPB = 32 * nw * 256
    ISTR = 544
    WSTR = 9 * ISTR
    PSTR = 17 * 1024
    PBASE = nw * WSTR
    RSTR = 272
    OBASE = PBASE + nw * PSTR
    QBASE = OBASE + 8 * RSTR
    lds = QBASE + 32 * RSTR
    scale = 128.0 ** -0.25
    C1 = scale * math.log2(math.e)
    C2 = -1.5
    CF = -0.5 * scale
    EPS = f2u(1e-6)
    sk = str(sk) * 8; sv = str(sv) * 8
    if lpol is None: lpol = pol
    assert dk <= 6 and dv <= 6

    vA, vV0, vP, vL = 10, 11, 38, 39
    OM, ONES, vCF, vC2 = 12, 28, 32, 33
    WQ = 34
    R, VT = 40, 72
    U, Y = 104, 120
    G, S, PD, P, PV = 136, 140, 144, 148, 152
    FQ = 156
    PL = 164
    E = 180
    vQR, vPL = 188, 189
    ACC = 192
    NV = 228
    sS, sQ, sO, sOUT = 16, 24, 28, 32
    sVB = 20
    sM = 36
    sSELLO, sSELHI, sC1, sW, sCNT, sQIT = 44, 45, 46, 47, 48, 49
    sOFF0 = 50
    sX1, sX2 = 60, 62
    soffs = {}
    def soff(c):
        hi, lo = c & ~4095, c & 4095
        if hi == 0:
            return "0", lo
        if hi not in soffs:
            soffs[hi] = sOFF0 + len(soffs)
        return f"s{soffs[hi]}", lo
    def vr(b, n=4): return f"v[{b}:{b+n-1}]"
    def off(j8): return (j8 >> 2) * nw * 4096 + (j8 & 3) * 1024
    def loff(u, r): return ((u >> 1) + 4 * (u & 1)) * 4096 + r * 1024
    for j8 in range(8): soff(off(j8))
    for u in range(8): soff(loff(u, 0))
    def load(n):
        so, im = soff(off(n))
        A(f"buffer_load_dwordx4 {vr(R+4*n)}, v{vA}, s[{sS}:{sS+3}], {so} offen offset:{im} {pol}")
    def lload(u):
        for r in range(4):
            so, im = soff(loff(u, r))
            A(f"buffer_load_dword v{R+4*u+r}, v{vL}, s[{sS}:{sS+3}], {so} offen offset:{im} {lpol}")
    def stamp(i):
        if stamps: A(f"s_memrealtime s[{64+2*i}:{65+2*i}]")

    def dppsel(dst, own, other, perm):
        A(f"v_cndmask_b32_dpp v{dst}, v{other}, v{own}, vcc quad_perm:{perm} row_mask:0xf bank_mask:0xf")
    def stage1(X, j):
        A(f"s_mov_b64 vcc, s[{sX1}:{sX1+1}]")
        for dw in range(4): dppsel(U+4*j+dw, X+4*j+dw, X+4*(j+1)+dw, "[1,0,3,2]")
        A("s_not_b64 vcc, vcc")
        for dw in range(4): dppsel(U+4*(j+1)+dw, X+4*(j+1)+dw, X+4*j+dw, "[1,0,3,2]")
    def stage2(dst):
        A(f"s_mov_b64 vcc, s[{sX2}:{sX2+1}]")
        for j in (0, 1):
            for dw in range(4): dppsel(dst+4*j+dw, U+4*j+dw, U+4*(j+2)+dw, "[2,3,0,1]")
        A("s_not_b64 vcc, vcc")
        for j in (0, 1):
            for dw in range(4): dppsel(dst+4*(j+2)+dw, U+4*(j+2)+dw, U+4*j+dw, "[2,3,0,1]")
    def chains(isq=False, X=Y):
        for jj in range(4):
            k = X + 4*jj
            A(f"v_mfma_f32_16x16x32_bf16 {vr(G)}, {vr(k)}, {vr(k)}, {'0' if jj==0 else vr(G)}")
        for jj in range(4):
            k = X + 4*jj
            a, b = (OM+4*jj, k) if isq else (k, OM+4*jj)
            A(f"v_mfma_f32_16x16x32_bf16 {vr(S)}, {vr(a)}, {vr(b)}, {'0' if jj==0 else vr(S)}")
    def diag(isq=False):
        A(f"v_cndmask_b32 v{PD}, 0, v{G}, s[{sM}:{sM+1}]")
        for r in range(1, 4):
            A(f"v_cndmask_b32 v{PD}, v{PD}, v{G+r}, s[{sM+2*r}:{sM+2*r+1}]")
        A("s_nop 1")
        a, b = (vCF, PD) if isq else (PD, vCF)
        A(f"v_mfma_f32_16x16x4_f32 {vr(S)}, v{a}, v{b}, {vr(S)}")
    def phi(dst, f32=False):
        for r in range(4): A(f"v_fma_f32 v{S+r}, v{S+r}, s{sC1}, v{vC2}")
        for r in range(4): A(f"v_exp_f32 v{S+r}, v{S+r}")
        if f32:
            for r in range(4): A(f"v_add_f32 v{dst+r}, {EPS:#x}, v{S+r}")
            return
        for r in range(4): A(f"v_add_f32 v{S+r}, {EPS:#x}, v{S+r}")
        A(f"v_cvt_pk_bf16_f32 v{dst}, v{S}, v{S+1}")
        A(f"v_cvt_pk_bf16_f32 v{dst+1}, v{S+2}, v{S+3}")
    def vmfma(i):
        A(f"v_mfma_f32_16x16x32_bf16 {vr(ACC+4*i)}, {vr(PV)}, {vr(VT+4*i)}, {vr(ACC+4*i)}")
    def zmfma(src):
        A(f"v_mfma_f32_16x16x32_bf16 {vr(ACC+32)}, {vr(src)}, {vr(ONES)}, {vr(ACC+32)}")
    def perm(dst, a, b, hi):
        A(f"v_perm_b32 v{dst}, v{b}, v{a}, s{sSELHI if hi else sSELLO}")
    def perms(jp, mf=False):
        a, b = R + 8*jp, R + 8*jp + 4
        for i in range(8):
            perm(VT+4*i+jp, a+(i>>1), b+(i>>1), i & 1)
            if mf and i >= 2: vmfma(i-2)
        if mf:
            vmfma(6); vmfma(7)
    def pstore():
        A(f"ds_write_b128 v{vP}, {vr(P)}")
        A(f"v_add_u32 v{vP}, 1024, v{vP}")
    def pread():
        A(f"ds_read_b128 {vr(PV)}, v{vP}"); A(f"v_add_u32 v{vP}, 1024, v{vP}")

    A(HEADER + f"; @launch grid=(256,1,1) block=({nw*64},1,1) lds={lds}")
    A('.amdgcn_target "amdgcn-amd-amdhsa--gfx950"')
    A(".text"); A(f".globl {KN}"); A(".p2align 8"); A(f".type {KN},@function"); A(f"{KN}:")
    stamp(0)
    A("s_cmp_ge_u32 s2, 256"); A("s_cbranch_scc1 L_end")
    A("s_load_dwordx8 s[4:11], s[0:1], 0         ; q k v omega")
    if pf:
        A("s_getpc_b64 s[76:77]")
        A("L_pc:")
        A(f"v_lshlrev_b32 v3, {7 if pf == 1 else 6}, v0")
        A("v_min_u32 v3, L_codeend-L_pc-4, v3")
        A(f"global_load_dword v{PD}, v3, s[76:77]")
    A("s_load_dwordx2 s[12:13], s[0:1], 32       ; out")
    if stamps:
        A(f"s_load_dwordx2 s[14:15], s[0:1], {48 if stamps==1 else 40}")
    A("v_lshrrev_b32 v1, 6, v0            ; wave")
    A("v_and_b32 v2, 63, v0               ; lane")
    A("v_lshrrev_b32 v4, 4, v2            ; g = l>>4")
    A("v_bfe_u32 v6, v2, 2, 2             ; a = l3l2")
    A(f"v_readfirstlane_b32 s{sW}, v1")
    A("v_and_b32 v5, 3, v2"); A("v_lshlrev_b32 v5, 4, v5"); A("v_lshl_add_u32 v5, v4, 6, v5")
    A(f"v_lshl_add_u32 v{vA}, v6, 8, v5")
    A(f"v_lshl_add_u32 v{vA}, v1, 12, v{vA}")
    A("v_lshlrev_b32 v5, 4, v2            ; lane*16")
    A("v_and_b32 v7, 0x7f, v0"); A("v_lshlrev_b32 v7, 4, v7")
    A("v_lshl_add_u32 v8, v1, 11, v5      ; q offset")
    for hi, s in soffs.items():
        A(f"s_mov_b32 s{s}, {hi}")
    A("s_lshl_b32 s3, s2, 19")
    A("s_lshl_b32 s22, s2, 13")
    A(f"s_mov_b32 s{sS+2}, 524288"); A(f"s_mov_b32 s{sS+3}, 0x20000")
    A(f"s_mov_b32 s{sO+2}, 2048"); A(f"s_mov_b32 s{sO+3}, 0x20000")
    A(f"s_mov_b32 s{sQ+2}, 8192"); A(f"s_mov_b32 s{sQ+3}, 0x20000")
    A("s_waitcnt lgkmcnt(0)")
    if not epist and not st1 and not prost: stamp(1)
    A(f"s_mov_b32 s{sO}, s10"); A(f"s_mov_b32 s{sO+1}, s11")
    lds_ = []
    def grab(fn):
        n0 = len(L); fn(); out = L[n0:]; del L[n0:]; return out
    ld_lines = []
    ld_lines += [f"buffer_load_dwordx4 {vr(VT)}, v7, s[{sO}:{sO+3}], 0 offen {opol}"]
    for j in range(2):
        ld_lines += [f"buffer_load_dwordx4 {vr(VT+4+4*j)}, v8, s[{sQ}:{sQ+3}], 0 offen offset:{j*1024} {qpol}"]
    for n in range(dk): ld_lines += grab(lambda: load(n))
    def setup():
        A(f"s_add_u32 s{sQ}, s4, s22"); A(f"s_addc_u32 s{sQ+1}, s5, 0")
        A(f"s_add_u32 s{sS}, s6, s3"); A(f"s_addc_u32 s{sS+1}, s7, 0")
        A(f"s_add_u32 s{sVB}, s8, s3"); A(f"s_addc_u32 s{sVB+1}, s9, 0")
        A(f"s_add_u32 s{sOUT}, s12, s22"); A(f"s_addc_u32 s{sOUT+1}, s13, 0")
        A(f"s_mov_b32 s{sOUT+2}, 8192"); A(f"s_mov_b32 s{sOUT+3}, 0x20000")
        A("v_and_b32 v3, 15, v2               ; n = l&15")
        A(f"v_bfe_u32 v{G}, v0, 4, 3"); A(f"v_mul_u32_u24 v{G}, {RSTR}, v{G}"); A(f"v_lshl_add_u32 v{G}, v3, 4, v{G}")
        A(f"v_lshl_add_u32 v{G+1}, v1, 3, v4"); A(f"v_mul_u32_u24 v{G+1}, {RSTR}, v{G+1}"); A(f"v_lshl_add_u32 v{G+1}, v3, 4, v{G+1}")
        A("v_and_b32 v9, 7, v2"); A(f"v_mul_u32_u24 v9, {RSTR}, v9"); A("v_lshl_add_u32 v9, v4, 6, v9")
        A(f"v_mul_u32_u24 v{vQR}, {RSTR}, v3"); A(f"v_lshl_add_u32 v{vQR}, v4, 6, v{vQR}")
        A(f"v_add_u32 v{vQR}, {QBASE}, v{vQR}")
        A(f"v_add_u32 v{G}, {OBASE}, v{G}"); A(f"v_add_u32 v{G+1}, {QBASE}, v{G+1}"); A(f"v_add_u32 v9, {OBASE}, v9")
        for r in range(4):
            A(f"s_mov_b32 s{sM+2*r}, {(1<<r)|(1<<(20+r))}"); A(f"s_mov_b32 s{sM+2*r+1}, {(1<<(8+r))|(1<<(28+r))}")
        A(f"s_mov_b32 s{sSELLO}, 0x05040100"); A(f"s_mov_b32 s{sSELHI}, 0x07060302")
        A(f"s_mov_b32 s{sC1}, {f2u(C1):#x}")
        A(f"s_mov_b32 s{sX1}, 0x55555555"); A(f"s_mov_b32 s{sX1+1}, 0x55555555")
        A(f"s_mov_b32 s{sX2}, 0x33333333"); A(f"s_mov_b32 s{sX2+1}, 0x33333333")
        A(f"v_mov_b32 v{vCF}, {f2u(CF):#x}"); A(f"v_mov_b32 v{vC2}, {f2u(C2):#x}")
        for r in range(4): A(f"v_mov_b32 v{ONES+r}, 0x3f803f80")
        for r in range(36): A(f"v_mov_b32 v{ACC+r}, 0")
        if qstag:
            A(f"s_sub_u32 s{sQIT}, {nsteps-2-qit}, s{sW}")
        else:
            A(f"s_mov_b32 s{sQIT}, {nsteps-2-qit}")
        A(f"s_mov_b32 s{sCNT}, {nsteps}")
        A(f"v_lshl_add_u32 v{vV0}, v1, 12, v5")
        A(f"s_mul_i32 s3, s{sW}, {PSTR}"); A(f"s_add_u32 s3, s3, {PBASE}")
        A(f"v_add_u32 v{vP}, s3, v5")
        A(f"v_add_u32 v{vPL}, {PBASE + 16*1024}, v5")
        A(f"v_lshlrev_b32 v{vL}, 8, v4"); A(f"v_lshl_add_u32 v{vL}, v1, 6, v{vL}"); A(f"v_lshl_add_u32 v{vL}, v3, 2, v{vL}")
        A(f"v_add_u32 v{vL}, {15*STEPB}, v{vL}")
    su = grab(setup)
    if spread:
        gaps = len(ld_lines) - 1
        per = -(-len(su) // gaps) if spread == 1 else spread
        for k, ld in enumerate(ld_lines):
            A(ld)
            take = su[:max(per, 4 if k == 0 else 0)]; su = su[len(take):]
            for x in take: A(x)
        for x in su: A(x)
    else:
        for x in su[:4]: A(x)
        for ld in ld_lines: A(ld)
        for x in su[4:]: A(x)
    if prost == 1: stamp(1)
    A(f"s_waitcnt vmcnt({dk})")
    if prost == 1: stamp(2)
    if prost == 2: stamp(1)
    if not st2 and not epist and not prost: stamp(2)
    A(f"ds_write_b128 v{G}, {vr(VT)}")
    A(f"ds_write_b128 v{G+1}, {vr(VT+4)}")
    A(f"ds_write_b128 v{G+1}, {vr(VT+8)} offset:{4*RSTR}")
    A(f"s_mul_i32 s3, s{sW}, {WSTR}")
    A("v_add_u32 v5, s3, v5")
    A("v_and_b32 v7, 3, v2"); A(f"v_mul_u32_u24 v7, {2*ISTR}, v7")
    A("v_lshl_add_u32 v6, v6, 4, v7")
    A("v_and_b32 v7, 1, v4"); A("v_lshlrev_b32 v7, 8, v7"); A("v_add_u32 v6, v6, v7")
    A(f"s_lshl_b32 s3, s{sW}, 6"); A("v_add_u32 v6, s3, v6")
    A("v_lshlrev_b32 v8, 8, v3"); A("v_lshl_add_u32 v8, v4, 4, v8"); A("v_add_u32 v8, s3, v8")
    A("s_waitcnt lgkmcnt(0)")
    if prost == 2: stamp(2)
    A("s_barrier")
    for jj in range(4):
        A(f"ds_read_b128 {vr(OM+4*jj)}, v9 offset:{jj*16}")
    A("v_add_u32 v9, 4096, v8")
    if st1: stamp(1)

    if align: A(f".p2align {align}")
    A("L_kloop:")
    for r in range(8):
        x = dk - 1
        if sk[r] == "1": x -= 1
        A(f"s_waitcnt vmcnt({x})" + (" lgkmcnt(0)" if r == 5 else ""))
        if r == 8 - dk:
            A(f"v_add_u32 v{vA}, {STEPB}, v{vA}")
            A(f"s_cmp_lg_u32 s{sCNT}, 1"); A("s_cbranch_scc1 L_nosw")
            A(f"s_mov_b32 s{sS}, s{sVB}"); A(f"s_mov_b32 s{sS+1}, s{sVB+1}"); A(f"v_mov_b32 v{vA}, v{vV0}")
            A("L_nosw:")
        load((r + dk) & 7)
        if r == 0: stage2(Y)
        if r == 1: chains(); stage1(R, 0)
        if r == 2: diag()
        if r == 3: stage1(R, 2); phi(P+2)
        if r == 4: pstore(); stage2(Y)
        if r == 5: chains(); stage1(R+16, 0)
        if r == 6: diag()
        if r == 7: stage1(R+16, 2); phi(P)
    if st2 and st2 <= 16:
        A(f"s_cmp_lg_u32 s{sCNT}, {nsteps + 1 - st2}"); A("s_cbranch_scc1 L_nost"); stamp(2); A("L_nost:")
    A(f"s_sub_u32 s{sCNT}, s{sCNT}, 1"); A(f"s_cmp_lg_u32 s{sCNT}, 0"); A("s_cbranch_scc1 L_kloop")

    def vstep(kind):
        first, pre = kind == "first", kind == "pre"
        issued = dk if first else dv
        for r in range(8):
            n = r + dv
            if pre:
                x = (min(issued, 8) - r - 1) + 4 * max(issued - 8, 0)
            else:
                x = min(dv - 1 - (sv[r] == "1"), issued - r - 1) if issued <= n else issued - r - 1
            A(f"s_waitcnt vmcnt({x})")
            if r == 8 - dv and not pre: A(f"v_add_u32 v{vA}, {STEPB}, v{vA}")
            did = False
            while issued <= n:
                if pre and issued >= 8: lload(issued - 8)
                else: load(issued & 7)
                issued += 1; did = True
            if not did: A("s_nop 0")
            if first:
                if r == 0: stage2(Y)
                if r == 1: chains()
                if r == 2: diag()
                if r == 3: perms(1); phi(P+2)
                if r == 4: pstore(); A(f"v_subrev_u32 v{vP}, {16*1024}, v{vP}"); zmfma(P)
                if r == 5: pread()
            else:
                if r == 2: pread()
                if r == 3: perms(1)
                if r == 4 and not pre:
                    A(f"s_cmp_eq_u32 s{sCNT}, s{sQIT}"); A("s_cbranch_scc1 L_q"); A("L_qret:")
            if r == 1: perms(0)
            if r == 5: perms(2)
            if r == 6:
                A("s_waitcnt lgkmcnt(0)")
                zmfma(PV)
            if r == 7: perms(3, mf=True)
    vstep("first")
    A(f"s_mov_b32 s{sCNT}, {nsteps-3}")
    if align: A(f".p2align {align}")
    A("L_vloop:")
    vstep("mid")
    if st2 > 16:
        A(f"s_cmp_lg_u32 s{sCNT}, {31 - st2}"); A("s_cbranch_scc1 L_nost"); stamp(2); A("L_nost:")
    A(f"s_sub_u32 s{sCNT}, s{sCNT}, 1"); A(f"s_cmp_lg_u32 s{sCNT}, 0"); A("s_cbranch_scc1 L_vloop")
    vstep("pre")
    A("s_mov_b32 exec_hi, 0")
    A(f"ds_write_b128 v5, {vr(ACC+32)} offset:{8*ISTR}")
    for i in range(8):
        A(f"ds_write_b128 v5, {vr(ACC+4*i)} offset:{i*ISTR}")
    A("s_mov_b32 exec_hi, -1")
    def lperms(u):
        B = VT + 8 * (u >> 1); X = R + 4 * u
        for i in range(2):
            for h in range(2):
                perm(B + 4*i + 2*(u & 1) + h, X + 2*h, X + 2*h + 1, i)
    def lmfma(wp):
        for i in range(2):
            A(f"v_mfma_f32_16x16x32_bf16 {vr(E+4*i)}, {vr(PL+4*wp)}, {vr(VT+8*wp+4*i)}, {vr(E+4*i)}")
    for u in range(8 - dv):
        A(f"s_waitcnt vmcnt({4*(dv-1)})")
        lload(u + dv)
        lperms(u)
    A("s_waitcnt lgkmcnt(0)")
    A("s_barrier")
    if epist: stamp(1)
    RZ, RE = U, ACC
    for x in range(4): A(f"ds_read_b128 {vr(RZ+4*x)}, v7 offset:{x*WSTR + 8*ISTR}")
    for i in range(2):
        for x in range(4): A(f"ds_read_b128 {vr(RE+16*i+4*x)}, v6 offset:{x*WSTR + i*ISTR}")
    A("s_waitcnt lgkmcnt(8)")
    for x in range(4):
        A(f"ds_read_b128 {vr(PL+4*x)}, v{vPL} offset:{x*PSTR}")
    for r in range(4): A(f"v_add_f32 v{RZ+r}, v{RZ+r}, v{RZ+4+r}")
    for r in range(4): A(f"v_add_f32 v{RZ+8+r}, v{RZ+8+r}, v{RZ+12+r}")
    for r in range(4): A(f"v_add_f32 v{RZ+r}, v{RZ+r}, v{RZ+8+r}")
    D0, D1 = Y, Y + 2
    for t in range(2): A(f"v_mul_f32 v{D0+t}, v{FQ+4*t}, v{RZ}")
    for r in range(1, 4):
        for t in range(2): A(f"v_fmac_f32 v{D0+t}, v{FQ+4*t+r}, v{RZ+r}")
    for t in range(2): A(f"v_mov_b32 v{D1+t}, v{D0+t}")
    A("s_nop 1")
    for t in range(2): A(f"v_permlane16_swap_b32 v{D0+t}, v{D1+t}")
    A("s_nop 1")
    for t in range(2): A(f"v_add_f32 v{D0+t}, v{D0+t}, v{D1+t}")
    for t in range(2): A(f"v_add_f32 v{D0+t}, {EPS:#x}, v{D0+t}")
    for t in range(2): A(f"v_rcp_f32 v{D0+t}, v{D0+t}")
    A("s_mov_b32 vcc_lo, 0"); A("s_mov_b32 vcc_hi, -1")
    for t in range(2):
        for r in range(4): A(f"v_mul_f32 v{FQ+4*t+r}, v{FQ+4*t+r}, v{D0+t}")
    T0, T1, HI = Y + 4, Y + 8, Y + 12
    for p in range(4): A(f"v_cvt_pk_bf16_f32 v{HI+p}, v{FQ+2*p}, v{FQ+2*p+1}")
    for p in range(4): A(f"v_lshlrev_b32 v{T0+p}, 16, v{HI+p}")
    for p in range(4): A(f"v_and_b32 v{T1+p}, 0xffff0000, v{HI+p}")
    for p in range(4): A(f"v_sub_f32 v{T0+p}, v{FQ+2*p}, v{T0+p}")
    for p in range(4): A(f"v_sub_f32 v{T1+p}, v{FQ+2*p+1}, v{T1+p}")
    for p in range(4): A(f"v_cvt_pk_bf16_f32 v{T0+p}, v{T0+p}, v{T1+p}")
    for p in range(4): A(f"v_cndmask_b32 v{WQ+p}, v{HI+p}, v{T0+p}, vcc")
    A("s_waitcnt lgkmcnt(4)")
    for i in range(2):
        B = RE + 16 * i
        for r in range(4): A(f"v_add_f32 v{B+r}, v{B+r}, v{B+4+r}")
        for r in range(4): A(f"v_add_f32 v{B+8+r}, v{B+8+r}, v{B+12+r}")
        for r in range(4): A(f"v_add_f32 v{E+4*i+r}, v{B+r}, v{B+8+r}")
    A("s_waitcnt lgkmcnt(0)")
    done = 0
    for u in range(8 - dv, 8):
        A(f"s_waitcnt vmcnt({4*(7-u)})")
        if u == 7: stamp(3)
        lperms(u)
        if u & 1:
            A("s_nop 1")
            while done <= (u >> 1):
                lmfma(done); done += 1
    PA = U
    A("s_nop 6")
    for i in range(2):
        A(f"v_cvt_pk_bf16_f32 v{PA+2*i}, v{E+4*i}, v{E+4*i+1}")
        A(f"v_cvt_pk_bf16_f32 v{PA+2*i+1}, v{E+4*i+2}, v{E+4*i+3}")
    A("s_nop 0")
    DD = ACC
    for t in range(2):
        for i in range(2):
            A(f"v_mfma_f32_16x16x16_bf16 {vr(DD+8*t+4*i)}, {vr(PA+2*i,2)}, {vr(WQ+2*t,2)}, 0")
    A("s_nop 5")
    for t in range(2):
        O = Y + 4*t
        for r in range(4): A(f"v_cvt_pk_bf16_f32 v{O+r}, v{DD+8*t+r}, v{DD+8*t+4+r}")
        A(f"buffer_store_dwordx4 {vr(O)}, v{8+t}, s[{sOUT}:{sOUT+3}], 0 offen {spol}")
    if epist: stamp(2)
    if stamps >= 3:
        A("s_waitcnt vmcnt(0)")
        stamp(4)
        A(f"s_cmp_lg_u32 s{sW}, 0"); A("s_cbranch_scc1 L_end")
        A("s_waitcnt lgkmcnt(0)")
        if stamps == 7: A("s_sub_u32 s3, s72, s64"); A("s_lshl_b32 s3, s3, 1"); A("s_sub_u32 s3, 12000, s3")
        if stamps == 3: A("s_sub_u32 s3, s72, s64")
        A("s_min_u32 s3, s3, 50000")
        A("L_spin:")
        A("s_memrealtime s[74:75]"); A("s_waitcnt lgkmcnt(0)")
        A("s_sub_u32 s74, s74, s72"); A("s_cmp_lt_u32 s74, s3"); A("s_cbranch_scc1 L_spin")
    if stamps == 1:
        A("s_waitcnt vmcnt(0)")
        A("s_barrier")
        stamp(4)
        A(f"s_cmp_lg_u32 s{sW}, {rw}"); A("s_cbranch_scc1 L_end")
        A("s_getreg_b32 s3, hwreg(HW_REG_XCC_ID)")
        A("s_waitcnt lgkmcnt(0)")
        A("v_mov_b32 v12, s64"); A("v_mov_b32 v13, s65"); A("v_mov_b32 v14, s72"); A("v_mov_b32 v15, s73")
        A("v_mov_b32 v16, s3"); A("v_mov_b32 v17, 0")
        A("s_sub_u32 s66, s66, s64"); A("s_sub_u32 s68, s68, s64"); A("s_sub_u32 s70, s70, s64")
        A("s_lshl_b32 s68, s68, 16"); A("s_or_b32 s66, s66, s68")
        A("v_mov_b32 v18, s66"); A("v_mov_b32 v19, s70")
        A("s_lshl_b32 s3, s2, 5"); A("v_mov_b32 v11, s3")
        A("s_mov_b64 exec, 1")
        A("global_store_dwordx4 v11, v[12:15], s[14:15]")
        A("global_store_dwordx4 v11, v[16:19], s[14:15] offset:16")
    A("L_end:")
    A("s_endpgm")
    A("L_q:")
    for t in range(2):
        for jj in range(4):
            A(f"ds_read_b128 {vr(U+16*t+4*jj)}, v{vQR} offset:{t*16*RSTR + jj*16}")
    for t in range(2):
        A(f"s_waitcnt lgkmcnt({4*(1-t)})")
        chains(isq=True, X=U+16*t)
        A("s_nop 3")
        diag(isq=True)
        A("s_nop 9")
        phi(FQ+4*t, f32=True)
    A("s_branch L_qret")
    A("L_codeend:")
    nv = (NV + 7) // 8 * 8
    A('.section .rodata,"a"'); A(".p2align 6"); A(f".amdhsa_kernel {KN}")
    A(f"  .amdhsa_next_free_vgpr {nv}"); A("  .amdhsa_next_free_sgpr 80"); A(f"  .amdhsa_accum_offset {nv}")
    A("  .amdhsa_group_segment_fixed_size 0"); A("  .amdhsa_kernarg_size 56"); A("  .amdhsa_user_sgpr_count 2")
    A("  .amdhsa_user_sgpr_kernarg_segment_ptr 1"); A("  .amdhsa_system_sgpr_workgroup_id_x 1")
    A("  .amdhsa_float_denorm_mode_32 3")
    A(".end_amdhsa_kernel")
    return "\n".join(L) + "\n"

if __name__ == "__main__":
    name = sys.argv[1]; kw = {}
    for a in sys.argv[2:]:
        k, v = a.split("=")
        kw[k] = v if k in ("sk", "sv") else (int(v) if v.lstrip("-").isdigit() else v.replace("+", " "))
    open(name, "w").write(gen(**kw))
```

```python
import sys, struct, math
KN = "standalone__linear_kernel_rfa__sampling_kernel"

def f2u(x):
    return struct.unpack("<I", struct.pack("<f", x))[0]

HEADER = """; FAVOR+ linear attention (positive random features), one workgroup of 4 waves per (b,h).
"""

def gen(dk=6, dv=5, sk="0", sv="0", pol="nt", stamps=0, opol="", qpol="nt", spol="", qit=1, qstag=1,
        align=0, pf=1, st2=0, st1=0, epist=0, lpol=None, kfirst=0, prost=0, rw=0, spread=1, dlo=0, nlo=0):
    nw = 4
    L = []
    A = L.append
    nsteps = 16
    STEPB = 32 * nw * 256
    ISTR = 544
    WSTR = 9 * ISTR
    PSTR = 17 * 1024
    PBASE = nw * WSTR
    RSTR = 272
    OBASE = PBASE + nw * PSTR
    QBASE = OBASE + 8 * RSTR
    lds = QBASE + 32 * RSTR
    scale = 128.0 ** -0.25
    C1 = scale * math.log2(math.e)
    C2 = -1.5
    CF = -0.5 * scale
    EPS = f2u(1e-6)
    sk = str(sk) * 8; sv = str(sv) * 8
    if lpol is None: lpol = pol
    assert dk <= 7 and dv <= 7

    vA, vV0, vP, vL = 10, 11, 38, 39
    OM, ONES, vCF, vC2 = 12, 28, 32, 33
    WQ = 34
    R, VT = 40, 72
    U, Y = 104, 120
    G, S, PD, P, PV = 136, 140, 144, 148, 152
    FQ = 156
    PL = 164
    E = 180
    vQR, vPL = 188, 189
    ACC = 192
    NV = 228
    sS, sQ, sO, sOUT = 16, 24, 28, 32
    sVB = 20
    sM = 36
    sSELLO, sSELHI, sC1, sW, sCNT, sQIT = 44, 45, 46, 47, 48, 49
    sOFF0 = 50
    sX1, sX2 = 60, 62
    soffs = {}
    def soff(c):
        hi, lo = c & ~4095, c & 4095
        if hi == 0:
            return "0", lo
        if hi not in soffs:
            soffs[hi] = sOFF0 + len(soffs)
        return f"s{soffs[hi]}", lo
    def vr(b, n=4): return f"v[{b}:{b+n-1}]"
    def off(j8): return (j8 >> 2) * nw * 4096 + (j8 & 3) * 1024
    def loff(u, r): return ((u >> 1) + 4 * (u & 1)) * 4096 + r * 1024
    for j8 in range(8): soff(off(j8))
    for u in range(8): soff(loff(u, 0))
    def load(n):
        so, im = soff(off(n))
        A(f"buffer_load_dwordx4 {vr(R+4*n)}, v{vA}, s[{sS}:{sS+3}], {so} offen offset:{im} {pol}")
    def lload(u):
        for r in range(4):
            so, im = soff(loff(u, r))
            A(f"buffer_load_dword v{R+4*u+r}, v{vL}, s[{sS}:{sS+3}], {so} offen offset:{im} {lpol}")
    def stamp(i):
        if stamps: A(f"s_memrealtime s[{64+2*i}:{65+2*i}]")

    def dppsel(dst, own, other, perm):
        A(f"v_cndmask_b32_dpp v{dst}, v{other}, v{own}, vcc quad_perm:{perm} row_mask:0xf bank_mask:0xf")
    def stage1(X, j):
        A(f"s_mov_b64 vcc, s[{sX1}:{sX1+1}]")
        for dw in range(4): dppsel(U+4*j+dw, X+4*j+dw, X+4*(j+1)+dw, "[1,0,3,2]")
        A("s_not_b64 vcc, vcc")
        for dw in range(4): dppsel(U+4*(j+1)+dw, X+4*(j+1)+dw, X+4*j+dw, "[1,0,3,2]")
    def stage2(dst):
        A(f"s_mov_b64 vcc, s[{sX2}:{sX2+1}]")
        for j in (0, 1):
            for dw in range(4): dppsel(dst+4*j+dw, U+4*j+dw, U+4*(j+2)+dw, "[2,3,0,1]")
        A("s_not_b64 vcc, vcc")
        for j in (0, 1):
            for dw in range(4): dppsel(dst+4*(j+2)+dw, U+4*(j+2)+dw, U+4*j+dw, "[2,3,0,1]")
    def chains(isq=False, X=Y):
        for jj in range(4):
            k = X + 4*jj
            A(f"v_mfma_f32_16x16x32_bf16 {vr(G)}, {vr(k)}, {vr(k)}, {'0' if jj==0 else vr(G)}")
        for jj in range(4):
            k = X + 4*jj
            a, b = (OM+4*jj, k) if isq else (k, OM+4*jj)
            A(f"v_mfma_f32_16x16x32_bf16 {vr(S)}, {vr(a)}, {vr(b)}, {'0' if jj==0 else vr(S)}")
    def diag(isq=False):
        A(f"v_cndmask_b32 v{PD}, 0, v{G}, s[{sM}:{sM+1}]")
        for r in range(1, 4):
            A(f"v_cndmask_b32 v{PD}, v{PD}, v{G+r}, s[{sM+2*r}:{sM+2*r+1}]")
        A("s_nop 1")
        a, b = (vCF, PD) if isq else (PD, vCF)
        A(f"v_mfma_f32_16x16x4_f32 {vr(S)}, v{a}, v{b}, {vr(S)}")
    def phi(dst, f32=False):
        for r in range(4): A(f"v_fma_f32 v{S+r}, v{S+r}, s{sC1}, v{vC2}")
        for r in range(4): A(f"v_exp_f32 v{S+r}, v{S+r}")
        if f32:
            for r in range(4): A(f"v_add_f32 v{dst+r}, {EPS:#x}, v{S+r}")
            return
        for r in range(4): A(f"v_add_f32 v{S+r}, {EPS:#x}, v{S+r}")
        A(f"v_cvt_pk_bf16_f32 v{dst}, v{S}, v{S+1}")
        A(f"v_cvt_pk_bf16_f32 v{dst+1}, v{S+2}, v{S+3}")
    def vmfma(i):
        A(f"v_mfma_f32_16x16x32_bf16 {vr(ACC+4*i)}, {vr(PV)}, {vr(VT+4*i)}, {vr(ACC+4*i)}")
    def zmfma(src):
        A(f"v_mfma_f32_16x16x32_bf16 {vr(ACC+32)}, {vr(src)}, {vr(ONES)}, {vr(ACC+32)}")
    def perm(dst, a, b, hi):
        A(f"v_perm_b32 v{dst}, v{b}, v{a}, s{sSELHI if hi else sSELLO}")
    def perms(jp, mf=False):
        a, b = R + 8*jp, R + 8*jp + 4
        for i in range(8):
            perm(VT+4*i+jp, a+(i>>1), b+(i>>1), i & 1)
            if mf and i >= 2: vmfma(i-2)
        if mf:
            vmfma(6); vmfma(7)
    def pstore():
        A(f"ds_write_b128 v{vP}, {vr(P)}")
        A(f"v_add_u32 v{vP}, 1024, v{vP}")
    def pread():
        A(f"ds_read_b128 {vr(PV)}, v{vP}"); A(f"v_add_u32 v{vP}, 1024, v{vP}")

    A(HEADER + f"; @launch grid=(256,1,1) block=({nw*64},1,1) lds={lds}")
    A('.amdgcn_target "amdgcn-amd-amdhsa--gfx950"')
    A(".text"); A(f".globl {KN}"); A(".p2align 8"); A(f".type {KN},@function"); A(f"{KN}:")
    stamp(0)
    A("s_cmp_ge_u32 s2, 256"); A("s_cbranch_scc1 L_end")
    A("s_load_dwordx8 s[4:11], s[0:1], 0         ; q k v omega")
    if pf:
        A("s_getpc_b64 s[76:77]")
        A("L_pc:")
        A(f"v_lshlrev_b32 v3, {7 if pf == 1 else 6}, v0")
        A("v_min_u32 v3, L_codeend-L_pc-4, v3")
        A(f"global_load_dword v{PD}, v3, s[76:77]")
    A("s_load_dwordx2 s[12:13], s[0:1], 32       ; out")
    if stamps:
        A(f"s_load_dwordx2 s[14:15], s[0:1], {48 if stamps==1 else 40}")
    A("v_lshrrev_b32 v1, 6, v0            ; wave")
    A("v_and_b32 v2, 63, v0               ; lane")
    A("v_lshrrev_b32 v4, 4, v2            ; g = l>>4")
    A("v_bfe_u32 v6, v2, 2, 2             ; a = l3l2")
    A(f"v_readfirstlane_b32 s{sW}, v1")
    A("v_and_b32 v5, 3, v2"); A("v_lshlrev_b32 v5, 4, v5"); A("v_lshl_add_u32 v5, v4, 6, v5")
    A(f"v_lshl_add_u32 v{vA}, v6, 8, v5")
    A(f"v_lshl_add_u32 v{vA}, v1, 12, v{vA}")
    A("v_lshlrev_b32 v5, 4, v2            ; lane*16")
    A("v_and_b32 v7, 0x7f, v0"); A("v_lshlrev_b32 v7, 4, v7")
    A("v_lshl_add_u32 v8, v1, 11, v5      ; q offset")
    for hi, s in soffs.items():
        A(f"s_mov_b32 s{s}, {hi}")
    A("s_lshl_b32 s3, s2, 19")
    A("s_lshl_b32 s22, s2, 13")
    A(f"s_mov_b32 s{sS+2}, 524288"); A(f"s_mov_b32 s{sS+3}, 0x20000")
    A(f"s_mov_b32 s{sO+2}, 2048"); A(f"s_mov_b32 s{sO+3}, 0x20000")
    A(f"s_mov_b32 s{sQ+2}, 8192"); A(f"s_mov_b32 s{sQ+3}, 0x20000")
    A("s_waitcnt lgkmcnt(0)")
    if not epist and not st1 and not prost: stamp(1)
    A(f"s_mov_b32 s{sO}, s10"); A(f"s_mov_b32 s{sO+1}, s11")
    lds_ = []
    def grab(fn):
        n0 = len(L); fn(); out = L[n0:]; del L[n0:]; return out
    ld_lines = []
    ld_lines += [f"buffer_load_dwordx4 {vr(VT)}, v7, s[{sO}:{sO+3}], 0 offen {opol}"]
    for j in range(2):
        ld_lines += [f"buffer_load_dwordx4 {vr(VT+4+4*j)}, v8, s[{sQ}:{sQ+3}], 0 offen offset:{j*1024} {qpol}"]
    for n in range(dk): ld_lines += grab(lambda: load(n))
    def setup():
        A(f"s_add_u32 s{sQ}, s4, s22"); A(f"s_addc_u32 s{sQ+1}, s5, 0")
        A(f"s_add_u32 s{sS}, s6, s3"); A(f"s_addc_u32 s{sS+1}, s7, 0")
        A(f"s_add_u32 s{sVB}, s8, s3"); A(f"s_addc_u32 s{sVB+1}, s9, 0")
        A(f"s_add_u32 s{sOUT}, s12, s22"); A(f"s_addc_u32 s{sOUT+1}, s13, 0")
        A(f"s_mov_b32 s{sOUT+2}, 8192"); A(f"s_mov_b32 s{sOUT+3}, 0x20000")
        A("v_and_b32 v3, 15, v2               ; n = l&15")
        A(f"v_bfe_u32 v{G}, v0, 4, 3"); A(f"v_mul_u32_u24 v{G}, {RSTR}, v{G}"); A(f"v_lshl_add_u32 v{G}, v3, 4, v{G}")
        A(f"v_lshl_add_u32 v{G+1}, v1, 3, v4"); A(f"v_mul_u32_u24 v{G+1}, {RSTR}, v{G+1}"); A(f"v_lshl_add_u32 v{G+1}, v3, 4, v{G+1}")
        A("v_and_b32 v9, 7, v2"); A(f"v_mul_u32_u24 v9, {RSTR}, v9"); A("v_lshl_add_u32 v9, v4, 6, v9")
        A(f"v_mul_u32_u24 v{vQR}, {RSTR}, v3"); A(f"v_lshl_add_u32 v{vQR}, v4, 6, v{vQR}")
        A(f"v_add_u32 v{vQR}, {QBASE}, v{vQR}")
        A(f"v_add_u32 v{G}, {OBASE}, v{G}"); A(f"v_add_u32 v{G+1}, {QBASE}, v{G+1}"); A(f"v_add_u32 v9, {OBASE}, v9")
        for r in range(4):
            A(f"s_mov_b32 s{sM+2*r}, {(1<<r)|(1<<(20+r))}"); A(f"s_mov_b32 s{sM+2*r+1}, {(1<<(8+r))|(1<<(28+r))}")
        A(f"s_mov_b32 s{sSELLO}, 0x05040100"); A(f"s_mov_b32 s{sSELHI}, 0x07060302")
        A(f"s_mov_b32 s{sC1}, {f2u(C1):#x}")
        A(f"s_mov_b32 s{sX1}, 0x55555555"); A(f"s_mov_b32 s{sX1+1}, 0x55555555")
        A(f"s_mov_b32 s{sX2}, 0x33333333"); A(f"s_mov_b32 s{sX2+1}, 0x33333333")
        A(f"v_mov_b32 v{vCF}, {f2u(CF):#x}"); A(f"v_mov_b32 v{vC2}, {f2u(C2):#x}")
        for r in range(4): A(f"v_mov_b32 v{ONES+r}, 0x3f803f80")
        for r in range(36): A(f"v_mov_b32 v{ACC+r}, 0")
        if qstag:
            A(f"s_sub_u32 s{sQIT}, {nsteps-2-qit}, s{sW}")
        else:
            A(f"s_mov_b32 s{sQIT}, {nsteps-2-qit}")
        A(f"s_mov_b32 s{sCNT}, {nsteps}")
        A(f"v_lshl_add_u32 v{vV0}, v1, 12, v5")
        A(f"s_mul_i32 s3, s{sW}, {PSTR}"); A(f"s_add_u32 s3, s3, {PBASE}")
        A(f"v_add_u32 v{vP}, s3, v5")
        A(f"v_add_u32 v{vPL}, {PBASE + 16*1024}, v5")
        A(f"v_lshlrev_b32 v{vL}, 8, v4"); A(f"v_lshl_add_u32 v{vL}, v1, 6, v{vL}"); A(f"v_lshl_add_u32 v{vL}, v3, 2, v{vL}")
        A(f"v_add_u32 v{vL}, {15*STEPB}, v{vL}")
    su = grab(setup)
    if spread:
        gaps = len(ld_lines) - 1
        per = -(-len(su) // gaps) if spread == 1 else spread
        for k, ld in enumerate(ld_lines):
            A(ld)
            take = su[:max(per, 4 if k == 0 else 0)]; su = su[len(take):]
            for x in take: A(x)
        for x in su: A(x)
    else:
        for x in su[:4]: A(x)
        for ld in ld_lines: A(ld)
        for x in su[4:]: A(x)
    if prost == 1: stamp(1)
    A(f"s_waitcnt vmcnt({dk})")
    if prost == 1: stamp(2)
    if prost == 2: stamp(1)
    if not st2 and not epist and not prost: stamp(2)
    A(f"ds_write_b128 v{G}, {vr(VT)}")
    A(f"ds_write_b128 v{G+1}, {vr(VT+4)}")
    A(f"ds_write_b128 v{G+1}, {vr(VT+8)} offset:{4*RSTR}")
    A(f"s_mul_i32 s3, s{sW}, {WSTR}")
    A("v_add_u32 v5, s3, v5")
    A("v_and_b32 v7, 3, v2"); A(f"v_mul_u32_u24 v7, {2*ISTR}, v7")
    A("v_lshl_add_u32 v6, v6, 4, v7")
    A("v_and_b32 v7, 1, v4"); A("v_lshlrev_b32 v7, 8, v7"); A("v_add_u32 v6, v6, v7")
    A(f"s_lshl_b32 s3, s{sW}, 6"); A("v_add_u32 v6, s3, v6")
    A("v_lshlrev_b32 v8, 8, v3"); A("v_lshl_add_u32 v8, v4, 4, v8"); A("v_add_u32 v8, s3, v8")
    A("s_waitcnt lgkmcnt(0)")
    if prost == 2: stamp(2)
    A("s_barrier")
    for jj in range(4):
        A(f"ds_read_b128 {vr(OM+4*jj)}, v9 offset:{jj*16}")
    A("v_add_u32 v9, 4096, v8")
    if st1: stamp(1)

    if align: A(f".p2align {align}")
    A("L_kloop:")
    for r in range(8):
        x = dk - 1
        if sk[r] == "1": x -= 1
        A(f"s_waitcnt vmcnt({x})" + (" lgkmcnt(0)" if r == 5 else ""))
        late = dk == 7 and (r & 1)
        def issue():
            if r == 8 - dk:
                A(f"v_add_u32 v{vA}, {STEPB}, v{vA}")
                A(f"s_cmp_lg_u32 s{sCNT}, 1"); A("s_cbranch_scc1 L_nosw")
                A(f"s_mov_b32 s{sS}, s{sVB}"); A(f"s_mov_b32 s{sS+1}, s{sVB+1}"); A(f"v_mov_b32 v{vA}, v{vV0}")
                A("L_nosw:")
            load((r + dk) & 7)
        if late:
            stage1(R + 16 * (r >> 2), r & 2); issue()
            if r in (1, 5): chains()
            if r == 3: phi(P+2)
            if r == 7: phi(P)
            continue
        issue()
        if dk == 7 and r in (2, 6): A("s_nop 1")
        if r == 0: stage2(Y)
        if r == 1: chains(); stage1(R, 0)
        if r == 2: diag()
        if r == 3: stage1(R, 2); phi(P+2)
        if r == 4: pstore(); stage2(Y)
        if r == 5: chains(); stage1(R+16, 0)
        if r == 6: diag()
        if r == 7: stage1(R+16, 2); phi(P)
    if st2 and st2 <= 16:
        A(f"s_cmp_lg_u32 s{sCNT}, {nsteps + 1 - st2}"); A("s_cbranch_scc1 L_nost"); stamp(2); A("L_nost:")
    A(f"s_sub_u32 s{sCNT}, s{sCNT}, 1"); A(f"s_cmp_lg_u32 s{sCNT}, 0"); A("s_cbranch_scc1 L_kloop")

    def vstep(kind):
        first, pre = kind == "first", kind == "pre"
        issued = dk if first else dv
        for r in range(8):
            n = r + dv
            if pre:
                x = (min(issued, 8) - r - 1) + 4 * max(issued - 8, 0)
            else:
                x = min(dv - 1 - (sv[r] == "1"), issued - r - 1) if issued <= n else issued - r - 1
            if first and dlo: x = min(x, dlo - 1)
            if kind == "mid" and dlo:
                A(f"s_cbranch_vccnz L_deep{r}"); A(f"s_waitcnt vmcnt({dlo-1})"); A(f"L_deep{r}:")
            A(f"s_waitcnt vmcnt({x})")
            late = dv == 7 and (r & 1) and r < 7
            if late: perms(r >> 1)
            if r == 8 - dv and not pre: A(f"v_add_u32 v{vA}, {STEPB}, v{vA}")
            did = False
            def issue():
                nonlocal issued, did
                while issued <= n:
                    if pre and issued >= 8: lload(issued - 8)
                    else: load(issued & 7)
                    issued += 1; did = True
            if not (dv == 7 and r == 7): issue()
            if not did and r != 7: A("s_nop 0")
            if first:
                if r == 0: stage2(Y)
                if r == 1: chains()
                if r == 2:
                    if late or dv == 7: A("s_nop 1")
                    diag()
                if r == 3:
                    if not late: perms(1)
                    phi(P+2)
                if r == 4: pstore(); A(f"v_subrev_u32 v{vP}, {16*1024}, v{vP}"); zmfma(P)
                if r == 5: pread()
            else:
                if r == 2: pread()
                if r == 3 and not late: perms(1)
                if r == 4 and not pre:
                    A(f"s_cmp_eq_u32 s{sCNT}, s{sQIT}"); A("s_cbranch_scc1 L_q"); A("L_qret:")
            if r == 1 and not late: perms(0)
            if r == 5 and not late: perms(2)
            if r == 6:
                A("s_waitcnt lgkmcnt(0)")
                zmfma(PV)
            if r == 7:
                if dv == 7:
                    perms(3); issue()
                    for i in range(8): vmfma(i)
                else:
                    perms(3, mf=True)
    vstep("first")
    A(f"s_mov_b32 s{sCNT}, {nsteps-3}")
    if dlo: A("s_mov_b64 vcc, 0")
    if align: A(f".p2align {align}")
    A("L_vloop:")
    vstep("mid")
    if st2 > 16:
        A(f"s_cmp_lg_u32 s{sCNT}, {31 - st2}"); A("s_cbranch_scc1 L_nost"); stamp(2); A("L_nost:")
    A(f"s_sub_u32 s{sCNT}, s{sCNT}, 1")
    if dlo:
        A(f"s_cmp_le_u32 s{sCNT}, {nsteps-3-nlo}"); A("s_cselect_b64 vcc, -1, 0")
    A(f"s_cmp_lg_u32 s{sCNT}, 0"); A("s_cbranch_scc1 L_vloop")
    vstep("pre")
    A("s_mov_b32 exec_hi, 0")
    A(f"ds_write_b128 v5, {vr(ACC+32)} offset:{8*ISTR}")
    for i in range(8):
        A(f"ds_write_b128 v5, {vr(ACC+4*i)} offset:{i*ISTR}")
    A("s_mov_b32 exec_hi, -1")
    def lperms(u):
        B = VT + 8 * (u >> 1); X = R + 4 * u
        for i in range(2):
            for h in range(2):
                perm(B + 4*i + 2*(u & 1) + h, X + 2*h, X + 2*h + 1, i)
    def lmfma(wp):
        for i in range(2):
            A(f"v_mfma_f32_16x16x32_bf16 {vr(E+4*i)}, {vr(PL+4*wp)}, {vr(VT+8*wp+4*i)}, {vr(E+4*i)}")
    for u in range(8 - dv):
        A(f"s_waitcnt vmcnt({4*(dv-1)})")
        lload(u + dv)
        lperms(u)
    A("s_waitcnt lgkmcnt(0)")
    A("s_barrier")
    if epist: stamp(1)
    RZ, RE = U, ACC
    for x in range(4): A(f"ds_read_b128 {vr(RZ+4*x)}, v7 offset:{x*WSTR + 8*ISTR}")
    for i in range(2):
        for x in range(4): A(f"ds_read_b128 {vr(RE+16*i+4*x)}, v6 offset:{x*WSTR + i*ISTR}")
    A("s_waitcnt lgkmcnt(8)")
    for x in range(4):
        A(f"ds_read_b128 {vr(PL+4*x)}, v{vPL} offset:{x*PSTR}")
    for r in range(4): A(f"v_add_f32 v{RZ+r}, v{RZ+r}, v{RZ+4+r}")
    for r in range(4): A(f"v_add_f32 v{RZ+8+r}, v{RZ+8+r}, v{RZ+12+r}")
    for r in range(4): A(f"v_add_f32 v{RZ+r}, v{RZ+r}, v{RZ+8+r}")
    D0, D1 = Y, Y + 2
    for t in range(2): A(f"v_mul_f32 v{D0+t}, v{FQ+4*t}, v{RZ}")
    for r in range(1, 4):
        for t in range(2): A(f"v_fmac_f32 v{D0+t}, v{FQ+4*t+r}, v{RZ+r}")
    for t in range(2): A(f"v_mov_b32 v{D1+t}, v{D0+t}")
    A("s_nop 1")
    for t in range(2): A(f"v_permlane16_swap_b32 v{D0+t}, v{D1+t}")
    A("s_nop 1")
    for t in range(2): A(f"v_add_f32 v{D0+t}, v{D0+t}, v{D1+t}")
    for t in range(2): A(f"v_add_f32 v{D0+t}, {EPS:#x}, v{D0+t}")
    for t in range(2): A(f"v_rcp_f32 v{D0+t}, v{D0+t}")
    A("s_mov_b32 vcc_lo, 0"); A("s_mov_b32 vcc_hi, -1")
    for t in range(2):
        for r in range(4): A(f"v_mul_f32 v{FQ+4*t+r}, v{FQ+4*t+r}, v{D0+t}")
    T0, T1, HI = Y + 4, Y + 8, Y + 12
    for p in range(4): A(f"v_cvt_pk_bf16_f32 v{HI+p}, v{FQ+2*p}, v{FQ+2*p+1}")
    for p in range(4): A(f"v_lshlrev_b32 v{T0+p}, 16, v{HI+p}")
    for p in range(4): A(f"v_and_b32 v{T1+p}, 0xffff0000, v{HI+p}")
    for p in range(4): A(f"v_sub_f32 v{T0+p}, v{FQ+2*p}, v{T0+p}")
    for p in range(4): A(f"v_sub_f32 v{T1+p}, v{FQ+2*p+1}, v{T1+p}")
    for p in range(4): A(f"v_cvt_pk_bf16_f32 v{T0+p}, v{T0+p}, v{T1+p}")
    for p in range(4): A(f"v_cndmask_b32 v{WQ+p}, v{HI+p}, v{T0+p}, vcc")
    A("s_waitcnt lgkmcnt(4)")
    for i in range(2):
        B = RE + 16 * i
        for r in range(4): A(f"v_add_f32 v{B+r}, v{B+r}, v{B+4+r}")
        for r in range(4): A(f"v_add_f32 v{B+8+r}, v{B+8+r}, v{B+12+r}")
        for r in range(4): A(f"v_add_f32 v{E+4*i+r}, v{B+r}, v{B+8+r}")
    A("s_waitcnt lgkmcnt(0)")
    done = 0
    for u in range(8 - dv, 8):
        A(f"s_waitcnt vmcnt({4*(7-u)})")
        if u == 7: stamp(3)
        lperms(u)
        if u & 1:
            A("s_nop 1")
            while done <= (u >> 1):
                lmfma(done); done += 1
    PA = U
    A("s_nop 6")
    for i in range(2):
        A(f"v_cvt_pk_bf16_f32 v{PA+2*i}, v{E+4*i}, v{E+4*i+1}")
        A(f"v_cvt_pk_bf16_f32 v{PA+2*i+1}, v{E+4*i+2}, v{E+4*i+3}")
    A("s_nop 0")
    DD = ACC
    for t in range(2):
        for i in range(2):
            A(f"v_mfma_f32_16x16x16_bf16 {vr(DD+8*t+4*i)}, {vr(PA+2*i,2)}, {vr(WQ+2*t,2)}, 0")
    A("s_nop 5")
    for t in range(2):
        O = Y + 4*t
        for r in range(4): A(f"v_cvt_pk_bf16_f32 v{O+r}, v{DD+8*t+r}, v{DD+8*t+4+r}")
        A(f"buffer_store_dwordx4 {vr(O)}, v{8+t}, s[{sOUT}:{sOUT+3}], 0 offen {spol}")
    if epist: stamp(2)
    if stamps >= 3:
        A("s_waitcnt vmcnt(0)")
        stamp(4)
        A(f"s_cmp_lg_u32 s{sW}, 0"); A("s_cbranch_scc1 L_end")
        A("s_waitcnt lgkmcnt(0)")
        if stamps == 7: A("s_sub_u32 s3, s72, s64"); A("s_lshl_b32 s3, s3, 1"); A("s_sub_u32 s3, 12000, s3")
        if stamps == 3: A("s_sub_u32 s3, s72, s64")
        A("s_min_u32 s3, s3, 50000")
        A("L_spin:")
        A("s_memrealtime s[74:75]"); A("s_waitcnt lgkmcnt(0)")
        A("s_sub_u32 s74, s74, s72"); A("s_cmp_lt_u32 s74, s3"); A("s_cbranch_scc1 L_spin")
    if stamps == 1:
        A("s_waitcnt vmcnt(0)")
        A("s_barrier")
        stamp(4)
        A(f"s_cmp_lg_u32 s{sW}, {rw}"); A("s_cbranch_scc1 L_end")
        A("s_getreg_b32 s3, hwreg(HW_REG_XCC_ID)")
        A("s_waitcnt lgkmcnt(0)")
        A("v_mov_b32 v12, s64"); A("v_mov_b32 v13, s65"); A("v_mov_b32 v14, s72"); A("v_mov_b32 v15, s73")
        A("v_mov_b32 v16, s3"); A("v_mov_b32 v17, 0")
        A("s_sub_u32 s66, s66, s64"); A("s_sub_u32 s68, s68, s64"); A("s_sub_u32 s70, s70, s64")
        A("s_lshl_b32 s68, s68, 16"); A("s_or_b32 s66, s66, s68")
        A("v_mov_b32 v18, s66"); A("v_mov_b32 v19, s70")
        A("s_lshl_b32 s3, s2, 5"); A("v_mov_b32 v11, s3")
        A("s_mov_b64 exec, 1")
        A("global_store_dwordx4 v11, v[12:15], s[14:15]")
        A("global_store_dwordx4 v11, v[16:19], s[14:15] offset:16")
    A("L_end:")
    A("s_endpgm")
    A("L_q:")
    for t in range(2):
        for jj in range(4):
            A(f"ds_read_b128 {vr(U+16*t+4*jj)}, v{vQR} offset:{t*16*RSTR + jj*16}")
    for t in range(2):
        A(f"s_waitcnt lgkmcnt({4*(1-t)})")
        chains(isq=True, X=U+16*t)
        A("s_nop 3")
        diag(isq=True)
        A("s_nop 9")
        phi(FQ+4*t, f32=True)
    A("s_branch L_qret")
    A("L_codeend:")
    nv = (NV + 7) // 8 * 8
    A('.section .rodata,"a"'); A(".p2align 6"); A(f".amdhsa_kernel {KN}")
    A(f"  .amdhsa_next_free_vgpr {nv}"); A("  .amdhsa_next_free_sgpr 80"); A(f"  .amdhsa_accum_offset {nv}")
    A("  .amdhsa_group_segment_fixed_size 0"); A("  .amdhsa_kernarg_size 56"); A("  .amdhsa_user_sgpr_count 2")
    A("  .amdhsa_user_sgpr_kernarg_segment_ptr 1"); A("  .amdhsa_system_sgpr_workgroup_id_x 1")
    A("  .amdhsa_float_denorm_mode_32 3")
    A(".end_amdhsa_kernel")
    return "\n".join(L) + "\n"

if __name__ == "__main__":
    name = sys.argv[1]; kw = {}
    for a in sys.argv[2:]:
        k, v = a.split("=")
        kw[k] = v if k in ("sk", "sv") else (int(v) if v.lstrip("-").isdigit() else v.replace("+", " "))
    open(name, "w").write(gen(**kw))
```

```python
import sys, struct, math
KN = "standalone__linear_kernel_rfa__sampling_kernel"

def f2u(x):
    return struct.unpack("<I", struct.pack("<f", x))[0]

HEADER = """; FAVOR+ linear attention (positive random features), one workgroup of 4 waves per (b,h).
"""

def gen(dk=6, dv=5, sk="0", sv="0", pol="nt", stamps=0, opol="", qpol="nt", spol="", qit=1, qstag=1,
        align=0, pf=1, st2=0, st1=0, epist=0, lpol=None, kfirst=0, prost=0, rw=0, spread=1, dlo=0, nlo=0, slo="1", nostore=0, ilv=0, ohalf=0, linst=0):
    nw = 4
    L = []
    A = L.append
    nsteps = 16
    STEPB = 32 * nw * 256
    ISTR = 544
    WSTR = 9 * ISTR
    PSTR = 17 * 1024
    PBASE = nw * WSTR
    RSTR = 272
    OBASE = PBASE + nw * PSTR
    QBASE = OBASE + 8 * RSTR
    lds = QBASE + 32 * RSTR
    scale = 128.0 ** -0.25
    C1 = scale * math.log2(math.e)
    C2 = -1.5
    CF = -0.5 * scale
    EPS = f2u(1e-6)
    sk = str(sk) * 8; sv = str(sv) * 8
    if lpol is None: lpol = pol
    assert dk <= 7 and dv <= 7

    vA, vV0, vP, vL = 10, 11, 38, 39
    OM, ONES, vCF, vC2 = 12, 28, 32, 33
    WQ = 34
    R, VT = 40, 72
    U, Y = 104, 120
    G, S, PD, P, PV = 136, 140, 144, 148, 152
    FQ = 156
    PL = 164
    E = 180
    vQR, vPL = 188, 189
    ACC = 192
    NV = 228
    sS, sQ, sO, sOUT = 16, 24, 28, 32
    sVB = 20
    sM = 36
    sSELLO, sSELHI, sC1, sW, sCNT, sQIT = 44, 45, 46, 47, 48, 49
    sOFF0 = 50
    sX1, sX2 = 60, 62
    soffs = {}
    def soff(c):
        hi, lo = c & ~4095, c & 4095
        if hi == 0:
            return "0", lo
        if hi not in soffs:
            soffs[hi] = sOFF0 + len(soffs)
        return f"s{soffs[hi]}", lo
    def vr(b, n=4): return f"v[{b}:{b+n-1}]"
    def off(j8): return (j8 >> 2) * nw * 4096 + (j8 & 3) * 1024
    def loff(u, r): return ((u >> 1) + 4 * (u & 1)) * 4096 + r * 1024
    for j8 in range(8): soff(off(j8))
    for u in range(8): soff(loff(u, 0))
    def load(n):
        so, im = soff(off(n))
        A(f"buffer_load_dwordx4 {vr(R+4*n)}, v{vA}, s[{sS}:{sS+3}], {so} offen offset:{im} {pol}")
    def lload(u):
        for r in range(4):
            so, im = soff(loff(u, r))
            A(f"buffer_load_dword v{R+4*u+r}, v{vL}, s[{sS}:{sS+3}], {so} offen offset:{im} {lpol}")
    def stamp(i):
        if stamps: A(f"s_memrealtime s[{64+2*i}:{65+2*i}]")

    def dppsel(dst, own, other, perm):
        A(f"v_cndmask_b32_dpp v{dst}, v{other}, v{own}, vcc quad_perm:{perm} row_mask:0xf bank_mask:0xf")
    def stage1(X, j):
        A(f"s_mov_b64 vcc, s[{sX1}:{sX1+1}]")
        for dw in range(4): dppsel(U+4*j+dw, X+4*j+dw, X+4*(j+1)+dw, "[1,0,3,2]")
        A("s_not_b64 vcc, vcc")
        for dw in range(4): dppsel(U+4*(j+1)+dw, X+4*(j+1)+dw, X+4*j+dw, "[1,0,3,2]")
    def stage2(dst):
        A(f"s_mov_b64 vcc, s[{sX2}:{sX2+1}]")
        for j in (0, 1):
            for dw in range(4): dppsel(dst+4*j+dw, U+4*j+dw, U+4*(j+2)+dw, "[2,3,0,1]")
        A("s_not_b64 vcc, vcc")
        for j in (0, 1):
            for dw in range(4): dppsel(dst+4*(j+2)+dw, U+4*(j+2)+dw, U+4*j+dw, "[2,3,0,1]")
    def chains(isq=False, X=Y):
        for jj in range(4):
            k = X + 4*jj
            A(f"v_mfma_f32_16x16x32_bf16 {vr(G)}, {vr(k)}, {vr(k)}, {'0' if jj==0 else vr(G)}")
        for jj in range(4):
            k = X + 4*jj
            a, b = (OM+4*jj, k) if isq else (k, OM+4*jj)
            A(f"v_mfma_f32_16x16x32_bf16 {vr(S)}, {vr(a)}, {vr(b)}, {'0' if jj==0 else vr(S)}")
    def gs(jj):
        k = Y + 4*jj
        return [f"v_mfma_f32_16x16x32_bf16 {vr(G)}, {vr(k)}, {vr(k)}, {'0' if jj==0 else vr(G)}",
                f"v_mfma_f32_16x16x32_bf16 {vr(S)}, {vr(k)}, {vr(OM+4*jj)}, {'0' if jj==0 else vr(S)}"]
    def weave(valu, mf, start):
        mf = list(mf); cnt = 0
        for i, x in enumerate(valu):
            A(x)
            if i >= start and x.startswith("v_"):
                cnt += 1
                if cnt % 2 == 0 and mf: A(mf.pop(0))
        for x in mf: A(x)
    def diag(isq=False):
        A(f"v_cndmask_b32 v{PD}, 0, v{G}, s[{sM}:{sM+1}]")
        for r in range(1, 4):
            A(f"v_cndmask_b32 v{PD}, v{PD}, v{G+r}, s[{sM+2*r}:{sM+2*r+1}]")
        A("s_nop 1")
        a, b = (vCF, PD) if isq else (PD, vCF)
        A(f"v_mfma_f32_16x16x4_f32 {vr(S)}, v{a}, v{b}, {vr(S)}")
    def phi(dst, f32=False):
        for r in range(4): A(f"v_fma_f32 v{S+r}, v{S+r}, s{sC1}, v{vC2}")
        for r in range(4): A(f"v_exp_f32 v{S+r}, v{S+r}")
        if f32:
            for r in range(4): A(f"v_add_f32 v{dst+r}, {EPS:#x}, v{S+r}")
            return
        for r in range(4): A(f"v_add_f32 v{S+r}, {EPS:#x}, v{S+r}")
        A(f"v_cvt_pk_bf16_f32 v{dst}, v{S}, v{S+1}")
        A(f"v_cvt_pk_bf16_f32 v{dst+1}, v{S+2}, v{S+3}")
    def vmfma(i):
        A(f"v_mfma_f32_16x16x32_bf16 {vr(ACC+4*i)}, {vr(PV)}, {vr(VT+4*i)}, {vr(ACC+4*i)}")
    def zmfma(src):
        A(f"v_mfma_f32_16x16x32_bf16 {vr(ACC+32)}, {vr(src)}, {vr(ONES)}, {vr(ACC+32)}")
    def perm(dst, a, b, hi):
        A(f"v_perm_b32 v{dst}, v{b}, v{a}, s{sSELHI if hi else sSELLO}")
    def perms(jp, mf=False):
        a, b = R + 8*jp, R + 8*jp + 4
        for i in range(8):
            perm(VT+4*i+jp, a+(i>>1), b+(i>>1), i & 1)
            if mf and i >= 2: vmfma(i-2)
        if mf:
            vmfma(6); vmfma(7)
    def pstore():
        A(f"ds_write_b128 v{vP}, {vr(P)}")
        A(f"v_add_u32 v{vP}, 1024, v{vP}")
    def pread():
        A(f"ds_read_b128 {vr(PV)}, v{vP}"); A(f"v_add_u32 v{vP}, 1024, v{vP}")

    A(HEADER + f"; @launch grid=(256,1,1) block=({nw*64},1,1) lds={lds}")
    A('.amdgcn_target "amdgcn-amd-amdhsa--gfx950"')
    A(".text"); A(f".globl {KN}"); A(".p2align 8"); A(f".type {KN},@function"); A(f"{KN}:")
    stamp(0)
    A("s_cmp_ge_u32 s2, 256"); A("s_cbranch_scc1 L_end")
    A("s_load_dwordx8 s[4:11], s[0:1], 0         ; q k v omega")
    if pf:
        A("s_getpc_b64 s[76:77]")
        A("L_pc:")
        A(f"v_lshlrev_b32 v3, {7 if pf == 1 else 6}, v0")
        A("v_min_u32 v3, L_codeend-L_pc-4, v3")
        A(f"global_load_dword v{PD}, v3, s[76:77]")
    A("s_load_dwordx2 s[12:13], s[0:1], 32       ; out")
    if stamps:
        A(f"s_load_dwordx2 s[14:15], s[0:1], {48 if stamps==1 else 40}")
    A("v_lshrrev_b32 v1, 6, v0            ; wave")
    A("v_and_b32 v2, 63, v0               ; lane")
    A("v_lshrrev_b32 v4, 4, v2            ; g = l>>4")
    A("v_bfe_u32 v6, v2, 2, 2             ; a = l3l2")
    A(f"v_readfirstlane_b32 s{sW}, v1")
    A("v_and_b32 v5, 3, v2"); A("v_lshlrev_b32 v5, 4, v5"); A("v_lshl_add_u32 v5, v4, 6, v5")
    A(f"v_lshl_add_u32 v{vA}, v6, 8, v5")
    A(f"v_lshl_add_u32 v{vA}, v1, 12, v{vA}")
    A("v_lshlrev_b32 v5, 4, v2            ; lane*16")
    A("v_and_b32 v7, 0x7f, v0"); A("v_lshlrev_b32 v7, 4, v7")
    A("v_lshl_add_u32 v8, v1, 11, v5      ; q offset")
    for hi, s in soffs.items():
        A(f"s_mov_b32 s{s}, {hi}")
    A("s_lshl_b32 s3, s2, 19")
    A("s_lshl_b32 s22, s2, 13")
    A(f"s_mov_b32 s{sS+2}, 524288"); A(f"s_mov_b32 s{sS+3}, 0x20000")
    A(f"s_mov_b32 s{sO+2}, 2048"); A(f"s_mov_b32 s{sO+3}, 0x20000")
    A(f"s_mov_b32 s{sQ+2}, 8192"); A(f"s_mov_b32 s{sQ+3}, 0x20000")
    A("s_waitcnt lgkmcnt(0)")
    if not epist and not st1 and not prost: stamp(1)
    A(f"s_mov_b32 s{sO}, s10"); A(f"s_mov_b32 s{sO+1}, s11")
    lds_ = []
    def grab(fn):
        n0 = len(L); fn(); out = L[n0:]; del L[n0:]; return out
    ld_lines = []
    ld_lines += [f"buffer_load_dwordx4 {vr(VT)}, v7, s[{sO}:{sO+3}], 0 offen {opol}"]
    for j in range(2):
        ld_lines += [f"buffer_load_dwordx4 {vr(VT+4+4*j)}, v8, s[{sQ}:{sQ+3}], 0 offen offset:{j*1024} {qpol}"]
    for n in range(dk): ld_lines += grab(lambda: load(n))
    def setup():
        A(f"s_add_u32 s{sQ}, s4, s22"); A(f"s_addc_u32 s{sQ+1}, s5, 0")
        A(f"s_add_u32 s{sS}, s6, s3"); A(f"s_addc_u32 s{sS+1}, s7, 0")
        A(f"s_add_u32 s{sVB}, s8, s3"); A(f"s_addc_u32 s{sVB+1}, s9, 0")
        A(f"s_add_u32 s{sOUT}, s12, s22"); A(f"s_addc_u32 s{sOUT+1}, s13, 0")
        A(f"s_mov_b32 s{sOUT+2}, 8192"); A(f"s_mov_b32 s{sOUT+3}, 0x20000")
        A("v_and_b32 v3, 15, v2               ; n = l&15")
        A(f"v_bfe_u32 v{G}, v0, 4, 3"); A(f"v_mul_u32_u24 v{G}, {RSTR}, v{G}"); A(f"v_lshl_add_u32 v{G}, v3, 4, v{G}")
        A(f"v_lshl_add_u32 v{G+1}, v1, 3, v4"); A(f"v_mul_u32_u24 v{G+1}, {RSTR}, v{G+1}"); A(f"v_lshl_add_u32 v{G+1}, v3, 4, v{G+1}")
        A("v_and_b32 v9, 7, v2"); A(f"v_mul_u32_u24 v9, {RSTR}, v9"); A("v_lshl_add_u32 v9, v4, 6, v9")
        A(f"v_mul_u32_u24 v{vQR}, {RSTR}, v3"); A(f"v_lshl_add_u32 v{vQR}, v4, 6, v{vQR}")
        A(f"v_add_u32 v{vQR}, {QBASE}, v{vQR}")
        A(f"v_add_u32 v{G}, {OBASE}, v{G}"); A(f"v_add_u32 v{G+1}, {QBASE}, v{G+1}"); A(f"v_add_u32 v9, {OBASE}, v9")
        for r in range(4):
            A(f"s_mov_b32 s{sM+2*r}, {(1<<r)|(1<<(20+r))}"); A(f"s_mov_b32 s{sM+2*r+1}, {(1<<(8+r))|(1<<(28+r))}")
        A(f"s_mov_b32 s{sSELLO}, 0x05040100"); A(f"s_mov_b32 s{sSELHI}, 0x07060302")
        A(f"s_mov_b32 s{sC1}, {f2u(C1):#x}")
        A(f"s_mov_b32 s{sX1}, 0x55555555"); A(f"s_mov_b32 s{sX1+1}, 0x55555555")
        A(f"s_mov_b32 s{sX2}, 0x33333333"); A(f"s_mov_b32 s{sX2+1}, 0x33333333")
        A(f"v_mov_b32 v{vCF}, {f2u(CF):#x}"); A(f"v_mov_b32 v{vC2}, {f2u(C2):#x}")
        for r in range(4): A(f"v_mov_b32 v{ONES+r}, 0x3f803f80")
        for r in range(36): A(f"v_mov_b32 v{ACC+r}, 0")
        if qstag:
            A(f"s_sub_u32 s{sQIT}, {nsteps-2-qit}, s{sW}")
        else:
            A(f"s_mov_b32 s{sQIT}, {nsteps-2-qit}")
        A(f"s_mov_b32 s{sCNT}, {nsteps}")
        A(f"v_lshl_add_u32 v{vV0}, v1, 12, v5")
        A(f"s_mul_i32 s3, s{sW}, {PSTR}"); A(f"s_add_u32 s3, s3, {PBASE}")
        A(f"v_add_u32 v{vP}, s3, v5")
        A(f"v_add_u32 v{vPL}, {PBASE + 16*1024}, v5")
        A(f"v_lshlrev_b32 v{vL}, 8, v4"); A(f"v_lshl_add_u32 v{vL}, v1, 6, v{vL}"); A(f"v_lshl_add_u32 v{vL}, v3, 2, v{vL}")
        A(f"v_add_u32 v{vL}, {15*STEPB}, v{vL}")
    su = grab(setup)
    if spread:
        gaps = len(ld_lines) - 1
        per = -(-len(su) // gaps) if spread == 1 else spread
        for k, ld in enumerate(ld_lines):
            A(ld)
            take = su[:max(per, 4 if k == 0 else 0)]; su = su[len(take):]
            for x in take: A(x)
        for x in su: A(x)
    else:
        for x in su[:4]: A(x)
        for ld in ld_lines: A(ld)
        for x in su[4:]: A(x)
    if prost == 1: stamp(1)
    A(f"s_waitcnt vmcnt({dk})")
    if prost == 1: stamp(2)
    if prost == 2: stamp(1)
    if not st2 and not epist and not prost: stamp(2)
    A(f"ds_write_b128 v{G}, {vr(VT)}")
    A(f"ds_write_b128 v{G+1}, {vr(VT+4)}")
    A(f"ds_write_b128 v{G+1}, {vr(VT+8)} offset:{4*RSTR}")
    A(f"s_mul_i32 s3, s{sW}, {WSTR}")
    A("v_add_u32 v5, s3, v5")
    A("v_and_b32 v7, 3, v2"); A(f"v_mul_u32_u24 v7, {2*ISTR}, v7")
    A("v_lshl_add_u32 v6, v6, 4, v7")
    A("v_and_b32 v7, 1, v4"); A("v_lshlrev_b32 v7, 8, v7"); A("v_add_u32 v6, v6, v7")
    A(f"s_lshl_b32 s3, s{sW}, 6"); A("v_add_u32 v6, s3, v6")
    A("v_lshlrev_b32 v8, 8, v3"); A("v_lshl_add_u32 v8, v4, 4, v8"); A("v_add_u32 v8, s3, v8")
    A("s_waitcnt lgkmcnt(0)")
    if prost == 2: stamp(2)
    A("s_barrier")
    for jj in range(4):
        A(f"ds_read_b128 {vr(OM+4*jj)}, v9 offset:{jj*16}")
    A("v_add_u32 v9, 4096, v8")
    if linst:
        A("v_lshlrev_b32 v8, 4, v2"); A("v_lshl_add_u32 v8, v1, 11, v8"); A("v_add_u32 v9, 1024, v8")
    if st1: stamp(1)

    if align: A(f".p2align {align}")
    A("L_kloop:")
    for r in range(8):
        x = dk - 1
        if sk[r] == "1": x -= 1
        A(f"s_waitcnt vmcnt({x})" + (" lgkmcnt(0)" if r == (4 if ilv else 5) else ""))
        late = dk == 7 and (r & 1)
        def issue():
            if r == 8 - dk:
                A(f"v_add_u32 v{vA}, {STEPB}, v{vA}")
                A(f"s_cmp_lg_u32 s{sCNT}, 1"); A("s_cbranch_scc1 L_nosw")
                A(f"s_mov_b32 s{sS}, s{sVB}"); A(f"s_mov_b32 s{sS+1}, s{sVB+1}"); A(f"v_mov_b32 v{vA}, v{vV0}")
                A("L_nosw:")
            load((r + dk) & 7)
        if late:
            stage1(R + 16 * (r >> 2), r & 2); issue()
            if r in (1, 5): chains()
            if r == 3: phi(P+2)
            if r == 7: phi(P)
            continue
        issue()
        if dk == 7 and r in (2, 6): A("s_nop 1")
        if ilv:
            assert dk <= 6
            if r == 4: pstore()
            if r in (0, 4): weave(grab(lambda: stage2(Y)), gs(0) + gs(1), 10)
            if r in (1, 5):
                g3, s3 = gs(3); g2, s2 = gs(2)
                weave(grab(lambda: stage1(R + 16 * (r >> 2), 0)), [g2, g3, s2, s3], 0)
            if r in (2, 6): diag()
            if r in (3, 7): stage1(R + 16 * (r >> 2), 2); phi(P + (2 if r == 3 else 0))
            continue
        if r == 0: stage2(Y)
        if r == 1: chains(); stage1(R, 0)
        if r == 2: diag()
        if r == 3: stage1(R, 2); phi(P+2)
        if r == 4: pstore(); stage2(Y)
        if r == 5: chains(); stage1(R+16, 0)
        if r == 6: diag()
        if r == 7: stage1(R+16, 2); phi(P)
    if st2 and st2 <= 16:
        A(f"s_cmp_lg_u32 s{sCNT}, {nsteps + 1 - st2}"); A("s_cbranch_scc1 L_nost"); stamp(2); A("L_nost:")
    A(f"s_sub_u32 s{sCNT}, s{sCNT}, 1"); A(f"s_cmp_lg_u32 s{sCNT}, 0"); A("s_cbranch_scc1 L_kloop")

    def vstep(kind):
        first, pre = kind == "first", kind == "pre"
        issued = dk if first else dv
        for r in range(8):
            n = r + dv
            if pre:
                x = (min(issued, 8) - r - 1) + 4 * max(issued - 8, 0)
            else:
                x = min(dv - 1 - (sv[r] == "1"), issued - r - 1) if issued <= n else issued - r - 1
            dl = dlo if (str(slo) * 8)[r] == "1" else dlo + 1
            if first and dlo: x = min(x, dl - 1)
            if kind == "mid" and dlo and dl < dv:
                A(f"s_cbranch_vccnz L_deep{r}"); A(f"s_waitcnt vmcnt({dl-1})"); A(f"L_deep{r}:")
            A(f"s_waitcnt vmcnt({x})")
            late = dv == 7 and (r & 1) and r < 7
            if late: perms(r >> 1)
            if r == 8 - dv and not pre: A(f"v_add_u32 v{vA}, {STEPB}, v{vA}")
            did = False
            def issue():
                nonlocal issued, did
                while issued <= n:
                    if pre and issued >= 8: lload(issued - 8)
                    else: load(issued & 7)
                    issued += 1; did = True
            if not (dv == 7 and r == 7): issue()
            if not did and r != 7: A("s_nop 0")
            if first:
                if r == 0: stage2(Y)
                if r == 1: chains()
                if r == 2:
                    if late or dv == 7: A("s_nop 1")
                    diag()
                if r == 3:
                    if not late: perms(1)
                    phi(P+2)
                if r == 4: pstore(); A(f"v_subrev_u32 v{vP}, {16*1024}, v{vP}"); zmfma(P)
                if r == 5: pread()
            else:
                if r == 2: pread()
                if r == 3 and not late: perms(1)
                if r == 4 and not pre:
                    A(f"s_cmp_eq_u32 s{sCNT}, s{sQIT}"); A("s_cbranch_scc1 L_q"); A("L_qret:")
            if r == 1 and not late: perms(0)
            if r == 5 and not late: perms(2)
            if r == 6:
                A("s_waitcnt lgkmcnt(0)")
                zmfma(PV)
            if r == 7:
                if dv == 7:
                    perms(3); issue()
                    for i in range(8): vmfma(i)
                else:
                    perms(3, mf=True)
    vstep("first")
    A(f"s_mov_b32 s{sCNT}, {nsteps-3}")
    if dlo: A("s_mov_b64 vcc, 0")
    if align: A(f".p2align {align}")
    A("L_vloop:")
    vstep("mid")
    if st2 > 16:
        A(f"s_cmp_lg_u32 s{sCNT}, {31 - st2}"); A("s_cbranch_scc1 L_nost"); stamp(2); A("L_nost:")
    A(f"s_sub_u32 s{sCNT}, s{sCNT}, 1")
    if dlo:
        A(f"s_cmp_le_u32 s{sCNT}, {nsteps-3-nlo}"); A("s_cselect_b64 vcc, -1, 0")
    A(f"s_cmp_lg_u32 s{sCNT}, 0"); A("s_cbranch_scc1 L_vloop")
    vstep("pre")
    A("s_mov_b32 exec_hi, 0")
    A(f"ds_write_b128 v5, {vr(ACC+32)} offset:{8*ISTR}")
    for i in range(8):
        A(f"ds_write_b128 v5, {vr(ACC+4*i)} offset:{i*ISTR}")
    A("s_mov_b32 exec_hi, -1")
    def lperms(u):
        B = VT + 8 * (u >> 1); X = R + 4 * u
        for i in range(2):
            for h in range(2):
                perm(B + 4*i + 2*(u & 1) + h, X + 2*h, X + 2*h + 1, i)
    def lmfma(wp):
        for i in range(2):
            A(f"v_mfma_f32_16x16x32_bf16 {vr(E+4*i)}, {vr(PL+4*wp)}, {vr(VT+8*wp+4*i)}, {vr(E+4*i)}")
    for u in range(8 - dv):
        A(f"s_waitcnt vmcnt({4*(dv-1)})")
        lload(u + dv)
        lperms(u)
    A("s_waitcnt lgkmcnt(0)")
    A("s_barrier")
    if epist: stamp(1)
    RZ, RE = U, ACC
    for x in range(4): A(f"ds_read_b128 {vr(RZ+4*x)}, v7 offset:{x*WSTR + 8*ISTR}")
    for i in range(2):
        for x in range(4): A(f"ds_read_b128 {vr(RE+16*i+4*x)}, v6 offset:{x*WSTR + i*ISTR}")
    A("s_waitcnt lgkmcnt(8)")
    for x in range(4):
        A(f"ds_read_b128 {vr(PL+4*x)}, v{vPL} offset:{x*PSTR}")
    for r in range(4): A(f"v_add_f32 v{RZ+r}, v{RZ+r}, v{RZ+4+r}")
    for r in range(4): A(f"v_add_f32 v{RZ+8+r}, v{RZ+8+r}, v{RZ+12+r}")
    for r in range(4): A(f"v_add_f32 v{RZ+r}, v{RZ+r}, v{RZ+8+r}")
    D0, D1 = Y, Y + 2
    for t in range(2): A(f"v_mul_f32 v{D0+t}, v{FQ+4*t}, v{RZ}")
    for r in range(1, 4):
        for t in range(2): A(f"v_fmac_f32 v{D0+t}, v{FQ+4*t+r}, v{RZ+r}")
    for t in range(2): A(f"v_mov_b32 v{D1+t}, v{D0+t}")
    A("s_nop 1")
    for t in range(2): A(f"v_permlane16_swap_b32 v{D0+t}, v{D1+t}")
    A("s_nop 1")
    for t in range(2): A(f"v_add_f32 v{D0+t}, v{D0+t}, v{D1+t}")
    for t in range(2): A(f"v_add_f32 v{D0+t}, {EPS:#x}, v{D0+t}")
    for t in range(2): A(f"v_rcp_f32 v{D0+t}, v{D0+t}")
    A("s_mov_b32 vcc_lo, 0"); A("s_mov_b32 vcc_hi, -1")
    for t in range(2):
        for r in range(4): A(f"v_mul_f32 v{FQ+4*t+r}, v{FQ+4*t+r}, v{D0+t}")
    T0, T1, HI = Y + 4, Y + 8, Y + 12
    for p in range(4): A(f"v_cvt_pk_bf16_f32 v{HI+p}, v{FQ+2*p}, v{FQ+2*p+1}")
    for p in range(4): A(f"v_lshlrev_b32 v{T0+p}, 16, v{HI+p}")
    for p in range(4): A(f"v_and_b32 v{T1+p}, 0xffff0000, v{HI+p}")
    for p in range(4): A(f"v_sub_f32 v{T0+p}, v{FQ+2*p}, v{T0+p}")
    for p in range(4): A(f"v_sub_f32 v{T1+p}, v{FQ+2*p+1}, v{T1+p}")
    for p in range(4): A(f"v_cvt_pk_bf16_f32 v{T0+p}, v{T0+p}, v{T1+p}")
    for p in range(4): A(f"v_cndmask_b32 v{WQ+p}, v{HI+p}, v{T0+p}, vcc")
    A("s_waitcnt lgkmcnt(4)")
    for i in range(2):
        B = RE + 16 * i
        for r in range(4): A(f"v_add_f32 v{B+r}, v{B+r}, v{B+4+r}")
        for r in range(4): A(f"v_add_f32 v{B+8+r}, v{B+8+r}, v{B+12+r}")
        for r in range(4): A(f"v_add_f32 v{E+4*i+r}, v{B+r}, v{B+8+r}")
    A("s_waitcnt lgkmcnt(0)")
    done = 0
    for u in range(8 - dv, 8):
        A(f"s_waitcnt vmcnt({4*(7-u)})")
        if u == 7: stamp(3)
        lperms(u)
        if u & 1:
            A("s_nop 1")
            while done <= (u >> 1):
                lmfma(done); done += 1
    PA = U
    A("s_nop 6")
    for i in range(2):
        A(f"v_cvt_pk_bf16_f32 v{PA+2*i}, v{E+4*i}, v{E+4*i+1}")
        A(f"v_cvt_pk_bf16_f32 v{PA+2*i+1}, v{E+4*i+2}, v{E+4*i+3}")
    A("s_nop 0")
    DD = ACC
    for t in range(2):
        for i in range(2):
            A(f"v_mfma_f32_16x16x16_bf16 {vr(DD+8*t+4*i)}, {vr(PA+2*i,2)}, {vr(WQ+2*t,2)}, 0")
    A("s_nop 5")
    for t in range(2):
        O = Y + 4*t
        for r in range(4): A(f"v_cvt_pk_bf16_f32 v{O+r}, v{DD+8*t+r}, v{DD+8*t+4+r}")
        if nostore == 3 and t == 0: A("s_mov_b64 exec, 1")
        if not nostore or (nostore in (2, 3) and t == 0): A(f"buffer_store_dwordx4 {vr(O)}, v{8+t}, s[{sOUT}:{sOUT+3}], 0 offen {spol}")
    if epist: stamp(2)
    if stamps >= 3:
        A("s_waitcnt vmcnt(0)")
        stamp(4)
        A(f"s_cmp_lg_u32 s{sW}, 0"); A("s_cbranch_scc1 L_end")
        A("s_waitcnt lgkmcnt(0)")
        if stamps == 7: A("s_sub_u32 s3, s72, s64"); A("s_lshl_b32 s3, s3, 1"); A("s_sub_u32 s3, 12000, s3")
        if stamps == 3: A("s_sub_u32 s3, s72, s64")
        A("s_min_u32 s3, s3, 50000")
        A("L_spin:")
        A("s_memrealtime s[74:75]"); A("s_waitcnt lgkmcnt(0)")
        A("s_sub_u32 s74, s74, s72"); A("s_cmp_lt_u32 s74, s3"); A("s_cbranch_scc1 L_spin")
    if stamps == 1:
        A("s_waitcnt vmcnt(0)")
        A("s_barrier")
        stamp(4)
        A(f"s_cmp_lg_u32 s{sW}, {rw}"); A("s_cbranch_scc1 L_end")
        A("s_getreg_b32 s3, hwreg(HW_REG_XCC_ID)")
        A("s_waitcnt lgkmcnt(0)")
        A("v_mov_b32 v12, s64"); A("v_mov_b32 v13, s65"); A("v_mov_b32 v14, s72"); A("v_mov_b32 v15, s73")
        A("v_mov_b32 v16, s3"); A("v_mov_b32 v17, 0")
        A("s_sub_u32 s66, s66, s64"); A("s_sub_u32 s68, s68, s64"); A("s_sub_u32 s70, s70, s64")
        A("s_lshl_b32 s68, s68, 16"); A("s_or_b32 s66, s66, s68")
        A("v_mov_b32 v18, s66"); A("v_mov_b32 v19, s70")
        A("s_lshl_b32 s3, s2, 5"); A("v_mov_b32 v11, s3")
        A("s_mov_b64 exec, 1")
        A("global_store_dwordx4 v11, v[12:15], s[14:15]")
        A("global_store_dwordx4 v11, v[16:19], s[14:15] offset:16")
    A("L_end:")
    A("s_endpgm")
    A("L_q:")
    for t in range(2):
        for jj in range(4):
            A(f"ds_read_b128 {vr(U+16*t+4*jj)}, v{vQR} offset:{t*16*RSTR + jj*16}")
    for t in range(2):
        A(f"s_waitcnt lgkmcnt({4*(1-t)})")
        chains(isq=True, X=U+16*t)
        A("s_nop 3")
        diag(isq=True)
        A("s_nop 9")
        phi(FQ+4*t, f32=True)
    A("s_branch L_qret")
    A("L_codeend:")
    nv = (NV + 7) // 8 * 8
    A('.section .rodata,"a"'); A(".p2align 6"); A(f".amdhsa_kernel {KN}")
    A(f"  .amdhsa_next_free_vgpr {nv}"); A("  .amdhsa_next_free_sgpr 80"); A(f"  .amdhsa_accum_offset {nv}")
    A("  .amdhsa_group_segment_fixed_size 0"); A("  .amdhsa_kernarg_size 56"); A("  .amdhsa_user_sgpr_count 2")
    A("  .amdhsa_user_sgpr_kernarg_segment_ptr 1"); A("  .amdhsa_system_sgpr_workgroup_id_x 1")
    A("  .amdhsa_float_denorm_mode_32 3")
    A(".end_amdhsa_kernel")
    return "\n".join(L) + "\n"

if __name__ == "__main__":
    name = sys.argv[1]; kw = {}
    for a in sys.argv[2:]:
        k, v = a.split("=")
        kw[k] = v if k in ("sk", "sv", "slo") else (int(v) if v.lstrip("-").isdigit() else v.replace("+", " "))
    open(name, "w").write(gen(**kw))
```

```python
import sys, struct, math
KN = "standalone__linear_kernel_rfa__sampling_kernel"

def f2u(x):
    return struct.unpack("<I", struct.pack("<f", x))[0]

HEADER = """; FAVOR+ linear attention (positive random features), one workgroup of 4 waves per (b,h).
"""

def gen(dk=6, dv=5, sk="0", sv="0", pol="nt", stamps=0, opol="", qpol="nt", spol="", qit=1, qstag=1,
        align=0, pf=1, st2=0, st1=0, epist=0, lpol=None, kfirst=0, prost=0, rw=0, spread=1, dlo=0, nlo=0, slo="1", nostore=0, ilv=0, ohalf=0, linst=0, oadj=0, qdiag=0):
    nw = 4
    L = []
    A = L.append
    nsteps = 16
    STEPB = 32 * nw * 256
    ISTR = 544
    WSTR = 9 * ISTR
    PSTR = 17 * 1024
    PBASE = nw * WSTR
    RSTR = 272
    OBASE = PBASE + nw * PSTR
    QBASE = OBASE + 8 * RSTR
    lds = QBASE + 32 * RSTR
    scale = 128.0 ** -0.25
    C1 = scale * math.log2(math.e)
    C2 = -1.5
    CF = -0.5 * scale
    EPS = f2u(1e-6)
    sk = str(sk) * 8; sv = str(sv) * 8
    if lpol is None: lpol = pol
    assert dk <= 7 and dv <= 7

    vA, vV0, vP, vL = 10, 11, 38, 39
    OM, ONES, vCF, vC2 = 12, 28, 32, 33
    WQ = 34
    R, VT = 40, 72
    U, Y = 104, 120
    G, S, PD, P, PV = 136, 140, 144, 148, 152
    FQ = 156
    PL = 164
    E = 180
    vQR, vPL = 188, 189
    ACC = 192
    NV = 228
    sS, sQ, sO, sOUT = 16, 24, 28, 32
    sVB = 20
    sM = 36
    sSELLO, sSELHI, sC1, sW, sCNT, sQIT = 44, 45, 46, 47, 48, 49
    sOFF0 = 50
    sX1, sX2 = 60, 62
    soffs = {}
    def soff(c):
        hi, lo = c & ~4095, c & 4095
        if hi == 0:
            return "0", lo
        if hi not in soffs:
            soffs[hi] = sOFF0 + len(soffs)
        return f"s{soffs[hi]}", lo
    def vr(b, n=4): return f"v[{b}:{b+n-1}]"
    def off(j8): return (j8 >> 2) * nw * 4096 + (j8 & 3) * 1024
    def loff(u, r): return ((u >> 1) + 4 * (u & 1)) * 4096 + r * 1024
    for j8 in range(8): soff(off(j8))
    for u in range(8): soff(loff(u, 0))
    def load(n):
        so, im = soff(off(n))
        A(f"buffer_load_dwordx4 {vr(R+4*n)}, v{vA}, s[{sS}:{sS+3}], {so} offen offset:{im} {pol}")
    def lload(u):
        for r in range(4):
            so, im = soff(loff(u, r))
            A(f"buffer_load_dword v{R+4*u+r}, v{vL}, s[{sS}:{sS+3}], {so} offen offset:{im} {lpol}")
    def stamp(i):
        if stamps: A(f"s_memrealtime s[{64+2*i}:{65+2*i}]")

    def dppsel(dst, own, other, perm):
        A(f"v_cndmask_b32_dpp v{dst}, v{other}, v{own}, vcc quad_perm:{perm} row_mask:0xf bank_mask:0xf")
    def stage1(X, j):
        A(f"s_mov_b64 vcc, s[{sX1}:{sX1+1}]")
        for dw in range(4): dppsel(U+4*j+dw, X+4*j+dw, X+4*(j+1)+dw, "[1,0,3,2]")
        A("s_not_b64 vcc, vcc")
        for dw in range(4): dppsel(U+4*(j+1)+dw, X+4*(j+1)+dw, X+4*j+dw, "[1,0,3,2]")
    def stage2(dst):
        A(f"s_mov_b64 vcc, s[{sX2}:{sX2+1}]")
        for j in (0, 1):
            for dw in range(4): dppsel(dst+4*j+dw, U+4*j+dw, U+4*(j+2)+dw, "[2,3,0,1]")
        A("s_not_b64 vcc, vcc")
        for j in (0, 1):
            for dw in range(4): dppsel(dst+4*(j+2)+dw, U+4*(j+2)+dw, U+4*j+dw, "[2,3,0,1]")
    def chains(isq=False, X=Y):
        for jj in range(4):
            k = X + 4*jj
            A(f"v_mfma_f32_16x16x32_bf16 {vr(G)}, {vr(k)}, {vr(k)}, {'0' if jj==0 else vr(G)}")
        for jj in range(4):
            k = X + 4*jj
            a, b = (OM+4*jj, k) if isq else (k, OM+4*jj)
            A(f"v_mfma_f32_16x16x32_bf16 {vr(S)}, {vr(a)}, {vr(b)}, {'0' if jj==0 else vr(S)}")
    def gs(jj):
        k = Y + 4*jj
        return [f"v_mfma_f32_16x16x32_bf16 {vr(G)}, {vr(k)}, {vr(k)}, {'0' if jj==0 else vr(G)}",
                f"v_mfma_f32_16x16x32_bf16 {vr(S)}, {vr(k)}, {vr(OM+4*jj)}, {'0' if jj==0 else vr(S)}"]
    def weave(valu, mf, start):
        mf = list(mf); cnt = 0
        for i, x in enumerate(valu):
            A(x)
            if i >= start and x.startswith("v_"):
                cnt += 1
                if cnt % 2 == 0 and mf: A(mf.pop(0))
        for x in mf: A(x)
    def diag(isq=False):
        A(f"v_cndmask_b32 v{PD}, 0, v{G}, s[{sM}:{sM+1}]")
        for r in range(1, 4):
            A(f"v_cndmask_b32 v{PD}, v{PD}, v{G+r}, s[{sM+2*r}:{sM+2*r+1}]")
        A("s_nop 1")
        a, b = (vCF, PD) if isq else (PD, vCF)
        A(f"v_mfma_f32_16x16x4_f32 {vr(S)}, v{a}, v{b}, {vr(S)}")
    def phi(dst, f32=False):
        for r in range(4): A(f"v_fma_f32 v{S+r}, v{S+r}, s{sC1}, v{vC2}")
        for r in range(4): A(f"v_exp_f32 v{S+r}, v{S+r}")
        if f32:
            for r in range(4): A(f"v_add_f32 v{dst+r}, {EPS:#x}, v{S+r}")
            return
        for r in range(4): A(f"v_add_f32 v{S+r}, {EPS:#x}, v{S+r}")
        A(f"v_cvt_pk_bf16_f32 v{dst}, v{S}, v{S+1}")
        A(f"v_cvt_pk_bf16_f32 v{dst+1}, v{S+2}, v{S+3}")
    def vmfma(i):
        A(f"v_mfma_f32_16x16x32_bf16 {vr(ACC+4*i)}, {vr(PV)}, {vr(VT+4*i)}, {vr(ACC+4*i)}")
    def zmfma(src):
        A(f"v_mfma_f32_16x16x32_bf16 {vr(ACC+32)}, {vr(src)}, {vr(ONES)}, {vr(ACC+32)}")
    def perm(dst, a, b, hi):
        A(f"v_perm_b32 v{dst}, v{b}, v{a}, s{sSELHI if hi else sSELLO}")
    def perms(jp, mf=False):
        a, b = R + 8*jp, R + 8*jp + 4
        for i in range(8):
            perm(VT+4*i+jp, a+(i>>1), b+(i>>1), i & 1)
            if mf and i >= 2: vmfma(i-2)
        if mf:
            vmfma(6); vmfma(7)
    def pstore():
        A(f"ds_write_b128 v{vP}, {vr(P)}")
        A(f"v_add_u32 v{vP}, 1024, v{vP}")
    def pread():
        A(f"ds_read_b128 {vr(PV)}, v{vP}"); A(f"v_add_u32 v{vP}, 1024, v{vP}")

    A(HEADER + f"; @launch grid=(256,1,1) block=({nw*64},1,1) lds={lds}")
    A('.amdgcn_target "amdgcn-amd-amdhsa--gfx950"')
    A(".text"); A(f".globl {KN}"); A(".p2align 8"); A(f".type {KN},@function"); A(f"{KN}:")
    stamp(0)
    A("s_cmp_ge_u32 s2, 256"); A("s_cbranch_scc1 L_end")
    A("s_load_dwordx8 s[4:11], s[0:1], 0         ; q k v omega")
    if pf:
        A("s_getpc_b64 s[76:77]")
        A("L_pc:")
        A(f"v_lshlrev_b32 v3, {7 if pf == 1 else 6}, v0")
        A("v_min_u32 v3, L_codeend-L_pc-4, v3")
        A(f"global_load_dword v{PD}, v3, s[76:77]")
    A("s_load_dwordx2 s[12:13], s[0:1], 32       ; out")
    if stamps:
        A(f"s_load_dwordx2 s[14:15], s[0:1], {48 if stamps==1 else 40}")
    A("v_lshrrev_b32 v1, 6, v0            ; wave")
    A("v_and_b32 v2, 63, v0               ; lane")
    A("v_lshrrev_b32 v4, 4, v2            ; g = l>>4")
    A("v_bfe_u32 v6, v2, 2, 2             ; a = l3l2")
    A(f"v_readfirstlane_b32 s{sW}, v1")
    A("v_and_b32 v5, 3, v2"); A("v_lshlrev_b32 v5, 4, v5"); A("v_lshl_add_u32 v5, v4, 6, v5")
    A(f"v_lshl_add_u32 v{vA}, v6, 8, v5")
    A(f"v_lshl_add_u32 v{vA}, v1, 12, v{vA}")
    A("v_lshlrev_b32 v5, 4, v2            ; lane*16")
    A("v_and_b32 v7, 0x7f, v0"); A("v_lshlrev_b32 v7, 4, v7")
    A("v_lshl_add_u32 v8, v1, 11, v5      ; q offset")
    for hi, s in soffs.items():
        A(f"s_mov_b32 s{s}, {hi}")
    A("s_lshl_b32 s3, s2, 19")
    A("s_lshl_b32 s22, s2, 13")
    A(f"s_mov_b32 s{sS+2}, 524288"); A(f"s_mov_b32 s{sS+3}, 0x20000")
    A(f"s_mov_b32 s{sO+2}, 2048"); A(f"s_mov_b32 s{sO+3}, 0x20000")
    A(f"s_mov_b32 s{sQ+2}, 8192"); A(f"s_mov_b32 s{sQ+3}, 0x20000")
    A("s_waitcnt lgkmcnt(0)")
    if not epist and not st1 and not prost: stamp(1)
    A(f"s_mov_b32 s{sO}, s10"); A(f"s_mov_b32 s{sO+1}, s11")
    lds_ = []
    def grab(fn):
        n0 = len(L); fn(); out = L[n0:]; del L[n0:]; return out
    ld_lines = []
    ld_lines += [f"buffer_load_dwordx4 {vr(VT)}, v7, s[{sO}:{sO+3}], 0 offen {opol}"]
    for j in range(2):
        if not qdiag: ld_lines += [f"buffer_load_dwordx4 {vr(VT+4+4*j)}, v8, s[{sQ}:{sQ+3}], 0 offen offset:{j*1024} {qpol}"]
    if qdiag: A("v_mov_b32 v190, v8")
    for n in range(dk): ld_lines += grab(lambda: load(n))
    def setup():
        A(f"s_add_u32 s{sQ}, s4, s22"); A(f"s_addc_u32 s{sQ+1}, s5, 0")
        A(f"s_add_u32 s{sS}, s6, s3"); A(f"s_addc_u32 s{sS+1}, s7, 0")
        A(f"s_add_u32 s{sVB}, s8, s3"); A(f"s_addc_u32 s{sVB+1}, s9, 0")
        A(f"s_add_u32 s{sOUT}, s12, s22"); A(f"s_addc_u32 s{sOUT+1}, s13, 0")
        A(f"s_mov_b32 s{sOUT+2}, 8192"); A(f"s_mov_b32 s{sOUT+3}, 0x20000")
        A("v_and_b32 v3, 15, v2               ; n = l&15")
        A(f"v_bfe_u32 v{G}, v0, 4, 3"); A(f"v_mul_u32_u24 v{G}, {RSTR}, v{G}"); A(f"v_lshl_add_u32 v{G}, v3, 4, v{G}")
        A(f"v_lshl_add_u32 v{G+1}, v1, 3, v4"); A(f"v_mul_u32_u24 v{G+1}, {RSTR}, v{G+1}"); A(f"v_lshl_add_u32 v{G+1}, v3, 4, v{G+1}")
        A("v_and_b32 v9, 7, v2"); A(f"v_mul_u32_u24 v9, {RSTR}, v9"); A("v_lshl_add_u32 v9, v4, 6, v9")
        A(f"v_mul_u32_u24 v{vQR}, {RSTR}, v3"); A(f"v_lshl_add_u32 v{vQR}, v4, 6, v{vQR}")
        A(f"v_add_u32 v{vQR}, {QBASE}, v{vQR}")
        A(f"v_add_u32 v{G}, {OBASE}, v{G}"); A(f"v_add_u32 v{G+1}, {QBASE}, v{G+1}"); A(f"v_add_u32 v9, {OBASE}, v9")
        for r in range(4):
            A(f"s_mov_b32 s{sM+2*r}, {(1<<r)|(1<<(20+r))}"); A(f"s_mov_b32 s{sM+2*r+1}, {(1<<(8+r))|(1<<(28+r))}")
        A(f"s_mov_b32 s{sSELLO}, 0x05040100"); A(f"s_mov_b32 s{sSELHI}, 0x07060302")
        A(f"s_mov_b32 s{sC1}, {f2u(C1):#x}")
        A(f"s_mov_b32 s{sX1}, 0x55555555"); A(f"s_mov_b32 s{sX1+1}, 0x55555555")
        A(f"s_mov_b32 s{sX2}, 0x33333333"); A(f"s_mov_b32 s{sX2+1}, 0x33333333")
        A(f"v_mov_b32 v{vCF}, {f2u(CF):#x}"); A(f"v_mov_b32 v{vC2}, {f2u(C2):#x}")
        for r in range(4): A(f"v_mov_b32 v{ONES+r}, 0x3f803f80")
        for r in range(36): A(f"v_mov_b32 v{ACC+r}, 0")
        if qstag:
            A(f"s_sub_u32 s{sQIT}, {nsteps-2-qit}, s{sW}")
        else:
            A(f"s_mov_b32 s{sQIT}, {nsteps-2-qit}")
        A(f"s_mov_b32 s{sCNT}, {nsteps}")
        A(f"v_lshl_add_u32 v{vV0}, v1, 12, v5")
        A(f"s_mul_i32 s3, s{sW}, {PSTR}"); A(f"s_add_u32 s3, s3, {PBASE}")
        A(f"v_add_u32 v{vP}, s3, v5")
        A(f"v_add_u32 v{vPL}, {PBASE + 16*1024}, v5")
        A(f"v_lshlrev_b32 v{vL}, 8, v4"); A(f"v_lshl_add_u32 v{vL}, v1, 6, v{vL}"); A(f"v_lshl_add_u32 v{vL}, v3, 2, v{vL}")
        A(f"v_add_u32 v{vL}, {15*STEPB}, v{vL}")
    su = grab(setup)
    if spread:
        gaps = len(ld_lines) - 1 - (1 if oadj else 0)
        per = -(-(len(su) - (2 if oadj else 0)) // gaps) if spread == 1 else spread
        if oadj == 2:
            for x in su[:2]: A(x)
            su = su[2:]
            ld_lines[0], ld_lines[1] = ld_lines[1], ld_lines[0]
        for k, ld in enumerate(ld_lines):
            A(ld)
            cnt = max(per, 4 if k == 0 else 0)
            if oadj and k == 0: cnt = 2 if oadj == 1 else 0
            take = su[:cnt]; su = su[len(take):]
            for x in take: A(x)
        for x in su: A(x)
    else:
        for x in su[:4]: A(x)
        for ld in ld_lines: A(ld)
        for x in su[4:]: A(x)
    if prost == 1: stamp(1)
    A(f"s_waitcnt vmcnt({dk})")
    if prost == 1: stamp(2)
    if prost == 2: stamp(1)
    if not st2 and not epist and not prost: stamp(2)
    A(f"ds_write_b128 v{G}, {vr(VT)}")
    A(f"ds_write_b128 v{G+1}, {vr(VT+4)}")
    A(f"ds_write_b128 v{G+1}, {vr(VT+8)} offset:{4*RSTR}")
    A(f"s_mul_i32 s3, s{sW}, {WSTR}")
    A("v_add_u32 v5, s3, v5")
    A("v_and_b32 v7, 3, v2"); A(f"v_mul_u32_u24 v7, {2*ISTR}, v7")
    A("v_lshl_add_u32 v6, v6, 4, v7")
    A("v_and_b32 v7, 1, v4"); A("v_lshlrev_b32 v7, 8, v7"); A("v_add_u32 v6, v6, v7")
    A(f"s_lshl_b32 s3, s{sW}, 6"); A("v_add_u32 v6, s3, v6")
    A("v_lshlrev_b32 v8, 8, v3"); A("v_lshl_add_u32 v8, v4, 4, v8"); A("v_add_u32 v8, s3, v8")
    A("s_waitcnt lgkmcnt(0)")
    if prost == 2: stamp(2)
    A("s_barrier")
    for jj in range(4):
        A(f"ds_read_b128 {vr(OM+4*jj)}, v9 offset:{jj*16}")
    A("v_add_u32 v9, 4096, v8")
    if linst:
        A("v_lshlrev_b32 v8, 4, v2"); A("v_lshl_add_u32 v8, v1, 11, v8"); A("v_add_u32 v9, 1024, v8")
    if st1: stamp(1)

    if align: A(f".p2align {align}")
    A("L_kloop:")
    for r in range(8):
        x = dk - 1
        if sk[r] == "1": x -= 1
        A(f"s_waitcnt vmcnt({x})" + (" lgkmcnt(0)" if r == (4 if ilv else 5) else ""))
        late = dk == 7 and (r & 1)
        def issue():
            if r == 8 - dk:
                A(f"v_add_u32 v{vA}, {STEPB}, v{vA}")
                A(f"s_cmp_lg_u32 s{sCNT}, 1"); A("s_cbranch_scc1 L_nosw")
                A(f"s_mov_b32 s{sS}, s{sVB}"); A(f"s_mov_b32 s{sS+1}, s{sVB+1}"); A(f"v_mov_b32 v{vA}, v{vV0}")
                A("L_nosw:")
            load((r + dk) & 7)
        if late:
            stage1(R + 16 * (r >> 2), r & 2); issue()
            if r in (1, 5): chains()
            if r == 3: phi(P+2)
            if r == 7: phi(P)
            continue
        issue()
        if dk == 7 and r in (2, 6): A("s_nop 1")
        if ilv:
            assert dk <= 6
            if r == 4: pstore()
            if r in (0, 4): weave(grab(lambda: stage2(Y)), gs(0) + gs(1), 10)
            if r in (1, 5):
                g3, s3 = gs(3); g2, s2 = gs(2)
                weave(grab(lambda: stage1(R + 16 * (r >> 2), 0)), [g2, g3, s2, s3], 0)
            if r in (2, 6): diag()
            if r in (3, 7): stage1(R + 16 * (r >> 2), 2); phi(P + (2 if r == 3 else 0))
            continue
        if r == 0: stage2(Y)
        if r == 1: chains(); stage1(R, 0)
        if r == 2: diag()
        if r == 3: stage1(R, 2); phi(P+2)
        if r == 4: pstore(); stage2(Y)
        if r == 5: chains(); stage1(R+16, 0)
        if r == 6: diag()
        if r == 7: stage1(R+16, 2); phi(P)
    if st2 and st2 <= 16:
        A(f"s_cmp_lg_u32 s{sCNT}, {nsteps + 1 - st2}"); A("s_cbranch_scc1 L_nost"); stamp(2); A("L_nost:")
    A(f"s_sub_u32 s{sCNT}, s{sCNT}, 1"); A(f"s_cmp_lg_u32 s{sCNT}, 0"); A("s_cbranch_scc1 L_kloop")

    def vstep(kind):
        first, pre = kind == "first", kind == "pre"
        issued = dk if first else dv
        for r in range(8):
            n = r + dv
            if pre:
                x = (min(issued, 8) - r - 1) + 4 * max(issued - 8, 0)
            else:
                x = min(dv - 1 - (sv[r] == "1"), issued - r - 1) if issued <= n else issued - r - 1
            dl = dlo if (str(slo) * 8)[r] == "1" else dlo + 1
            if first and dlo: x = min(x, dl - 1)
            if kind == "mid" and dlo and dl < dv:
                A(f"s_cbranch_vccnz L_deep{r}"); A(f"s_waitcnt vmcnt({dl-1})"); A(f"L_deep{r}:")
            A(f"s_waitcnt vmcnt({x})")
            late = dv == 7 and (r & 1) and r < 7
            if late: perms(r >> 1)
            if r == 8 - dv and not pre: A(f"v_add_u32 v{vA}, {STEPB}, v{vA}")
            did = False
            def issue():
                nonlocal issued, did
                while issued <= n:
                    if pre and issued >= 8: lload(issued - 8)
                    else: load(issued & 7)
                    issued += 1; did = True
            if not (dv == 7 and r == 7): issue()
            if not did and r != 7: A("s_nop 0")
            if pre and r == 0 and qdiag == 1:
                for j in range(2): A(f"buffer_load_dwordx4 {vr(Y+4*j)}, v190, s[{sQ}:{sQ+3}], 0 offen offset:{j*1024} {qpol}")
            if first:
                if r == 0: stage2(Y)
                if r == 1: chains()
                if r == 2:
                    if late or dv == 7: A("s_nop 1")
                    diag()
                if r == 3:
                    if not late: perms(1)
                    phi(P+2)
                if r == 4: pstore(); A(f"v_subrev_u32 v{vP}, {16*1024}, v{vP}"); zmfma(P)
                if r == 5: pread()
            else:
                if r == 2: pread()
                if r == 3 and not late: perms(1)
                if r == 4 and not pre:
                    A(f"s_cmp_eq_u32 s{sCNT}, s{sQIT}"); A("s_cbranch_scc1 L_q"); A("L_qret:")
            if r == 1 and not late: perms(0)
            if r == 5 and not late: perms(2)
            if r == 6:
                A("s_waitcnt lgkmcnt(0)")
                zmfma(PV)
            if r == 7:
                if dv == 7:
                    perms(3); issue()
                    for i in range(8): vmfma(i)
                else:
                    perms(3, mf=True)
    vstep("first")
    A(f"s_mov_b32 s{sCNT}, {nsteps-3}")
    if dlo: A("s_mov_b64 vcc, 0")
    if align: A(f".p2align {align}")
    A("L_vloop:")
    vstep("mid")
    if st2 > 16:
        A(f"s_cmp_lg_u32 s{sCNT}, {31 - st2}"); A("s_cbranch_scc1 L_nost"); stamp(2); A("L_nost:")
    A(f"s_sub_u32 s{sCNT}, s{sCNT}, 1")
    if dlo:
        A(f"s_cmp_le_u32 s{sCNT}, {nsteps-3-nlo}"); A("s_cselect_b64 vcc, -1, 0")
    A(f"s_cmp_lg_u32 s{sCNT}, 0"); A("s_cbranch_scc1 L_vloop")
    vstep("pre")
    A("s_mov_b32 exec_hi, 0")
    A(f"ds_write_b128 v5, {vr(ACC+32)} offset:{8*ISTR}")
    for i in range(8):
        A(f"ds_write_b128 v5, {vr(ACC+4*i)} offset:{i*ISTR}")
    A("s_mov_b32 exec_hi, -1")
    def lperms(u):
        B = VT + 8 * (u >> 1); X = R + 4 * u
        for i in range(2):
            for h in range(2):
                perm(B + 4*i + 2*(u & 1) + h, X + 2*h, X + 2*h + 1, i)
    def lmfma(wp):
        for i in range(2):
            A(f"v_mfma_f32_16x16x32_bf16 {vr(E+4*i)}, {vr(PL+4*wp)}, {vr(VT+8*wp+4*i)}, {vr(E+4*i)}")
    for u in range(8 - dv):
        A(f"s_waitcnt vmcnt({4*(dv-1)})")
        lload(u + dv)
        lperms(u)
    A("s_waitcnt lgkmcnt(0)")
    A("s_barrier")
    if epist: stamp(1)
    RZ, RE = U, ACC
    for x in range(4): A(f"ds_read_b128 {vr(RZ+4*x)}, v7 offset:{x*WSTR + 8*ISTR}")
    for i in range(2):
        for x in range(4): A(f"ds_read_b128 {vr(RE+16*i+4*x)}, v6 offset:{x*WSTR + i*ISTR}")
    A("s_waitcnt lgkmcnt(8)")
    for x in range(4):
        A(f"ds_read_b128 {vr(PL+4*x)}, v{vPL} offset:{x*PSTR}")
    for r in range(4): A(f"v_add_f32 v{RZ+r}, v{RZ+r}, v{RZ+4+r}")
    for r in range(4): A(f"v_add_f32 v{RZ+8+r}, v{RZ+8+r}, v{RZ+12+r}")
    for r in range(4): A(f"v_add_f32 v{RZ+r}, v{RZ+r}, v{RZ+8+r}")
    D0, D1 = Y, Y + 2
    for t in range(2): A(f"v_mul_f32 v{D0+t}, v{FQ+4*t}, v{RZ}")
    for r in range(1, 4):
        for t in range(2): A(f"v_fmac_f32 v{D0+t}, v{FQ+4*t+r}, v{RZ+r}")
    for t in range(2): A(f"v_mov_b32 v{D1+t}, v{D0+t}")
    A("s_nop 1")
    for t in range(2): A(f"v_permlane16_swap_b32 v{D0+t}, v{D1+t}")
    A("s_nop 1")
    for t in range(2): A(f"v_add_f32 v{D0+t}, v{D0+t}, v{D1+t}")
    for t in range(2): A(f"v_add_f32 v{D0+t}, {EPS:#x}, v{D0+t}")
    for t in range(2): A(f"v_rcp_f32 v{D0+t}, v{D0+t}")
    A("s_mov_b32 vcc_lo, 0"); A("s_mov_b32 vcc_hi, -1")
    for t in range(2):
        for r in range(4): A(f"v_mul_f32 v{FQ+4*t+r}, v{FQ+4*t+r}, v{D0+t}")
    T0, T1, HI = Y + 4, Y + 8, Y + 12
    for p in range(4): A(f"v_cvt_pk_bf16_f32 v{HI+p}, v{FQ+2*p}, v{FQ+2*p+1}")
    for p in range(4): A(f"v_lshlrev_b32 v{T0+p}, 16, v{HI+p}")
    for p in range(4): A(f"v_and_b32 v{T1+p}, 0xffff0000, v{HI+p}")
    for p in range(4): A(f"v_sub_f32 v{T0+p}, v{FQ+2*p}, v{T0+p}")
    for p in range(4): A(f"v_sub_f32 v{T1+p}, v{FQ+2*p+1}, v{T1+p}")
    for p in range(4): A(f"v_cvt_pk_bf16_f32 v{T0+p}, v{T0+p}, v{T1+p}")
    for p in range(4): A(f"v_cndmask_b32 v{WQ+p}, v{HI+p}, v{T0+p}, vcc")
    A("s_waitcnt lgkmcnt(4)")
    for i in range(2):
        B = RE + 16 * i
        for r in range(4): A(f"v_add_f32 v{B+r}, v{B+r}, v{B+4+r}")
        for r in range(4): A(f"v_add_f32 v{B+8+r}, v{B+8+r}, v{B+12+r}")
        for r in range(4): A(f"v_add_f32 v{E+4*i+r}, v{B+r}, v{B+8+r}")
    A("s_waitcnt lgkmcnt(0)")
    done = 0
    for u in range(8 - dv, 8):
        A(f"s_waitcnt vmcnt({4*(7-u)})")
        if u == 7: stamp(3)
        lperms(u)
        if u & 1:
            A("s_nop 1")
            while done <= (u >> 1):
                lmfma(done); done += 1
    PA = U
    A("s_nop 6")
    for i in range(2):
        A(f"v_cvt_pk_bf16_f32 v{PA+2*i}, v{E+4*i}, v{E+4*i+1}")
        A(f"v_cvt_pk_bf16_f32 v{PA+2*i+1}, v{E+4*i+2}, v{E+4*i+3}")
    A("s_nop 0")
    DD = ACC
    for t in range(2):
        for i in range(2):
            A(f"v_mfma_f32_16x16x16_bf16 {vr(DD+8*t+4*i)}, {vr(PA+2*i,2)}, {vr(WQ+2*t,2)}, 0")
    A("s_nop 5")
    for t in range(2):
        O = Y + 4*t
        for r in range(4): A(f"v_cvt_pk_bf16_f32 v{O+r}, v{DD+8*t+r}, v{DD+8*t+4+r}")
        if nostore == 3 and t == 0: A("s_mov_b64 exec, 1")
        if not nostore or (nostore in (2, 3) and t == 0): A(f"buffer_store_dwordx4 {vr(O)}, v{8+t}, s[{sOUT}:{sOUT+3}], 0 offen {spol}")
    if epist: stamp(2)
    if stamps >= 3:
        A("s_waitcnt vmcnt(0)")
        stamp(4)
        A(f"s_cmp_lg_u32 s{sW}, 0"); A("s_cbranch_scc1 L_end")
        A("s_waitcnt lgkmcnt(0)")
        if stamps == 7: A("s_sub_u32 s3, s72, s64"); A("s_lshl_b32 s3, s3, 1"); A("s_sub_u32 s3, 12000, s3")
        if stamps == 3: A("s_sub_u32 s3, s72, s64")
        A("s_min_u32 s3, s3, 50000")
        A("L_spin:")
        A("s_memrealtime s[74:75]"); A("s_waitcnt lgkmcnt(0)")
        A("s_sub_u32 s74, s74, s72"); A("s_cmp_lt_u32 s74, s3"); A("s_cbranch_scc1 L_spin")
    if stamps == 1:
        A("s_waitcnt vmcnt(0)")
        A("s_barrier")
        stamp(4)
        A(f"s_cmp_lg_u32 s{sW}, {rw}"); A("s_cbranch_scc1 L_end")
        A("s_getreg_b32 s3, hwreg(HW_REG_XCC_ID)")
        A("s_waitcnt lgkmcnt(0)")
        A("v_mov_b32 v12, s64"); A("v_mov_b32 v13, s65"); A("v_mov_b32 v14, s72"); A("v_mov_b32 v15, s73")
        A("v_mov_b32 v16, s3"); A("v_mov_b32 v17, 0")
        A("s_sub_u32 s66, s66, s64"); A("s_sub_u32 s68, s68, s64"); A("s_sub_u32 s70, s70, s64")
        A("s_lshl_b32 s68, s68, 16"); A("s_or_b32 s66, s66, s68")
        A("v_mov_b32 v18, s66"); A("v_mov_b32 v19, s70")
        A("s_lshl_b32 s3, s2, 5"); A("v_mov_b32 v11, s3")
        A("s_mov_b64 exec, 1")
        A("global_store_dwordx4 v11, v[12:15], s[14:15]")
        A("global_store_dwordx4 v11, v[16:19], s[14:15] offset:16")
    A("L_end:")
    A("s_endpgm")
    A("L_q:")
    for t in range(2):
        for jj in range(4):
            A(f"ds_read_b128 {vr(U+16*t+4*jj)}, v{vQR} offset:{t*16*RSTR + jj*16}")
    for t in range(2):
        A(f"s_waitcnt lgkmcnt({4*(1-t)})")
        chains(isq=True, X=U+16*t)
        A("s_nop 3")
        diag(isq=True)
        A("s_nop 9")
        phi(FQ+4*t, f32=True)
    A("s_branch L_qret")
    A("L_codeend:")
    nv = (NV + 7) // 8 * 8
    A('.section .rodata,"a"'); A(".p2align 6"); A(f".amdhsa_kernel {KN}")
    A(f"  .amdhsa_next_free_vgpr {nv}"); A("  .amdhsa_next_free_sgpr 80"); A(f"  .amdhsa_accum_offset {nv}")
    A("  .amdhsa_group_segment_fixed_size 0"); A("  .amdhsa_kernarg_size 56"); A("  .amdhsa_user_sgpr_count 2")
    A("  .amdhsa_user_sgpr_kernarg_segment_ptr 1"); A("  .amdhsa_system_sgpr_workgroup_id_x 1")
    A("  .amdhsa_float_denorm_mode_32 3")
    A(".end_amdhsa_kernel")
    return "\n".join(L) + "\n"

if __name__ == "__main__":
    name = sys.argv[1]; kw = {}
    for a in sys.argv[2:]:
        k, v = a.split("=")
        kw[k] = v if k in ("sk", "sv", "slo") else (int(v) if v.lstrip("-").isdigit() else v.replace("+", " "))
    open(name, "w").write(gen(**kw))
```

```python
import sys, struct, math
KN = "standalone__linear_kernel_rfa__sampling_kernel"

def f2u(x):
    return struct.unpack("<I", struct.pack("<f", x))[0]

HEADER = """; FAVOR+ linear attention (positive random features), one workgroup of 4 waves per (b,h).
"""

def gen(dk=6, dv=5, sk="0", sv="0", pol="nt", stamps=0, opol="", qpol="nt", spol="", qit=1, qstag=1,
        align=0, pf=1, st2=0, st1=0, epist=0, lpol=None, kfirst=0, prost=0, rw=0, spread=1, dlo=0, nlo=0, slo="1", nostore=0, ilv=0, ohalf=0, linst=0, oadj=0, qdiag=0, tlbo=0, tlbv=0):
    nw = 4
    L = []
    A = L.append
    nsteps = 16
    STEPB = 32 * nw * 256
    ISTR = 544
    WSTR = 9 * ISTR
    PSTR = 17 * 1024
    PBASE = nw * WSTR
    RSTR = 272
    OBASE = PBASE + nw * PSTR
    QBASE = OBASE + 8 * RSTR
    lds = QBASE + 32 * RSTR
    scale = 128.0 ** -0.25
    C1 = scale * math.log2(math.e)
    C2 = -1.5
    CF = -0.5 * scale
    EPS = f2u(1e-6)
    sk = str(sk) * 8; sv = str(sv) * 8
    if lpol is None: lpol = pol
    assert dk <= 7 and dv <= 7

    vA, vV0, vP, vL = 10, 11, 38, 39
    OM, ONES, vCF, vC2 = 12, 28, 32, 33
    WQ = 34
    R, VT = 40, 72
    U, Y = 104, 120
    G, S, PD, P, PV = 136, 140, 144, 148, 152
    FQ = 156
    PL = 164
    E = 180
    vZ = 191
    vQR, vPL = 188, 189
    ACC = 192
    NV = 228
    sS, sQ, sO, sOUT = 16, 24, 28, 32
    sVB = 20
    sM = 36
    sSELLO, sSELHI, sC1, sW, sCNT, sQIT = 44, 45, 46, 47, 48, 49
    sOFF0 = 50
    sX1, sX2 = 60, 62
    soffs = {}
    def soff(c):
        hi, lo = c & ~4095, c & 4095
        if hi == 0:
            return "0", lo
        if hi not in soffs:
            soffs[hi] = sOFF0 + len(soffs)
        return f"s{soffs[hi]}", lo
    def vr(b, n=4): return f"v[{b}:{b+n-1}]"
    def off(j8): return (j8 >> 2) * nw * 4096 + (j8 & 3) * 1024
    def loff(u, r): return ((u >> 1) + 4 * (u & 1)) * 4096 + r * 1024
    for j8 in range(8): soff(off(j8))
    for u in range(8): soff(loff(u, 0))
    def load(n):
        so, im = soff(off(n))
        A(f"buffer_load_dwordx4 {vr(R+4*n)}, v{vA}, s[{sS}:{sS+3}], {so} offen offset:{im} {pol}")
    def lload(u):
        for r in range(4):
            so, im = soff(loff(u, r))
            A(f"buffer_load_dword v{R+4*u+r}, v{vL}, s[{sS}:{sS+3}], {so} offen offset:{im} {lpol}")
    def stamp(i):
        if stamps: A(f"s_memrealtime s[{64+2*i}:{65+2*i}]")

    def dppsel(dst, own, other, perm):
        A(f"v_cndmask_b32_dpp v{dst}, v{other}, v{own}, vcc quad_perm:{perm} row_mask:0xf bank_mask:0xf")
    def stage1(X, j):
        A(f"s_mov_b64 vcc, s[{sX1}:{sX1+1}]")
        for dw in range(4): dppsel(U+4*j+dw, X+4*j+dw, X+4*(j+1)+dw, "[1,0,3,2]")
        A("s_not_b64 vcc, vcc")
        for dw in range(4): dppsel(U+4*(j+1)+dw, X+4*(j+1)+dw, X+4*j+dw, "[1,0,3,2]")
    def stage2(dst):
        A(f"s_mov_b64 vcc, s[{sX2}:{sX2+1}]")
        for j in (0, 1):
            for dw in range(4): dppsel(dst+4*j+dw, U+4*j+dw, U+4*(j+2)+dw, "[2,3,0,1]")
        A("s_not_b64 vcc, vcc")
        for j in (0, 1):
            for dw in range(4): dppsel(dst+4*(j+2)+dw, U+4*(j+2)+dw, U+4*j+dw, "[2,3,0,1]")
    def chains(isq=False, X=Y):
        for jj in range(4):
            k = X + 4*jj
            A(f"v_mfma_f32_16x16x32_bf16 {vr(G)}, {vr(k)}, {vr(k)}, {'0' if jj==0 else vr(G)}")
        for jj in range(4):
            k = X + 4*jj
            a, b = (OM+4*jj, k) if isq else (k, OM+4*jj)
            A(f"v_mfma_f32_16x16x32_bf16 {vr(S)}, {vr(a)}, {vr(b)}, {'0' if jj==0 else vr(S)}")
    def gs(jj):
        k = Y + 4*jj
        return [f"v_mfma_f32_16x16x32_bf16 {vr(G)}, {vr(k)}, {vr(k)}, {'0' if jj==0 else vr(G)}",
                f"v_mfma_f32_16x16x32_bf16 {vr(S)}, {vr(k)}, {vr(OM+4*jj)}, {'0' if jj==0 else vr(S)}"]
    def weave(valu, mf, start):
        mf = list(mf); cnt = 0
        for i, x in enumerate(valu):
            A(x)
            if i >= start and x.startswith("v_"):
                cnt += 1
                if cnt % 2 == 0 and mf: A(mf.pop(0))
        for x in mf: A(x)
    def diag(isq=False):
        A(f"v_cndmask_b32 v{PD}, 0, v{G}, s[{sM}:{sM+1}]")
        for r in range(1, 4):
            A(f"v_cndmask_b32 v{PD}, v{PD}, v{G+r}, s[{sM+2*r}:{sM+2*r+1}]")
        A("s_nop 1")
        a, b = (vCF, PD) if isq else (PD, vCF)
        A(f"v_mfma_f32_16x16x4_f32 {vr(S)}, v{a}, v{b}, {vr(S)}")
    def phi(dst, f32=False):
        for r in range(4): A(f"v_fma_f32 v{S+r}, v{S+r}, s{sC1}, v{vC2}")
        for r in range(4): A(f"v_exp_f32 v{S+r}, v{S+r}")
        if f32:
            for r in range(4): A(f"v_add_f32 v{dst+r}, {EPS:#x}, v{S+r}")
            return
        for r in range(4): A(f"v_add_f32 v{S+r}, {EPS:#x}, v{S+r}")
        A(f"v_cvt_pk_bf16_f32 v{dst}, v{S}, v{S+1}")
        A(f"v_cvt_pk_bf16_f32 v{dst+1}, v{S+2}, v{S+3}")
    def vmfma(i):
        A(f"v_mfma_f32_16x16x32_bf16 {vr(ACC+4*i)}, {vr(PV)}, {vr(VT+4*i)}, {vr(ACC+4*i)}")
    def zmfma(src):
        A(f"v_mfma_f32_16x16x32_bf16 {vr(ACC+32)}, {vr(src)}, {vr(ONES)}, {vr(ACC+32)}")
    def perm(dst, a, b, hi):
        A(f"v_perm_b32 v{dst}, v{b}, v{a}, s{sSELHI if hi else sSELLO}")
    def perms(jp, mf=False):
        a, b = R + 8*jp, R + 8*jp + 4
        for i in range(8):
            perm(VT+4*i+jp, a+(i>>1), b+(i>>1), i & 1)
            if mf and i >= 2: vmfma(i-2)
        if mf:
            vmfma(6); vmfma(7)
    def pstore():
        A(f"ds_write_b128 v{vP}, {vr(P)}")
        A(f"v_add_u32 v{vP}, 1024, v{vP}")
    def pread():
        A(f"ds_read_b128 {vr(PV)}, v{vP}"); A(f"v_add_u32 v{vP}, 1024, v{vP}")

    A(HEADER + f"; @launch grid=(256,1,1) block=({nw*64},1,1) lds={lds}")
    A('.amdgcn_target "amdgcn-amd-amdhsa--gfx950"')
    A(".text"); A(f".globl {KN}"); A(".p2align 8"); A(f".type {KN},@function"); A(f"{KN}:")
    stamp(0)
    A("s_cmp_ge_u32 s2, 256"); A("s_cbranch_scc1 L_end")
    A("s_load_dwordx8 s[4:11], s[0:1], 0         ; q k v omega")
    if pf:
        A("s_getpc_b64 s[76:77]")
        A("L_pc:")
        A(f"v_lshlrev_b32 v3, {7 if pf == 1 else 6}, v0")
        A("v_min_u32 v3, L_codeend-L_pc-4, v3")
        A(f"global_load_dword v{PD}, v3, s[76:77]")
    A("s_load_dwordx2 s[12:13], s[0:1], 32       ; out")
    if stamps:
        A(f"s_load_dwordx2 s[14:15], s[0:1], {48 if stamps==1 else 40}")
    A("v_lshrrev_b32 v1, 6, v0            ; wave")
    A("v_and_b32 v2, 63, v0               ; lane")
    A("v_lshrrev_b32 v4, 4, v2            ; g = l>>4")
    A("v_bfe_u32 v6, v2, 2, 2             ; a = l3l2")
    A(f"v_readfirstlane_b32 s{sW}, v1")
    A("v_and_b32 v5, 3, v2"); A("v_lshlrev_b32 v5, 4, v5"); A("v_lshl_add_u32 v5, v4, 6, v5")
    A(f"v_lshl_add_u32 v{vA}, v6, 8, v5")
    A(f"v_lshl_add_u32 v{vA}, v1, 12, v{vA}")
    A("v_lshlrev_b32 v5, 4, v2            ; lane*16")
    A("v_and_b32 v7, 0x7f, v0"); A("v_lshlrev_b32 v7, 4, v7")
    A("v_lshl_add_u32 v8, v1, 11, v5      ; q offset")
    for hi, s in soffs.items():
        A(f"s_mov_b32 s{s}, {hi}")
    A("s_lshl_b32 s3, s2, 19")
    A("s_lshl_b32 s22, s2, 13")
    A(f"s_mov_b32 s{sS+2}, 524288"); A(f"s_mov_b32 s{sS+3}, 0x20000")
    A(f"s_mov_b32 s{sO+2}, 2048"); A(f"s_mov_b32 s{sO+3}, 0x20000")
    A(f"s_mov_b32 s{sQ+2}, 8192"); A(f"s_mov_b32 s{sQ+3}, 0x20000")
    A("s_waitcnt lgkmcnt(0)")
    if not epist and not st1 and not prost: stamp(1)
    A(f"s_mov_b32 s{sO}, s10"); A(f"s_mov_b32 s{sO+1}, s11")
    lds_ = []
    def grab(fn):
        n0 = len(L); fn(); out = L[n0:]; del L[n0:]; return out
    ld_lines = []
    ld_lines += [f"buffer_load_dwordx4 {vr(VT)}, v7, s[{sO}:{sO+3}], 0 offen {opol}"]
    for j in range(2):
        if not qdiag: ld_lines += [f"buffer_load_dwordx4 {vr(VT+4+4*j)}, v8, s[{sQ}:{sQ+3}], 0 offen offset:{j*1024} {qpol}"]
    if qdiag: A("v_mov_b32 v190, v8")
    for n in range(dk): ld_lines += grab(lambda: load(n))
    def setup():
        A(f"s_add_u32 s{sQ}, s4, s22"); A(f"s_addc_u32 s{sQ+1}, s5, 0")
        A(f"s_add_u32 s{sS}, s6, s3"); A(f"s_addc_u32 s{sS+1}, s7, 0")
        A(f"s_add_u32 s{sVB}, s8, s3"); A(f"s_addc_u32 s{sVB+1}, s9, 0")
        A(f"s_add_u32 s{sOUT}, s12, s22"); A(f"s_addc_u32 s{sOUT+1}, s13, 0")
        A(f"s_mov_b32 s{sOUT+2}, 8192"); A(f"s_mov_b32 s{sOUT+3}, 0x20000")
        A("v_and_b32 v3, 15, v2               ; n = l&15")
        A(f"v_bfe_u32 v{G}, v0, 4, 3"); A(f"v_mul_u32_u24 v{G}, {RSTR}, v{G}"); A(f"v_lshl_add_u32 v{G}, v3, 4, v{G}")
        A(f"v_lshl_add_u32 v{G+1}, v1, 3, v4"); A(f"v_mul_u32_u24 v{G+1}, {RSTR}, v{G+1}"); A(f"v_lshl_add_u32 v{G+1}, v3, 4, v{G+1}")
        A("v_and_b32 v9, 7, v2"); A(f"v_mul_u32_u24 v9, {RSTR}, v9"); A("v_lshl_add_u32 v9, v4, 6, v9")
        A(f"v_mul_u32_u24 v{vQR}, {RSTR}, v3"); A(f"v_lshl_add_u32 v{vQR}, v4, 6, v{vQR}")
        A(f"v_add_u32 v{vQR}, {QBASE}, v{vQR}")
        A(f"v_add_u32 v{G}, {OBASE}, v{G}"); A(f"v_add_u32 v{G+1}, {QBASE}, v{G+1}"); A(f"v_add_u32 v9, {OBASE}, v9")
        for r in range(4):
            A(f"s_mov_b32 s{sM+2*r}, {(1<<r)|(1<<(20+r))}"); A(f"s_mov_b32 s{sM+2*r+1}, {(1<<(8+r))|(1<<(28+r))}")
        A(f"s_mov_b32 s{sSELLO}, 0x05040100"); A(f"s_mov_b32 s{sSELHI}, 0x07060302")
        A(f"s_mov_b32 s{sC1}, {f2u(C1):#x}")
        A(f"s_mov_b32 s{sX1}, 0x55555555"); A(f"s_mov_b32 s{sX1+1}, 0x55555555")
        A(f"s_mov_b32 s{sX2}, 0x33333333"); A(f"s_mov_b32 s{sX2+1}, 0x33333333")
        A(f"v_mov_b32 v{vZ}, 0")
        A(f"v_mov_b32 v{vCF}, {f2u(CF):#x}"); A(f"v_mov_b32 v{vC2}, {f2u(C2):#x}")
        for r in range(4): A(f"v_mov_b32 v{ONES+r}, 0x3f803f80")
        for r in range(36): A(f"v_mov_b32 v{ACC+r}, 0")
        if qstag:
            A(f"s_sub_u32 s{sQIT}, {nsteps-2-qit}, s{sW}")
        else:
            A(f"s_mov_b32 s{sQIT}, {nsteps-2-qit}")
        A(f"s_mov_b32 s{sCNT}, {nsteps}")
        A(f"v_lshl_add_u32 v{vV0}, v1, 12, v5")
        A(f"s_mul_i32 s3, s{sW}, {PSTR}"); A(f"s_add_u32 s3, s3, {PBASE}")
        A(f"v_add_u32 v{vP}, s3, v5")
        A(f"v_add_u32 v{vPL}, {PBASE + 16*1024}, v5")
        A(f"v_lshlrev_b32 v{vL}, 8, v4"); A(f"v_lshl_add_u32 v{vL}, v1, 6, v{vL}"); A(f"v_lshl_add_u32 v{vL}, v3, 2, v{vL}")
        A(f"v_add_u32 v{vL}, {15*STEPB}, v{vL}")
    su = grab(setup)
    if spread:
        gaps = len(ld_lines) - 1 - (1 if oadj else 0)
        per = -(-(len(su) - (2 if oadj else 0)) // gaps) if spread == 1 else spread
        if oadj == 2:
            for x in su[:2]: A(x)
            su = su[2:]
            ld_lines[0], ld_lines[1] = ld_lines[1], ld_lines[0]
        for k, ld in enumerate(ld_lines):
            A(ld)
            cnt = max(per, 4 if k == 0 else 0)
            if oadj and k == 0: cnt = 2 if oadj == 1 else 0
            take = su[:cnt]; su = su[len(take):]
            for x in take: A(x)
        for x in su: A(x)
    else:
        for x in su[:4]: A(x)
        for ld in ld_lines: A(ld)
        for x in su[4:]: A(x)
    if prost == 1: stamp(1)
    if tlbv: A(f"global_load_dword v{PD+1}, v{vZ}, s[{sVB}:{sVB+1}] nt")
    A(f"s_waitcnt vmcnt({dk + (1 if tlbv else 0)})")
    if prost == 1: stamp(2)
    if prost == 2: stamp(1)
    if not st2 and not epist and not prost: stamp(2)
    A(f"ds_write_b128 v{G}, {vr(VT)}")
    A(f"ds_write_b128 v{G+1}, {vr(VT+4)}")
    A(f"ds_write_b128 v{G+1}, {vr(VT+8)} offset:{4*RSTR}")
    A(f"s_mul_i32 s3, s{sW}, {WSTR}")
    A("v_add_u32 v5, s3, v5")
    A("v_and_b32 v7, 3, v2"); A(f"v_mul_u32_u24 v7, {2*ISTR}, v7")
    A("v_lshl_add_u32 v6, v6, 4, v7")
    A("v_and_b32 v7, 1, v4"); A("v_lshlrev_b32 v7, 8, v7"); A("v_add_u32 v6, v6, v7")
    A(f"s_lshl_b32 s3, s{sW}, 6"); A("v_add_u32 v6, s3, v6")
    A("v_lshlrev_b32 v8, 8, v3"); A("v_lshl_add_u32 v8, v4, 4, v8"); A("v_add_u32 v8, s3, v8")
    A("s_waitcnt lgkmcnt(0)")
    if prost == 2: stamp(2)
    A("s_barrier")
    for jj in range(4):
        A(f"ds_read_b128 {vr(OM+4*jj)}, v9 offset:{jj*16}")
    A("v_add_u32 v9, 4096, v8")
    if linst:
        A("v_lshlrev_b32 v8, 4, v2"); A("v_lshl_add_u32 v8, v1, 11, v8"); A("v_add_u32 v9, 1024, v8")
    if st1: stamp(1)

    if align: A(f".p2align {align}")
    A("L_kloop:")
    for r in range(8):
        x = dk - 1
        if sk[r] == "1": x -= 1
        A(f"s_waitcnt vmcnt({x})" + (" lgkmcnt(0)" if r == (4 if ilv else 5) else ""))
        late = dk == 7 and (r & 1)
        def issue():
            if r == 8 - dk:
                A(f"v_add_u32 v{vA}, {STEPB}, v{vA}")
                A(f"s_cmp_lg_u32 s{sCNT}, 1"); A("s_cbranch_scc1 L_nosw")
                A(f"s_mov_b32 s{sS}, s{sVB}"); A(f"s_mov_b32 s{sS+1}, s{sVB+1}"); A(f"v_mov_b32 v{vA}, v{vV0}")
                A("L_nosw:")
            load((r + dk) & 7)
        if late:
            stage1(R + 16 * (r >> 2), r & 2); issue()
            if r in (1, 5): chains()
            if r == 3: phi(P+2)
            if r == 7: phi(P)
            continue
        issue()
        if dk == 7 and r in (2, 6): A("s_nop 1")
        if ilv:
            assert dk <= 6
            if r == 4: pstore()
            if r in (0, 4): weave(grab(lambda: stage2(Y)), gs(0) + gs(1), 10)
            if r in (1, 5):
                g3, s3 = gs(3); g2, s2 = gs(2)
                weave(grab(lambda: stage1(R + 16 * (r >> 2), 0)), [g2, g3, s2, s3], 0)
            if r in (2, 6): diag()
            if r in (3, 7): stage1(R + 16 * (r >> 2), 2); phi(P + (2 if r == 3 else 0))
            continue
        if r == 0: stage2(Y)
        if r == 1: chains(); stage1(R, 0)
        if r == 2: diag()
        if r == 3: stage1(R, 2); phi(P+2)
        if r == 4: pstore(); stage2(Y)
        if r == 5: chains(); stage1(R+16, 0)
        if r == 6: diag()
        if r == 7: stage1(R+16, 2); phi(P)
    if st2 and st2 <= 16:
        A(f"s_cmp_lg_u32 s{sCNT}, {nsteps + 1 - st2}"); A("s_cbranch_scc1 L_nost"); stamp(2); A("L_nost:")
    A(f"s_sub_u32 s{sCNT}, s{sCNT}, 1"); A(f"s_cmp_lg_u32 s{sCNT}, 0"); A("s_cbranch_scc1 L_kloop")

    def vstep(kind):
        first, pre = kind == "first", kind == "pre"
        issued = dk if first else dv
        for r in range(8):
            n = r + dv
            if pre:
                x = (min(issued, 8) - r - 1) + 4 * max(issued - 8, 0)
                if tlbo and 1 <= r <= dv: x += 1
            else:
                x = min(dv - 1 - (sv[r] == "1"), issued - r - 1) if issued <= n else issued - r - 1
            dl = dlo if (str(slo) * 8)[r] == "1" else dlo + 1
            if first and dlo: x = min(x, dl - 1)
            if kind == "mid" and dlo and dl < dv:
                A(f"s_cbranch_vccnz L_deep{r}"); A(f"s_waitcnt vmcnt({dl-1})"); A(f"L_deep{r}:")
            A(f"s_waitcnt vmcnt({x})")
            late = dv == 7 and (r & 1) and r < 7
            if late: perms(r >> 1)
            if r == 8 - dv and not pre: A(f"v_add_u32 v{vA}, {STEPB}, v{vA}")
            did = False
            def issue():
                nonlocal issued, did
                while issued <= n:
                    if pre and issued >= 8: lload(issued - 8)
                    else: load(issued & 7)
                    issued += 1; did = True
            if not (dv == 7 and r == 7): issue()
            if not did and r != 7: A("s_nop 0")
            if pre and r == 0 and tlbo:
                A(f"buffer_load_dword v{PD}, v{vZ}, s[{sOUT}:{sOUT+3}], 0 offen {'nt' if tlbo == 1 else ''}")
            if pre and r == 0 and qdiag == 1:
                for j in range(2): A(f"buffer_load_dwordx4 {vr(Y+4*j)}, v190, s[{sQ}:{sQ+3}], 0 offen offset:{j*1024} {qpol}")
            if first:
                if r == 0: stage2(Y)
                if r == 1: chains()
                if r == 2:
                    if late or dv == 7: A("s_nop 1")
                    diag()
                if r == 3:
                    if not late: perms(1)
                    phi(P+2)
                if r == 4: pstore(); A(f"v_subrev_u32 v{vP}, {16*1024}, v{vP}"); zmfma(P)
                if r == 5: pread()
            else:
                if r == 2: pread()
                if r == 3 and not late: perms(1)
                if r == 4 and not pre:
                    A(f"s_cmp_eq_u32 s{sCNT}, s{sQIT}"); A("s_cbranch_scc1 L_q"); A("L_qret:")
            if r == 1 and not late: perms(0)
            if r == 5 and not late: perms(2)
            if r == 6:
                A("s_waitcnt lgkmcnt(0)")
                zmfma(PV)
            if r == 7:
                if dv == 7:
                    perms(3); issue()
                    for i in range(8): vmfma(i)
                else:
                    perms(3, mf=True)
    vstep("first")
    A(f"s_mov_b32 s{sCNT}, {nsteps-3}")
    if dlo: A("s_mov_b64 vcc, 0")
    if align: A(f".p2align {align}")
    A("L_vloop:")
    vstep("mid")
    if st2 > 16:
        A(f"s_cmp_lg_u32 s{sCNT}, {31 - st2}"); A("s_cbranch_scc1 L_nost"); stamp(2); A("L_nost:")
    A(f"s_sub_u32 s{sCNT}, s{sCNT}, 1")
    if dlo:
        A(f"s_cmp_le_u32 s{sCNT}, {nsteps-3-nlo}"); A("s_cselect_b64 vcc, -1, 0")
    A(f"s_cmp_lg_u32 s{sCNT}, 0"); A("s_cbranch_scc1 L_vloop")
    vstep("pre")
    A("s_mov_b32 exec_hi, 0")
    A(f"ds_write_b128 v5, {vr(ACC+32)} offset:{8*ISTR}")
    for i in range(8):
        A(f"ds_write_b128 v5, {vr(ACC+4*i)} offset:{i*ISTR}")
    A("s_mov_b32 exec_hi, -1")
    def lperms(u):
        B = VT + 8 * (u >> 1); X = R + 4 * u
        for i in range(2):
            for h in range(2):
                perm(B + 4*i + 2*(u & 1) + h, X + 2*h, X + 2*h + 1, i)
    def lmfma(wp):
        for i in range(2):
            A(f"v_mfma_f32_16x16x32_bf16 {vr(E+4*i)}, {vr(PL+4*wp)}, {vr(VT+8*wp+4*i)}, {vr(E+4*i)}")
    for u in range(8 - dv):
        A(f"s_waitcnt vmcnt({4*(dv-1)})")
        lload(u + dv)
        lperms(u)
    A("s_waitcnt lgkmcnt(0)")
    A("s_barrier")
    if epist: stamp(1)
    RZ, RE = U, ACC
    for x in range(4): A(f"ds_read_b128 {vr(RZ+4*x)}, v7 offset:{x*WSTR + 8*ISTR}")
    for i in range(2):
        for x in range(4): A(f"ds_read_b128 {vr(RE+16*i+4*x)}, v6 offset:{x*WSTR + i*ISTR}")
    A("s_waitcnt lgkmcnt(8)")
    for x in range(4):
        A(f"ds_read_b128 {vr(PL+4*x)}, v{vPL} offset:{x*PSTR}")
    for r in range(4): A(f"v_add_f32 v{RZ+r}, v{RZ+r}, v{RZ+4+r}")
    for r in range(4): A(f"v_add_f32 v{RZ+8+r}, v{RZ+8+r}, v{RZ+12+r}")
    for r in range(4): A(f"v_add_f32 v{RZ+r}, v{RZ+r}, v{RZ+8+r}")
    D0, D1 = Y, Y + 2
    for t in range(2): A(f"v_mul_f32 v{D0+t}, v{FQ+4*t}, v{RZ}")
    for r in range(1, 4):
        for t in range(2): A(f"v_fmac_f32 v{D0+t}, v{FQ+4*t+r}, v{RZ+r}")
    for t in range(2): A(f"v_mov_b32 v{D1+t}, v{D0+t}")
    A("s_nop 1")
    for t in range(2): A(f"v_permlane16_swap_b32 v{D0+t}, v{D1+t}")
    A("s_nop 1")
    for t in range(2): A(f"v_add_f32 v{D0+t}, v{D0+t}, v{D1+t}")
    for t in range(2): A(f"v_add_f32 v{D0+t}, {EPS:#x}, v{D0+t}")
    for t in range(2): A(f"v_rcp_f32 v{D0+t}, v{D0+t}")
    A("s_mov_b32 vcc_lo, 0"); A("s_mov_b32 vcc_hi, -1")
    for t in range(2):
        for r in range(4): A(f"v_mul_f32 v{FQ+4*t+r}, v{FQ+4*t+r}, v{D0+t}")
    T0, T1, HI = Y + 4, Y + 8, Y + 12
    for p in range(4): A(f"v_cvt_pk_bf16_f32 v{HI+p}, v{FQ+2*p}, v{FQ+2*p+1}")
    for p in range(4): A(f"v_lshlrev_b32 v{T0+p}, 16, v{HI+p}")
    for p in range(4): A(f"v_and_b32 v{T1+p}, 0xffff0000, v{HI+p}")
    for p in range(4): A(f"v_sub_f32 v{T0+p}, v{FQ+2*p}, v{T0+p}")
    for p in range(4): A(f"v_sub_f32 v{T1+p}, v{FQ+2*p+1}, v{T1+p}")
    for p in range(4): A(f"v_cvt_pk_bf16_f32 v{T0+p}, v{T0+p}, v{T1+p}")
    for p in range(4): A(f"v_cndmask_b32 v{WQ+p}, v{HI+p}, v{T0+p}, vcc")
    A("s_waitcnt lgkmcnt(4)")
    for i in range(2):
        B = RE + 16 * i
        for r in range(4): A(f"v_add_f32 v{B+r}, v{B+r}, v{B+4+r}")
        for r in range(4): A(f"v_add_f32 v{B+8+r}, v{B+8+r}, v{B+12+r}")
        for r in range(4): A(f"v_add_f32 v{E+4*i+r}, v{B+r}, v{B+8+r}")
    A("s_waitcnt lgkmcnt(0)")
    done = 0
    for u in range(8 - dv, 8):
        A(f"s_waitcnt vmcnt({4*(7-u)})")
        if u == 7: stamp(3)
        lperms(u)
        if u & 1:
            A("s_nop 1")
            while done <= (u >> 1):
                lmfma(done); done += 1
    PA = U
    A("s_nop 6")
    for i in range(2):
        A(f"v_cvt_pk_bf16_f32 v{PA+2*i}, v{E+4*i}, v{E+4*i+1}")
        A(f"v_cvt_pk_bf16_f32 v{PA+2*i+1}, v{E+4*i+2}, v{E+4*i+3}")
    A("s_nop 0")
    DD = ACC
    for t in range(2):
        for i in range(2):
            A(f"v_mfma_f32_16x16x16_bf16 {vr(DD+8*t+4*i)}, {vr(PA+2*i,2)}, {vr(WQ+2*t,2)}, 0")
    A("s_nop 5")
    for t in range(2):
        O = Y + 4*t
        for r in range(4): A(f"v_cvt_pk_bf16_f32 v{O+r}, v{DD+8*t+r}, v{DD+8*t+4+r}")
        if nostore == 3 and t == 0: A("s_mov_b64 exec, 1")
        if not nostore or (nostore in (2, 3) and t == 0): A(f"buffer_store_dwordx4 {vr(O)}, v{8+t}, s[{sOUT}:{sOUT+3}], 0 offen {spol}")
    if epist: stamp(2)
    if stamps >= 3:
        A("s_waitcnt vmcnt(0)")
        stamp(4)
        A(f"s_cmp_lg_u32 s{sW}, 0"); A("s_cbranch_scc1 L_end")
        A("s_waitcnt lgkmcnt(0)")
        if stamps == 7: A("s_sub_u32 s3, s72, s64"); A("s_lshl_b32 s3, s3, 1"); A("s_sub_u32 s3, 12000, s3")
        if stamps == 5: A("s_sub_u32 s3, s72, s70"); A("s_mul_i32 s3, s3, 20")
        if stamps == 4: A("s_sub_u32 s3, s68, s64"); A("s_mul_i32 s3, s3, 20")
        if stamps == 3: A("s_sub_u32 s3, s72, s64")
        A("s_min_u32 s3, s3, 50000")
        A("L_spin:")
        A("s_memrealtime s[74:75]"); A("s_waitcnt lgkmcnt(0)")
        A("s_sub_u32 s74, s74, s72"); A("s_cmp_lt_u32 s74, s3"); A("s_cbranch_scc1 L_spin")
    if stamps == 1:
        A("s_waitcnt vmcnt(0)")
        A("s_barrier")
        stamp(4)
        A(f"s_cmp_lg_u32 s{sW}, {rw}"); A("s_cbranch_scc1 L_end")
        A("s_getreg_b32 s3, hwreg(HW_REG_XCC_ID)")
        A("s_waitcnt lgkmcnt(0)")
        A("v_mov_b32 v12, s64"); A("v_mov_b32 v13, s65"); A("v_mov_b32 v14, s72"); A("v_mov_b32 v15, s73")
        A("v_mov_b32 v16, s3"); A("v_mov_b32 v17, 0")
        A("s_sub_u32 s66, s66, s64"); A("s_sub_u32 s68, s68, s64"); A("s_sub_u32 s70, s70, s64")
        A("s_lshl_b32 s68, s68, 16"); A("s_or_b32 s66, s66, s68")
        A("v_mov_b32 v18, s66"); A("v_mov_b32 v19, s70")
        A("s_lshl_b32 s3, s2, 5"); A("v_mov_b32 v11, s3")
        A("s_mov_b64 exec, 1")
        A("global_store_dwordx4 v11, v[12:15], s[14:15]")
        A("global_store_dwordx4 v11, v[16:19], s[14:15] offset:16")
    A("L_end:")
    A("s_endpgm")
    A("L_q:")
    for t in range(2):
        for jj in range(4):
            A(f"ds_read_b128 {vr(U+16*t+4*jj)}, v{vQR} offset:{t*16*RSTR + jj*16}")
    for t in range(2):
        A(f"s_waitcnt lgkmcnt({4*(1-t)})")
        chains(isq=True, X=U+16*t)
        A("s_nop 3")
        diag(isq=True)
        A("s_nop 9")
        phi(FQ+4*t, f32=True)
    A("s_branch L_qret")
    A("L_codeend:")
    nv = (NV + 7) // 8 * 8
    A('.section .rodata,"a"'); A(".p2align 6"); A(f".amdhsa_kernel {KN}")
    A(f"  .amdhsa_next_free_vgpr {nv}"); A("  .amdhsa_next_free_sgpr 80"); A(f"  .amdhsa_accum_offset {nv}")
    A("  .amdhsa_group_segment_fixed_size 0"); A("  .amdhsa_kernarg_size 56"); A("  .amdhsa_user_sgpr_count 2")
    A("  .amdhsa_user_sgpr_kernarg_segment_ptr 1"); A("  .amdhsa_system_sgpr_workgroup_id_x 1")
    A("  .amdhsa_float_denorm_mode_32 3")
    A(".end_amdhsa_kernel")
    return "\n".join(L) + "\n"

if __name__ == "__main__":
    name = sys.argv[1]; kw = {}
    for a in sys.argv[2:]:
        k, v = a.split("=")
        kw[k] = v if k in ("sk", "sv", "slo") else (int(v) if v.lstrip("-").isdigit() else v.replace("+", " "))
    open(name, "w").write(gen(**kw))
```

```python
import sys, struct, math
KN = "standalone__linear_kernel_rfa__sampling_kernel"

def f2u(x):
    return struct.unpack("<I", struct.pack("<f", x))[0]

HEADER = """; FAVOR+ linear attention (positive random features), one workgroup of 4 waves per (b,h).
"""

def gen(dk=6, dv=5, sk="0", sv="0", pol="nt", stamps=0, opol="", qpol="nt", spol="", qit=1, qstag=1,
        align=0, pf=1, st2=0, st1=0, epist=0, lpol=None, kfirst=0, prost=0, rw=0, spread=1, dlo=0, nlo=0, slo="1", nostore=0, ilv=0, ohalf=0, linst=0, oadj=0, qdiag=0, tlbo=0, tlbv=0):
    nw = 4
    L = []
    A = L.append
    nsteps = 16
    STEPB = 32 * nw * 256
    ISTR = 544
    WSTR = 9 * ISTR
    PSTR = 17 * 1024
    PBASE = nw * WSTR
    RSTR = 272
    OBASE = PBASE + nw * PSTR
    QBASE = OBASE + 8 * RSTR
    lds = QBASE + 32 * RSTR
    scale = 128.0 ** -0.25
    C1 = scale * math.log2(math.e)
    C2 = -1.5
    CF = -0.5 * scale
    EPS = f2u(1e-6)
    sk = str(sk) * 8; sv = str(sv) * 8
    if lpol is None: lpol = pol
    assert dk <= 7 and dv <= 7

    vA, vV0, vP, vL = 10, 11, 38, 39
    OM, ONES, vCF, vC2 = 12, 28, 32, 33
    WQ = 34
    R, VT = 40, 72
    U, Y = 104, 120
    G, S, PD, P, PV = 136, 140, 144, 148, 152
    FQ = 156
    PL = 164
    E = 180
    vZ = 191
    vQR, vPL = 188, 189
    ACC = 192
    NV = 228
    sS, sQ, sO, sOUT = 16, 24, 28, 32
    sVB = 20
    sM = 36
    sSELLO, sSELHI, sC1, sW, sCNT, sQIT = 44, 45, 46, 47, 48, 49
    sOFF0 = 50
    sX1, sX2 = 60, 62
    soffs = {}
    def soff(c):
        hi, lo = c & ~4095, c & 4095
        if hi == 0:
            return "0", lo
        if hi not in soffs:
            soffs[hi] = sOFF0 + len(soffs)
        return f"s{soffs[hi]}", lo
    def vr(b, n=4): return f"v[{b}:{b+n-1}]"
    def off(j8): return (j8 >> 2) * nw * 4096 + (j8 & 3) * 1024
    def loff(u, r): return ((u >> 1) + 4 * (u & 1)) * 4096 + r * 1024
    for j8 in range(8): soff(off(j8))
    for u in range(8): soff(loff(u, 0))
    def load(n):
        so, im = soff(off(n))
        A(f"buffer_load_dwordx4 {vr(R+4*n)}, v{vA}, s[{sS}:{sS+3}], {so} offen offset:{im} {pol}")
    def lload(u):
        for r in range(4):
            so, im = soff(loff(u, r))
            A(f"buffer_load_dword v{R+4*u+r}, v{vL}, s[{sS}:{sS+3}], {so} offen offset:{im} {lpol}")
    def stamp(i):
        if stamps: A(f"s_memrealtime s[{64+2*i}:{65+2*i}]")

    def dppsel(dst, own, other, perm):
        A(f"v_cndmask_b32_dpp v{dst}, v{other}, v{own}, vcc quad_perm:{perm} row_mask:0xf bank_mask:0xf")
    def stage1(X, j):
        A(f"s_mov_b64 vcc, s[{sX1}:{sX1+1}]")
        for dw in range(4): dppsel(U+4*j+dw, X+4*j+dw, X+4*(j+1)+dw, "[1,0,3,2]")
        A("s_not_b64 vcc, vcc")
        for dw in range(4): dppsel(U+4*(j+1)+dw, X+4*(j+1)+dw, X+4*j+dw, "[1,0,3,2]")
    def stage2(dst):
        A(f"s_mov_b64 vcc, s[{sX2}:{sX2+1}]")
        for j in (0, 1):
            for dw in range(4): dppsel(dst+4*j+dw, U+4*j+dw, U+4*(j+2)+dw, "[2,3,0,1]")
        A("s_not_b64 vcc, vcc")
        for j in (0, 1):
            for dw in range(4): dppsel(dst+4*(j+2)+dw, U+4*(j+2)+dw, U+4*j+dw, "[2,3,0,1]")
    def chains(isq=False, X=Y):
        for jj in range(4):
            k = X + 4*jj
            A(f"v_mfma_f32_16x16x32_bf16 {vr(G)}, {vr(k)}, {vr(k)}, {'0' if jj==0 else vr(G)}")
        for jj in range(4):
            k = X + 4*jj
            a, b = (OM+4*jj, k) if isq else (k, OM+4*jj)
            A(f"v_mfma_f32_16x16x32_bf16 {vr(S)}, {vr(a)}, {vr(b)}, {'0' if jj==0 else vr(S)}")
    def gs(jj):
        k = Y + 4*jj
        return [f"v_mfma_f32_16x16x32_bf16 {vr(G)}, {vr(k)}, {vr(k)}, {'0' if jj==0 else vr(G)}",
                f"v_mfma_f32_16x16x32_bf16 {vr(S)}, {vr(k)}, {vr(OM+4*jj)}, {'0' if jj==0 else vr(S)}"]
    def weave(valu, mf, start):
        mf = list(mf); cnt = 0
        for i, x in enumerate(valu):
            A(x)
            if i >= start and x.startswith("v_"):
                cnt += 1
                if cnt % 2 == 0 and mf: A(mf.pop(0))
        for x in mf: A(x)
    def diag(isq=False):
        A(f"v_cndmask_b32 v{PD}, 0, v{G}, s[{sM}:{sM+1}]")
        for r in range(1, 4):
            A(f"v_cndmask_b32 v{PD}, v{PD}, v{G+r}, s[{sM+2*r}:{sM+2*r+1}]")
        A("s_nop 1")
        a, b = (vCF, PD) if isq else (PD, vCF)
        A(f"v_mfma_f32_16x16x4_f32 {vr(S)}, v{a}, v{b}, {vr(S)}")
    def phi(dst, f32=False):
        for r in range(4): A(f"v_fma_f32 v{S+r}, v{S+r}, s{sC1}, v{vC2}")
        for r in range(4): A(f"v_exp_f32 v{S+r}, v{S+r}")
        if f32:
            for r in range(4): A(f"v_add_f32 v{dst+r}, {EPS:#x}, v{S+r}")
            return
        for r in range(4): A(f"v_add_f32 v{S+r}, {EPS:#x}, v{S+r}")
        A(f"v_cvt_pk_bf16_f32 v{dst}, v{S}, v{S+1}")
        A(f"v_cvt_pk_bf16_f32 v{dst+1}, v{S+2}, v{S+3}")
    def vmfma(i):
        A(f"v_mfma_f32_16x16x32_bf16 {vr(ACC+4*i)}, {vr(PV)}, {vr(VT+4*i)}, {vr(ACC+4*i)}")
    def zmfma(src):
        A(f"v_mfma_f32_16x16x32_bf16 {vr(ACC+32)}, {vr(src)}, {vr(ONES)}, {vr(ACC+32)}")
    def perm(dst, a, b, hi):
        A(f"v_perm_b32 v{dst}, v{b}, v{a}, s{sSELHI if hi else sSELLO}")
    def perms(jp, mf=False):
        a, b = R + 8*jp, R + 8*jp + 4
        for i in range(8):
            perm(VT+4*i+jp, a+(i>>1), b+(i>>1), i & 1)
            if mf and i >= 2: vmfma(i-2)
        if mf:
            vmfma(6); vmfma(7)
    def pstore():
        A(f"ds_write_b128 v{vP}, {vr(P)}")
        A(f"v_add_u32 v{vP}, 1024, v{vP}")
    def pread():
        A(f"ds_read_b128 {vr(PV)}, v{vP}"); A(f"v_add_u32 v{vP}, 1024, v{vP}")

    A(HEADER + f"; @launch grid=(256,1,1) block=({nw*64},1,1) lds={lds}")
    A('.amdgcn_target "amdgcn-amd-amdhsa--gfx950"')
    A(".text"); A(f".globl {KN}"); A(".p2align 8"); A(f".type {KN},@function"); A(f"{KN}:")
    stamp(0)
    A("s_cmp_ge_u32 s2, 256"); A("s_cbranch_scc1 L_end")
    A("s_load_dwordx8 s[4:11], s[0:1], 0         ; q k v omega")
    if pf:
        A("s_getpc_b64 s[76:77]")
        A("L_pc:")
        A(f"v_lshlrev_b32 v3, {7 if pf == 1 else 6}, v0")
        A("v_min_u32 v3, L_codeend-L_pc-4, v3")
        A(f"global_load_dword v{PD}, v3, s[76:77]")
    A("s_load_dwordx2 s[12:13], s[0:1], 32       ; out")
    if stamps:
        A(f"s_load_dwordx2 s[14:15], s[0:1], {48 if stamps==1 else 40}")
    A("v_lshrrev_b32 v1, 6, v0            ; wave")
    A("v_and_b32 v2, 63, v0               ; lane")
    A("v_lshrrev_b32 v4, 4, v2            ; g = l>>4")
    A("v_bfe_u32 v6, v2, 2, 2             ; a = l3l2")
    A(f"v_readfirstlane_b32 s{sW}, v1")
    A("v_and_b32 v5, 3, v2"); A("v_lshlrev_b32 v5, 4, v5"); A("v_lshl_add_u32 v5, v4, 6, v5")
    A(f"v_lshl_add_u32 v{vA}, v6, 8, v5")
    A(f"v_lshl_add_u32 v{vA}, v1, 12, v{vA}")
    A("v_lshlrev_b32 v5, 4, v2            ; lane*16")
    A("v_and_b32 v7, 0x7f, v0"); A("v_lshlrev_b32 v7, 4, v7")
    A("v_lshl_add_u32 v8, v1, 11, v5      ; q offset")
    for hi, s in soffs.items():
        A(f"s_mov_b32 s{s}, {hi}")
    A("s_lshl_b32 s3, s2, 19")
    A("s_lshl_b32 s22, s2, 13")
    A(f"s_mov_b32 s{sS+2}, 524288"); A(f"s_mov_b32 s{sS+3}, 0x20000")
    A(f"s_mov_b32 s{sO+2}, 2048"); A(f"s_mov_b32 s{sO+3}, 0x20000")
    A(f"s_mov_b32 s{sQ+2}, 8192"); A(f"s_mov_b32 s{sQ+3}, 0x20000")
    A("s_waitcnt lgkmcnt(0)")
    if not epist and not st1 and not prost: stamp(1)
    A(f"s_mov_b32 s{sO}, s10"); A(f"s_mov_b32 s{sO+1}, s11")
    lds_ = []
    def grab(fn):
        n0 = len(L); fn(); out = L[n0:]; del L[n0:]; return out
    ld_lines = []
    ld_lines += [f"buffer_load_dwordx4 {vr(VT)}, v7, s[{sO}:{sO+3}], 0 offen {opol}"]
    for j in range(2):
        if not qdiag: ld_lines += [f"buffer_load_dwordx4 {vr(VT+4+4*j)}, v8, s[{sQ}:{sQ+3}], 0 offen offset:{j*1024} {qpol}"]
    if qdiag: A("v_mov_b32 v190, v8")
    for n in range(dk): ld_lines += grab(lambda: load(n))
    def setup():
        A(f"s_add_u32 s{sQ}, s4, s22"); A(f"s_addc_u32 s{sQ+1}, s5, 0")
        A(f"s_add_u32 s{sS}, s6, s3"); A(f"s_addc_u32 s{sS+1}, s7, 0")
        A(f"s_add_u32 s{sVB}, s8, s3"); A(f"s_addc_u32 s{sVB+1}, s9, 0")
        A(f"s_add_u32 s{sOUT}, s12, s22"); A(f"s_addc_u32 s{sOUT+1}, s13, 0")
        A(f"s_mov_b32 s{sOUT+2}, 8192"); A(f"s_mov_b32 s{sOUT+3}, 0x20000")
        A("v_and_b32 v3, 15, v2               ; n = l&15")
        A(f"v_bfe_u32 v{G}, v0, 4, 3"); A(f"v_mul_u32_u24 v{G}, {RSTR}, v{G}"); A(f"v_lshl_add_u32 v{G}, v3, 4, v{G}")
        A(f"v_lshl_add_u32 v{G+1}, v1, 3, v4"); A(f"v_mul_u32_u24 v{G+1}, {RSTR}, v{G+1}"); A(f"v_lshl_add_u32 v{G+1}, v3, 4, v{G+1}")
        A("v_and_b32 v9, 7, v2"); A(f"v_mul_u32_u24 v9, {RSTR}, v9"); A("v_lshl_add_u32 v9, v4, 6, v9")
        A(f"v_mul_u32_u24 v{vQR}, {RSTR}, v3"); A(f"v_lshl_add_u32 v{vQR}, v4, 6, v{vQR}")
        A(f"v_add_u32 v{vQR}, {QBASE}, v{vQR}")
        A(f"v_add_u32 v{G}, {OBASE}, v{G}"); A(f"v_add_u32 v{G+1}, {QBASE}, v{G+1}"); A(f"v_add_u32 v9, {OBASE}, v9")
        for r in range(4):
            A(f"s_mov_b32 s{sM+2*r}, {(1<<r)|(1<<(20+r))}"); A(f"s_mov_b32 s{sM+2*r+1}, {(1<<(8+r))|(1<<(28+r))}")
        A(f"s_mov_b32 s{sSELLO}, 0x05040100"); A(f"s_mov_b32 s{sSELHI}, 0x07060302")
        A(f"s_mov_b32 s{sC1}, {f2u(C1):#x}")
        A(f"s_mov_b32 s{sX1}, 0x55555555"); A(f"s_mov_b32 s{sX1+1}, 0x55555555")
        A(f"s_mov_b32 s{sX2}, 0x33333333"); A(f"s_mov_b32 s{sX2+1}, 0x33333333")
        A(f"v_mov_b32 v{vZ}, 0")
        A(f"v_mov_b32 v{vCF}, {f2u(CF):#x}"); A(f"v_mov_b32 v{vC2}, {f2u(C2):#x}")
        for r in range(4): A(f"v_mov_b32 v{ONES+r}, 0x3f803f80")
        for r in range(36): A(f"v_mov_b32 v{ACC+r}, 0")
        if qstag:
            A(f"s_sub_u32 s{sQIT}, {nsteps-2-qit}, s{sW}")
        else:
            A(f"s_mov_b32 s{sQIT}, {nsteps-2-qit}")
        A(f"s_mov_b32 s{sCNT}, {nsteps}")
        A(f"v_lshl_add_u32 v{vV0}, v1, 12, v5")
        A(f"s_mul_i32 s3, s{sW}, {PSTR}"); A(f"s_add_u32 s3, s3, {PBASE}")
        A(f"v_add_u32 v{vP}, s3, v5")
        A(f"v_add_u32 v{vPL}, {PBASE + 16*1024}, v5")
        A(f"v_lshlrev_b32 v{vL}, 8, v4"); A(f"v_lshl_add_u32 v{vL}, v1, 6, v{vL}"); A(f"v_lshl_add_u32 v{vL}, v3, 2, v{vL}")
        A(f"v_add_u32 v{vL}, {15*STEPB}, v{vL}")
    su = grab(setup)
    if spread:
        gaps = len(ld_lines) - 1 - (1 if oadj else 0)
        per = -(-(len(su) - (2 if oadj else 0)) // gaps) if spread == 1 else spread
        if oadj == 2:
            for x in su[:2]: A(x)
            su = su[2:]
            ld_lines[0], ld_lines[1] = ld_lines[1], ld_lines[0]
        for k, ld in enumerate(ld_lines):
            A(ld)
            cnt = max(per, 4 if k == 0 else 0)
            if oadj and k == 0: cnt = 2 if oadj == 1 else 0
            take = su[:cnt]; su = su[len(take):]
            for x in take: A(x)
        for x in su: A(x)
    else:
        for x in su[:4]: A(x)
        for ld in ld_lines: A(ld)
        for x in su[4:]: A(x)
    if prost == 1: stamp(1)
    if tlbv: A(f"global_load_dword v{PD+1}, v{vZ}, s[{sVB}:{sVB+1}] nt")
    A(f"s_waitcnt vmcnt({dk + (1 if tlbv else 0)})")
    if prost == 1: stamp(2)
    if prost == 2: stamp(1)
    if not st2 and not epist and not prost: stamp(2)
    A(f"ds_write_b128 v{G}, {vr(VT)}")
    A(f"ds_write_b128 v{G+1}, {vr(VT+4)}")
    A(f"ds_write_b128 v{G+1}, {vr(VT+8)} offset:{4*RSTR}")
    A(f"s_mul_i32 s3, s{sW}, {WSTR}")
    A("v_add_u32 v5, s3, v5")
    A("v_and_b32 v7, 3, v2"); A(f"v_mul_u32_u24 v7, {2*ISTR}, v7")
    A("v_lshl_add_u32 v6, v6, 4, v7")
    A("v_and_b32 v7, 1, v4"); A("v_lshlrev_b32 v7, 8, v7"); A("v_add_u32 v6, v6, v7")
    A(f"s_lshl_b32 s3, s{sW}, 6"); A("v_add_u32 v6, s3, v6")
    A("v_lshlrev_b32 v8, 8, v3"); A("v_lshl_add_u32 v8, v4, 4, v8"); A("v_add_u32 v8, s3, v8")
    A("s_waitcnt lgkmcnt(0)")
    if prost == 2: stamp(2)
    A("s_barrier")
    for jj in range(4):
        A(f"ds_read_b128 {vr(OM+4*jj)}, v9 offset:{jj*16}")
    A("v_add_u32 v9, 4096, v8")
    if linst:
        A("v_lshlrev_b32 v8, 4, v2"); A("v_lshl_add_u32 v8, v1, 11, v8"); A("v_add_u32 v9, 1024, v8")
    if st1: stamp(1)

    if align: A(f".p2align {align}")
    A("L_kloop:")
    for r in range(8):
        x = dk - 1
        if sk[r] == "1": x -= 1
        A(f"s_waitcnt vmcnt({x})" + (" lgkmcnt(0)" if r == (4 if ilv else 5) else ""))
        late = dk == 7 and (r & 1)
        def issue():
            if r == 8 - dk:
                A(f"v_add_u32 v{vA}, {STEPB}, v{vA}")
                A(f"s_cmp_lg_u32 s{sCNT}, 1"); A("s_cbranch_scc1 L_nosw")
                A(f"s_mov_b32 s{sS}, s{sVB}"); A(f"s_mov_b32 s{sS+1}, s{sVB+1}"); A(f"v_mov_b32 v{vA}, v{vV0}")
                A("L_nosw:")
            load((r + dk) & 7)
        if late:
            stage1(R + 16 * (r >> 2), r & 2); issue()
            if r in (1, 5): chains()
            if r == 3: phi(P+2)
            if r == 7: phi(P)
            continue
        issue()
        if dk == 7 and r in (2, 6): A("s_nop 1")
        if ilv:
            assert dk <= 6
            if r == 4: pstore()
            if r in (0, 4): weave(grab(lambda: stage2(Y)), gs(0) + gs(1), 10)
            if r in (1, 5):
                g3, s3 = gs(3); g2, s2 = gs(2)
                weave(grab(lambda: stage1(R + 16 * (r >> 2), 0)), [g2, g3, s2, s3], 0)
            if r in (2, 6): diag()
            if r in (3, 7): stage1(R + 16 * (r >> 2), 2); phi(P + (2 if r == 3 else 0))
            continue
        if r == 0: stage2(Y)
        if r == 1: chains(); stage1(R, 0)
        if r == 2: diag()
        if r == 3: stage1(R, 2); phi(P+2)
        if r == 4: pstore(); stage2(Y)
        if r == 5: chains(); stage1(R+16, 0)
        if r == 6: diag()
        if r == 7: stage1(R+16, 2); phi(P)
    if st2 and st2 <= 16:
        A(f"s_cmp_lg_u32 s{sCNT}, {nsteps + 1 - st2}"); A("s_cbranch_scc1 L_nost"); stamp(2); A("L_nost:")
    A(f"s_sub_u32 s{sCNT}, s{sCNT}, 1"); A(f"s_cmp_lg_u32 s{sCNT}, 0"); A("s_cbranch_scc1 L_kloop")

    def vstep(kind):
        first, pre = kind == "first", kind == "pre"
        issued = dk if first else dv
        for r in range(8):
            n = r + dv
            if pre:
                x = (min(issued, 8) - r - 1) + 4 * max(issued - 8, 0)
                if tlbo and 1 <= r <= dv: x += 1
            else:
                x = min(dv - 1 - (sv[r] == "1"), issued - r - 1) if issued <= n else issued - r - 1
            dl = dlo if (str(slo) * 8)[r] == "1" else dlo + 1
            if first and dlo: x = min(x, dl - 1)
            if kind == "mid" and dlo and dl < dv:
                A(f"s_cbranch_vccnz L_deep{r}"); A(f"s_waitcnt vmcnt({dl-1})"); A(f"L_deep{r}:")
            A(f"s_waitcnt vmcnt({x})")
            late = dv == 7 and (r & 1) and r < 7
            if late: perms(r >> 1)
            if r == 8 - dv and not pre: A(f"v_add_u32 v{vA}, {STEPB}, v{vA}")
            did = False
            def issue():
                nonlocal issued, did
                while issued <= n:
                    if pre and issued >= 8: lload(issued - 8)
                    else: load(issued & 7)
                    issued += 1; did = True
            if not (dv == 7 and r == 7): issue()
            if not did and r != 7: A("s_nop 0")
            if pre and r == 0 and tlbo:
                A(f"buffer_load_dword v{PD}, v{vZ}, s[{sOUT}:{sOUT+3}], 0 offen {'nt' if tlbo == 1 else ''}")
            if pre and r == 0 and qdiag == 1:
                for j in range(2): A(f"buffer_load_dwordx4 {vr(Y+4*j)}, v190, s[{sQ}:{sQ+3}], 0 offen offset:{j*1024} {qpol}")
            if first:
                if r == 0: stage2(Y)
                if r == 1: chains()
                if r == 2:
                    if late or dv == 7: A("s_nop 1")
                    diag()
                if r == 3:
                    if not late: perms(1)
                    phi(P+2)
                if r == 4: pstore(); A(f"v_subrev_u32 v{vP}, {16*1024}, v{vP}"); zmfma(P)
                if r == 5: pread()
            else:
                if r == 2: pread()
                if r == 3 and not late: perms(1)
                if r == 4 and not pre:
                    A(f"s_cmp_eq_u32 s{sCNT}, s{sQIT}"); A("s_cbranch_scc1 L_q"); A("L_qret:")
            if r == 1 and not late: perms(0)
            if r == 5 and not late: perms(2)
            if r == 6:
                A("s_waitcnt lgkmcnt(0)")
                zmfma(PV)
            if r == 7:
                if dv == 7:
                    perms(3); issue()
                    for i in range(8): vmfma(i)
                else:
                    perms(3, mf=True)
    vstep("first")
    A(f"s_mov_b32 s{sCNT}, {nsteps-3}")
    if dlo: A("s_mov_b64 vcc, 0")
    if align: A(f".p2align {align}")
    A("L_vloop:")
    vstep("mid")
    if st2 > 16:
        A(f"s_cmp_lg_u32 s{sCNT}, {31 - st2}"); A("s_cbranch_scc1 L_nost"); stamp(2); A("L_nost:")
    A(f"s_sub_u32 s{sCNT}, s{sCNT}, 1")
    if dlo:
        A(f"s_cmp_le_u32 s{sCNT}, {nsteps-3-nlo}"); A("s_cselect_b64 vcc, -1, 0")
    A(f"s_cmp_lg_u32 s{sCNT}, 0"); A("s_cbranch_scc1 L_vloop")
    vstep("pre")
    A("s_mov_b32 exec_hi, 0")
    A(f"ds_write_b128 v5, {vr(ACC+32)} offset:{8*ISTR}")
    for i in range(8):
        A(f"ds_write_b128 v5, {vr(ACC+4*i)} offset:{i*ISTR}")
    A("s_mov_b32 exec_hi, -1")
    def lperms(u):
        B = VT + 8 * (u >> 1); X = R + 4 * u
        for i in range(2):
            for h in range(2):
                perm(B + 4*i + 2*(u & 1) + h, X + 2*h, X + 2*h + 1, i)
    def lmfma(wp):
        for i in range(2):
            A(f"v_mfma_f32_16x16x32_bf16 {vr(E+4*i)}, {vr(PL+4*wp)}, {vr(VT+8*wp+4*i)}, {vr(E+4*i)}")
    for u in range(8 - dv):
        A(f"s_waitcnt vmcnt({4*(dv-1)})")
        lload(u + dv)
        lperms(u)
    A("s_waitcnt lgkmcnt(0)")
    A("s_barrier")
    if epist: stamp(1)
    RZ, RE = U, ACC
    for x in range(4): A(f"ds_read_b128 {vr(RZ+4*x)}, v7 offset:{x*WSTR + 8*ISTR}")
    for i in range(2):
        for x in range(4): A(f"ds_read_b128 {vr(RE+16*i+4*x)}, v6 offset:{x*WSTR + i*ISTR}")
    A("s_waitcnt lgkmcnt(8)")
    for x in range(4):
        A(f"ds_read_b128 {vr(PL+4*x)}, v{vPL} offset:{x*PSTR}")
    for r in range(4): A(f"v_add_f32 v{RZ+r}, v{RZ+r}, v{RZ+4+r}")
    for r in range(4): A(f"v_add_f32 v{RZ+8+r}, v{RZ+8+r}, v{RZ+12+r}")
    for r in range(4): A(f"v_add_f32 v{RZ+r}, v{RZ+r}, v{RZ+8+r}")
    D0, D1 = Y, Y + 2
    for t in range(2): A(f"v_mul_f32 v{D0+t}, v{FQ+4*t}, v{RZ}")
    for r in range(1, 4):
        for t in range(2): A(f"v_fmac_f32 v{D0+t}, v{FQ+4*t+r}, v{RZ+r}")
    for t in range(2): A(f"v_mov_b32 v{D1+t}, v{D0+t}")
    A("s_nop 1")
    for t in range(2): A(f"v_permlane16_swap_b32 v{D0+t}, v{D1+t}")
    A("s_nop 1")
    for t in range(2): A(f"v_add_f32 v{D0+t}, v{D0+t}, v{D1+t}")
    for t in range(2): A(f"v_add_f32 v{D0+t}, {EPS:#x}, v{D0+t}")
    for t in range(2): A(f"v_rcp_f32 v{D0+t}, v{D0+t}")
    A("s_mov_b32 vcc_lo, 0"); A("s_mov_b32 vcc_hi, -1")
    for t in range(2):
        for r in range(4): A(f"v_mul_f32 v{FQ+4*t+r}, v{FQ+4*t+r}, v{D0+t}")
    T0, T1, HI = Y + 4, Y + 8, Y + 12
    for p in range(4): A(f"v_cvt_pk_bf16_f32 v{HI+p}, v{FQ+2*p}, v{FQ+2*p+1}")
    for p in range(4): A(f"v_lshlrev_b32 v{T0+p}, 16, v{HI+p}")
    for p in range(4): A(f"v_and_b32 v{T1+p}, 0xffff0000, v{HI+p}")
    for p in range(4): A(f"v_sub_f32 v{T0+p}, v{FQ+2*p}, v{T0+p}")
    for p in range(4): A(f"v_sub_f32 v{T1+p}, v{FQ+2*p+1}, v{T1+p}")
    for p in range(4): A(f"v_cvt_pk_bf16_f32 v{T0+p}, v{T0+p}, v{T1+p}")
    for p in range(4): A(f"v_cndmask_b32 v{WQ+p}, v{HI+p}, v{T0+p}, vcc")
    A("s_waitcnt lgkmcnt(4)")
    for i in range(2):
        B = RE + 16 * i
        for r in range(4): A(f"v_add_f32 v{B+r}, v{B+r}, v{B+4+r}")
        for r in range(4): A(f"v_add_f32 v{B+8+r}, v{B+8+r}, v{B+12+r}")
        for r in range(4): A(f"v_add_f32 v{E+4*i+r}, v{B+r}, v{B+8+r}")
    A("s_waitcnt lgkmcnt(0)")
    done = 0
    for u in range(8 - dv, 8):
        A(f"s_waitcnt vmcnt({4*(7-u)})")
        if u == 7: stamp(3)
        lperms(u)
        if u & 1:
            A("s_nop 1")
            while done <= (u >> 1):
                lmfma(done); done += 1
    PA = U
    A("s_nop 6")
    for i in range(2):
        A(f"v_cvt_pk_bf16_f32 v{PA+2*i}, v{E+4*i}, v{E+4*i+1}")
        A(f"v_cvt_pk_bf16_f32 v{PA+2*i+1}, v{E+4*i+2}, v{E+4*i+3}")
    A("s_nop 0")
    DD = ACC
    for t in range(2):
        for i in range(2):
            A(f"v_mfma_f32_16x16x16_bf16 {vr(DD+8*t+4*i)}, {vr(PA+2*i,2)}, {vr(WQ+2*t,2)}, 0")
    A("s_nop 5")
    for t in range(2):
        O = Y + 4*t
        for r in range(4): A(f"v_cvt_pk_bf16_f32 v{O+r}, v{DD+8*t+r}, v{DD+8*t+4+r}")
        if nostore == 3 and t == 0: A("s_mov_b64 exec, 1")
        if not nostore or (nostore in (2, 3) and t == 0): A(f"buffer_store_dwordx4 {vr(O)}, v{8+t}, s[{sOUT}:{sOUT+3}], 0 offen {spol}")
    if epist: stamp(2)
    if stamps >= 3:
        A("s_waitcnt vmcnt(0)")
        stamp(4)
        A(f"s_cmp_lg_u32 s{sW}, 0"); A("s_cbranch_scc1 L_end")
        A("s_waitcnt lgkmcnt(0)")
        if stamps == 7: A("s_sub_u32 s3, s72, s64"); A("s_lshl_b32 s3, s3, 1"); A("s_sub_u32 s3, 12000, s3")
        if stamps == 5: A("s_sub_u32 s3, s72, s70"); A("s_mul_i32 s3, s3, 20")
        if stamps == 4: A("s_sub_u32 s3, s68, s64"); A("s_mul_i32 s3, s3, 20")
        if stamps in (10, 11, 12, 13):
            A("s_getreg_b32 s78, hwreg(HW_REG_XCC_ID)"); A("s_and_b32 s78, s78, 15")
            if stamps in (10, 11): A("s_cmp_ge_u32 s78, 4"); A(f"s_cbranch_scc{0 if stamps == 10 else 1} L_end")
            else: A(f"s_cmp_eq_u32 s78, {1 if stamps == 12 else 4}"); A("s_cbranch_scc0 L_end")
            A("s_sub_u32 s3, s72, s64"); A("s_sub_u32 s3, 6000, s3")
        if stamps == 3: A("s_sub_u32 s3, s72, s64")
        A("s_min_u32 s3, s3, 50000")
        A("L_spin:")
        A("s_memrealtime s[74:75]"); A("s_waitcnt lgkmcnt(0)")
        A("s_sub_u32 s74, s74, s72"); A("s_cmp_lt_u32 s74, s3"); A("s_cbranch_scc1 L_spin")
    if stamps == 1:
        A("s_waitcnt vmcnt(0)")
        A("s_barrier")
        stamp(4)
        A(f"s_cmp_lg_u32 s{sW}, {rw}"); A("s_cbranch_scc1 L_end")
        A("s_getreg_b32 s3, hwreg(HW_REG_XCC_ID)")
        A("s_waitcnt lgkmcnt(0)")
        A("v_mov_b32 v12, s64"); A("v_mov_b32 v13, s65"); A("v_mov_b32 v14, s72"); A("v_mov_b32 v15, s73")
        A("v_mov_b32 v16, s3"); A("v_mov_b32 v17, 0")
        A("s_sub_u32 s66, s66, s64"); A("s_sub_u32 s68, s68, s64"); A("s_sub_u32 s70, s70, s64")
        A("s_lshl_b32 s68, s68, 16"); A("s_or_b32 s66, s66, s68")
        A("v_mov_b32 v18, s66"); A("v_mov_b32 v19, s70")
        A("s_lshl_b32 s3, s2, 5"); A("v_mov_b32 v11, s3")
        A("s_mov_b64 exec, 1")
        A("global_store_dwordx4 v11, v[12:15], s[14:15]")
        A("global_store_dwordx4 v11, v[16:19], s[14:15] offset:16")
    A("L_end:")
    A("s_endpgm")
    A("L_q:")
    for t in range(2):
        for jj in range(4):
            A(f"ds_read_b128 {vr(U+16*t+4*jj)}, v{vQR} offset:{t*16*RSTR + jj*16}")
    for t in range(2):
        A(f"s_waitcnt lgkmcnt({4*(1-t)})")
        chains(isq=True, X=U+16*t)
        A("s_nop 3")
        diag(isq=True)
        A("s_nop 9")
        phi(FQ+4*t, f32=True)
    A("s_branch L_qret")
    A("L_codeend:")
    nv = (NV + 7) // 8 * 8
    A('.section .rodata,"a"'); A(".p2align 6"); A(f".amdhsa_kernel {KN}")
    A(f"  .amdhsa_next_free_vgpr {nv}"); A("  .amdhsa_next_free_sgpr 80"); A(f"  .amdhsa_accum_offset {nv}")
    A("  .amdhsa_group_segment_fixed_size 0"); A("  .amdhsa_kernarg_size 56"); A("  .amdhsa_user_sgpr_count 2")
    A("  .amdhsa_user_sgpr_kernarg_segment_ptr 1"); A("  .amdhsa_system_sgpr_workgroup_id_x 1")
    A("  .amdhsa_float_denorm_mode_32 3")
    A(".end_amdhsa_kernel")
    return "\n".join(L) + "\n"

if __name__ == "__main__":
    name = sys.argv[1]; kw = {}
    for a in sys.argv[2:]:
        k, v = a.split("=")
        kw[k] = v if k in ("sk", "sv", "slo") else (int(v) if v.lstrip("-").isdigit() else v.replace("+", " "))
    open(name, "w").write(gen(**kw))
```

```python
import sys, struct, math
KN = "standalone__linear_kernel_rfa__sampling_kernel"

def f2u(x):
    return struct.unpack("<I", struct.pack("<f", x))[0]

HEADER = """; FAVOR+ linear attention (positive random features), one workgroup of 4 waves per (b,h).
"""

def gen(dk=6, dv=5, sk="0", sv="0", pol="nt", stamps=0, opol="", qpol="nt", spol="", qit=1, qstag=1,
        align=0, pf=1, st2=0, st1=0, epist=0, lpol=None, kfirst=0, prost=0, rw=0, spread=1, dlo=0, nlo=0, slo="1", nostore=0, ilv=0, ohalf=0, linst=0, oadj=0, qdiag=0, tlbo=0, tlbv=0, pmap=0, bhp="x01234567"):
    nw = 4
    L = []
    A = L.append
    nsteps = 16
    STEPB = 32 * nw * 256
    ISTR = 544
    WSTR = 9 * ISTR
    PSTR = 17 * 1024
    PBASE = nw * WSTR
    RSTR = 272
    OBASE = PBASE + nw * PSTR
    QBASE = OBASE + 8 * RSTR
    lds = QBASE + 32 * RSTR
    scale = 128.0 ** -0.25
    C1 = scale * math.log2(math.e)
    C2 = -1.5
    CF = -0.5 * scale
    EPS = f2u(1e-6)
    sk = str(sk) * 8; sv = str(sv) * 8
    if lpol is None: lpol = pol
    assert dk <= 7 and dv <= 7

    vA, vV0, vP, vL = 10, 11, 38, 39
    OM, ONES, vCF, vC2 = 12, 28, 32, 33
    WQ = 34
    R, VT = 40, 72
    U, Y = 104, 120
    G, S, PD, P, PV = 136, 140, 144, 148, 152
    FQ = 156
    PL = 164
    E = 180
    vZ = 191
    vQR, vPL = 188, 189
    ACC = 192
    NV = 228
    sS, sQ, sO, sOUT = 16, 24, 28, 32
    sVB = 20
    sM = 36
    sSELLO, sSELHI, sC1, sW, sCNT, sQIT = 44, 45, 46, 47, 48, 49
    sOFF0 = 50
    sX1, sX2 = 60, 62
    soffs = {}
    def soff(c):
        hi, lo = c & ~4095, c & 4095
        if hi == 0:
            return "0", lo
        if hi not in soffs:
            soffs[hi] = sOFF0 + len(soffs)
        return f"s{soffs[hi]}", lo
    def vr(b, n=4): return f"v[{b}:{b+n-1}]"
    TOFF = 32768 if pmap else nw * 4096
    def stepoff(st): return (st & 7) * 65536 + (st >> 3) * 16384 if pmap else st * STEPB
    def off(j8): return (j8 >> 2) * TOFF + (j8 & 3) * 1024
    def loff(u, r): return (u >> 1) * 4096 + (u & 1) * TOFF + r * 1024
    sDP = 58
    def advance(cnt_at_7):
        if not pmap: A(f"v_add_u32 v{vA}, {STEPB}, v{vA}"); return
        if cnt_at_7 is None: A(f"v_add_u32 v{vA}, 65536, v{vA}"); return
        A(f"s_cmp_eq_u32 s{sCNT}, {cnt_at_7}")
        A(f"s_cselect_b32 s3, {(stepoff(8) - stepoff(7)) & 0xffffffff:#x}, s{sDP}")
        A(f"v_add_u32 v{vA}, s3, v{vA}")
    for j8 in range(8): soff(off(j8))
    for u in range(8): soff(loff(u, 0))
    def load(n):
        so, im = soff(off(n))
        A(f"buffer_load_dwordx4 {vr(R+4*n)}, v{vA}, s[{sS}:{sS+3}], {so} offen offset:{im} {pol}")
    def lload(u):
        for r in range(4):
            so, im = soff(loff(u, r))
            A(f"buffer_load_dword v{R+4*u+r}, v{vL}, s[{sS}:{sS+3}], {so} offen offset:{im} {lpol}")
    def stamp(i):
        if stamps: A(f"s_memrealtime s[{64+2*i}:{65+2*i}]")

    def dppsel(dst, own, other, perm):
        A(f"v_cndmask_b32_dpp v{dst}, v{other}, v{own}, vcc quad_perm:{perm} row_mask:0xf bank_mask:0xf")
    def stage1(X, j):
        A(f"s_mov_b64 vcc, s[{sX1}:{sX1+1}]")
        for dw in range(4): dppsel(U+4*j+dw, X+4*j+dw, X+4*(j+1)+dw, "[1,0,3,2]")
        A("s_not_b64 vcc, vcc")
        for dw in range(4): dppsel(U+4*(j+1)+dw, X+4*(j+1)+dw, X+4*j+dw, "[1,0,3,2]")
    def stage2(dst):
        A(f"s_mov_b64 vcc, s[{sX2}:{sX2+1}]")
        for j in (0, 1):
            for dw in range(4): dppsel(dst+4*j+dw, U+4*j+dw, U+4*(j+2)+dw, "[2,3,0,1]")
        A("s_not_b64 vcc, vcc")
        for j in (0, 1):
            for dw in range(4): dppsel(dst+4*(j+2)+dw, U+4*(j+2)+dw, U+4*j+dw, "[2,3,0,1]")
    def chains(isq=False, X=Y):
        for jj in range(4):
            k = X + 4*jj
            A(f"v_mfma_f32_16x16x32_bf16 {vr(G)}, {vr(k)}, {vr(k)}, {'0' if jj==0 else vr(G)}")
        for jj in range(4):
            k = X + 4*jj
            a, b = (OM+4*jj, k) if isq else (k, OM+4*jj)
            A(f"v_mfma_f32_16x16x32_bf16 {vr(S)}, {vr(a)}, {vr(b)}, {'0' if jj==0 else vr(S)}")
    def gs(jj):
        k = Y + 4*jj
        return [f"v_mfma_f32_16x16x32_bf16 {vr(G)}, {vr(k)}, {vr(k)}, {'0' if jj==0 else vr(G)}",
                f"v_mfma_f32_16x16x32_bf16 {vr(S)}, {vr(k)}, {vr(OM+4*jj)}, {'0' if jj==0 else vr(S)}"]
    def weave(valu, mf, start):
        mf = list(mf); cnt = 0
        for i, x in enumerate(valu):
            A(x)
            if i >= start and x.startswith("v_"):
                cnt += 1
                if cnt % 2 == 0 and mf: A(mf.pop(0))
        for x in mf: A(x)
    def diag(isq=False):
        A(f"v_cndmask_b32 v{PD}, 0, v{G}, s[{sM}:{sM+1}]")
        for r in range(1, 4):
            A(f"v_cndmask_b32 v{PD}, v{PD}, v{G+r}, s[{sM+2*r}:{sM+2*r+1}]")
        A("s_nop 1")
        a, b = (vCF, PD) if isq else (PD, vCF)
        A(f"v_mfma_f32_16x16x4_f32 {vr(S)}, v{a}, v{b}, {vr(S)}")
    def phi(dst, f32=False):
        for r in range(4): A(f"v_fma_f32 v{S+r}, v{S+r}, s{sC1}, v{vC2}")
        for r in range(4): A(f"v_exp_f32 v{S+r}, v{S+r}")
        if f32:
            for r in range(4): A(f"v_add_f32 v{dst+r}, {EPS:#x}, v{S+r}")
            return
        for r in range(4): A(f"v_add_f32 v{S+r}, {EPS:#x}, v{S+r}")
        A(f"v_cvt_pk_bf16_f32 v{dst}, v{S}, v{S+1}")
        A(f"v_cvt_pk_bf16_f32 v{dst+1}, v{S+2}, v{S+3}")
    def vmfma(i):
        A(f"v_mfma_f32_16x16x32_bf16 {vr(ACC+4*i)}, {vr(PV)}, {vr(VT+4*i)}, {vr(ACC+4*i)}")
    def zmfma(src):
        A(f"v_mfma_f32_16x16x32_bf16 {vr(ACC+32)}, {vr(src)}, {vr(ONES)}, {vr(ACC+32)}")
    def perm(dst, a, b, hi):
        A(f"v_perm_b32 v{dst}, v{b}, v{a}, s{sSELHI if hi else sSELLO}")
    def perms(jp, mf=False):
        a, b = R + 8*jp, R + 8*jp + 4
        for i in range(8):
            perm(VT+4*i+jp, a+(i>>1), b+(i>>1), i & 1)
            if mf and i >= 2: vmfma(i-2)
        if mf:
            vmfma(6); vmfma(7)
    def pstore():
        A(f"ds_write_b128 v{vP}, {vr(P)}")
        A(f"v_add_u32 v{vP}, 1024, v{vP}")
    def pread():
        A(f"ds_read_b128 {vr(PV)}, v{vP}"); A(f"v_add_u32 v{vP}, 1024, v{vP}")

    A(HEADER + f"; @launch grid=(256,1,1) block=({nw*64},1,1) lds={lds}")
    A('.amdgcn_target "amdgcn-amd-amdhsa--gfx950"')
    A(".text"); A(f".globl {KN}"); A(".p2align 8"); A(f".type {KN},@function"); A(f"{KN}:")
    stamp(0)
    A("s_cmp_ge_u32 s2, 256"); A("s_cbranch_scc1 L_end")
    A("s_load_dwordx8 s[4:11], s[0:1], 0         ; q k v omega")
    if pf:
        A("s_getpc_b64 s[76:77]")
        A("L_pc:")
        A(f"v_lshlrev_b32 v3, {7 if pf == 1 else 6}, v0")
        A("v_min_u32 v3, L_codeend-L_pc-4, v3")
        A(f"global_load_dword v{PD}, v3, s[76:77]")
    A("s_load_dwordx2 s[12:13], s[0:1], 32       ; out")
    if stamps:
        A(f"s_load_dwordx2 s[14:15], s[0:1], {48 if stamps==1 else 40}")
    A("v_lshrrev_b32 v1, 6, v0            ; wave")
    A("v_and_b32 v2, 63, v0               ; lane")
    A("v_lshrrev_b32 v4, 4, v2            ; g = l>>4")
    A("v_bfe_u32 v6, v2, 2, 2             ; a = l3l2")
    A(f"v_readfirstlane_b32 s{sW}, v1")
    A("v_and_b32 v5, 3, v2"); A("v_lshlrev_b32 v5, 4, v5"); A("v_lshl_add_u32 v5, v4, 6, v5")
    A(f"v_lshl_add_u32 v{vA}, v6, 8, v5")
    A(f"v_lshl_add_u32 v{vA}, v1, 12, v{vA}")
    A("v_lshlrev_b32 v5, 4, v2            ; lane*16")
    A("v_and_b32 v7, 0x7f, v0"); A("v_lshlrev_b32 v7, 4, v7")
    A("v_lshl_add_u32 v8, v1, 11, v5      ; q offset")
    for hi, s in soffs.items():
        A(f"s_mov_b32 s{s}, {hi}")
    if pmap: A(f"s_mov_b32 s{sDP}, 65536")
    src = [int(c) for c in bhp[1:]]
    if src == list(range(8)):
        A("s_lshl_b32 s3, s2, 19"); A("s_lshl_b32 s22, s2, 13")
    else:
        groups = {}
        for i, b in enumerate(src): groups[i - b] = groups.get(i - b, 0) | (1 << b)
        firstg = True
        for sh, mask in sorted(groups.items()):
            t = "s22" if firstg else "s3"
            A(f"s_and_b32 {t}, s2, {mask:#x}")
            if sh > 0: A(f"s_lshl_b32 {t}, {t}, {sh}")
            if sh < 0: A(f"s_lshr_b32 {t}, {t}, {-sh}")
            if not firstg: A("s_or_b32 s22, s22, s3")
            firstg = False
        A("s_lshl_b32 s3, s22, 19"); A("s_lshl_b32 s22, s22, 13")
    A(f"s_mov_b32 s{sS+2}, 524288"); A(f"s_mov_b32 s{sS+3}, 0x20000")
    A(f"s_mov_b32 s{sO+2}, 2048"); A(f"s_mov_b32 s{sO+3}, 0x20000")
    A(f"s_mov_b32 s{sQ+2}, 8192"); A(f"s_mov_b32 s{sQ+3}, 0x20000")
    A("s_waitcnt lgkmcnt(0)")
    if not epist and not st1 and not prost: stamp(1)
    A(f"s_mov_b32 s{sO}, s10"); A(f"s_mov_b32 s{sO+1}, s11")
    lds_ = []
    def grab(fn):
        n0 = len(L); fn(); out = L[n0:]; del L[n0:]; return out
    ld_lines = []
    ld_lines += [f"buffer_load_dwordx4 {vr(VT)}, v7, s[{sO}:{sO+3}], 0 offen {opol}"]
    for j in range(2):
        if not qdiag: ld_lines += [f"buffer_load_dwordx4 {vr(VT+4+4*j)}, v8, s[{sQ}:{sQ+3}], 0 offen offset:{j*1024} {qpol}"]
    if qdiag: A("v_mov_b32 v190, v8")
    for n in range(dk): ld_lines += grab(lambda: load(n))
    def setup():
        A(f"s_add_u32 s{sQ}, s4, s22"); A(f"s_addc_u32 s{sQ+1}, s5, 0")
        A(f"s_add_u32 s{sS}, s6, s3"); A(f"s_addc_u32 s{sS+1}, s7, 0")
        A(f"s_add_u32 s{sVB}, s8, s3"); A(f"s_addc_u32 s{sVB+1}, s9, 0")
        A(f"s_add_u32 s{sOUT}, s12, s22"); A(f"s_addc_u32 s{sOUT+1}, s13, 0")
        A(f"s_mov_b32 s{sOUT+2}, 8192"); A(f"s_mov_b32 s{sOUT+3}, 0x20000")
        A("v_and_b32 v3, 15, v2               ; n = l&15")
        A(f"v_bfe_u32 v{G}, v0, 4, 3"); A(f"v_mul_u32_u24 v{G}, {RSTR}, v{G}"); A(f"v_lshl_add_u32 v{G}, v3, 4, v{G}")
        A(f"v_lshl_add_u32 v{G+1}, v1, 3, v4"); A(f"v_mul_u32_u24 v{G+1}, {RSTR}, v{G+1}"); A(f"v_lshl_add_u32 v{G+1}, v3, 4, v{G+1}")
        A("v_and_b32 v9, 7, v2"); A(f"v_mul_u32_u24 v9, {RSTR}, v9"); A("v_lshl_add_u32 v9, v4, 6, v9")
        A(f"v_mul_u32_u24 v{vQR}, {RSTR}, v3"); A(f"v_lshl_add_u32 v{vQR}, v4, 6, v{vQR}")
        A(f"v_add_u32 v{vQR}, {QBASE}, v{vQR}")
        A(f"v_add_u32 v{G}, {OBASE}, v{G}"); A(f"v_add_u32 v{G+1}, {QBASE}, v{G+1}"); A(f"v_add_u32 v9, {OBASE}, v9")
        for r in range(4):
            A(f"s_mov_b32 s{sM+2*r}, {(1<<r)|(1<<(20+r))}"); A(f"s_mov_b32 s{sM+2*r+1}, {(1<<(8+r))|(1<<(28+r))}")
        A(f"s_mov_b32 s{sSELLO}, 0x05040100"); A(f"s_mov_b32 s{sSELHI}, 0x07060302")
        A(f"s_mov_b32 s{sC1}, {f2u(C1):#x}")
        A(f"s_mov_b32 s{sX1}, 0x55555555"); A(f"s_mov_b32 s{sX1+1}, 0x55555555")
        A(f"s_mov_b32 s{sX2}, 0x33333333"); A(f"s_mov_b32 s{sX2+1}, 0x33333333")
        if tlbo or tlbv: A(f"v_mov_b32 v{vZ}, 0")
        A(f"v_mov_b32 v{vCF}, {f2u(CF):#x}"); A(f"v_mov_b32 v{vC2}, {f2u(C2):#x}")
        for r in range(4): A(f"v_mov_b32 v{ONES+r}, 0x3f803f80")
        for r in range(36): A(f"v_mov_b32 v{ACC+r}, 0")
        if qstag:
            A(f"s_sub_u32 s{sQIT}, {nsteps-2-qit}, s{sW}")
        else:
            A(f"s_mov_b32 s{sQIT}, {nsteps-2-qit}")
        A(f"s_mov_b32 s{sCNT}, {nsteps}")
        A(f"v_lshl_add_u32 v{vV0}, v1, 12, v5")
        A(f"s_mul_i32 s3, s{sW}, {PSTR}"); A(f"s_add_u32 s3, s3, {PBASE}")
        A(f"v_add_u32 v{vP}, s3, v5")
        A(f"v_add_u32 v{vPL}, {PBASE + 16*1024}, v5")
        A(f"v_lshlrev_b32 v{vL}, 8, v4"); A(f"v_lshl_add_u32 v{vL}, v1, 6, v{vL}"); A(f"v_lshl_add_u32 v{vL}, v3, 2, v{vL}")
        A(f"v_add_u32 v{vL}, {stepoff(15)}, v{vL}")
    su = grab(setup)
    if spread:
        gaps = len(ld_lines) - 1 - (1 if oadj else 0)
        per = -(-(len(su) - (2 if oadj else 0)) // gaps) if spread == 1 else spread
        if oadj == 2:
            for x in su[:2]: A(x)
            su = su[2:]
            ld_lines[0], ld_lines[1] = ld_lines[1], ld_lines[0]
        for k, ld in enumerate(ld_lines):
            A(ld)
            cnt = max(per, 4 if k == 0 else 0)
            if oadj and k == 0: cnt = 2 if oadj == 1 else 0
            take = su[:cnt]; su = su[len(take):]
            for x in take: A(x)
        for x in su: A(x)
    else:
        for x in su[:4]: A(x)
        for ld in ld_lines: A(ld)
        for x in su[4:]: A(x)
    if prost == 1: stamp(1)
    if tlbv: A(f"global_load_dword v{PD+1}, v{vZ}, s[{sVB}:{sVB+1}] nt")
    A(f"s_waitcnt vmcnt({dk + (1 if tlbv else 0)})")
    if prost == 1: stamp(2)
    if prost == 2: stamp(1)
    if not st2 and not epist and not prost: stamp(2)
    A(f"ds_write_b128 v{G}, {vr(VT)}")
    A(f"ds_write_b128 v{G+1}, {vr(VT+4)}")
    A(f"ds_write_b128 v{G+1}, {vr(VT+8)} offset:{4*RSTR}")
    A(f"s_mul_i32 s3, s{sW}, {WSTR}")
    A("v_add_u32 v5, s3, v5")
    A("v_and_b32 v7, 3, v2"); A(f"v_mul_u32_u24 v7, {2*ISTR}, v7")
    A("v_lshl_add_u32 v6, v6, 4, v7")
    A("v_and_b32 v7, 1, v4"); A("v_lshlrev_b32 v7, 8, v7"); A("v_add_u32 v6, v6, v7")
    A(f"s_lshl_b32 s3, s{sW}, 6"); A("v_add_u32 v6, s3, v6")
    A("v_lshlrev_b32 v8, 8, v3"); A("v_lshl_add_u32 v8, v4, 4, v8"); A("v_add_u32 v8, s3, v8")
    A("s_waitcnt lgkmcnt(0)")
    if prost == 2: stamp(2)
    A("s_barrier")
    for jj in range(4):
        A(f"ds_read_b128 {vr(OM+4*jj)}, v9 offset:{jj*16}")
    A("v_add_u32 v9, 4096, v8")
    if linst:
        A("v_lshlrev_b32 v8, 4, v2"); A("v_lshl_add_u32 v8, v1, 11, v8"); A("v_add_u32 v9, 1024, v8")
    if st1: stamp(1)

    if align: A(f".p2align {align}")
    A("L_kloop:")
    for r in range(8):
        x = dk - 1
        if sk[r] == "1": x -= 1
        A(f"s_waitcnt vmcnt({x})" + (" lgkmcnt(0)" if r == (4 if ilv else 5) else ""))
        late = dk == 7 and (r & 1)
        def issue():
            if r == 8 - dk:
                advance(9)
                A(f"s_cmp_lg_u32 s{sCNT}, 1"); A("s_cbranch_scc1 L_nosw")
                A(f"s_mov_b32 s{sS}, s{sVB}"); A(f"s_mov_b32 s{sS+1}, s{sVB+1}"); A(f"v_mov_b32 v{vA}, v{vV0}")
                A("L_nosw:")
            load((r + dk) & 7)
        if late:
            stage1(R + 16 * (r >> 2), r & 2); issue()
            if r in (1, 5): chains()
            if r == 3: phi(P+2)
            if r == 7: phi(P)
            continue
        issue()
        if dk == 7 and r in (2, 6): A("s_nop 1")
        if ilv:
            assert dk <= 6
            if r == 4: pstore()
            if r in (0, 4): weave(grab(lambda: stage2(Y)), gs(0) + gs(1), 10)
            if r in (1, 5):
                g3, s3 = gs(3); g2, s2 = gs(2)
                weave(grab(lambda: stage1(R + 16 * (r >> 2), 0)), [g2, g3, s2, s3], 0)
            if r in (2, 6): diag()
            if r in (3, 7): stage1(R + 16 * (r >> 2), 2); phi(P + (2 if r == 3 else 0))
            continue
        if r == 0: stage2(Y)
        if r == 1: chains(); stage1(R, 0)
        if r == 2: diag()
        if r == 3: stage1(R, 2); phi(P+2)
        if r == 4: pstore(); stage2(Y)
        if r == 5: chains(); stage1(R+16, 0)
        if r == 6: diag()
        if r == 7: stage1(R+16, 2); phi(P)
    if st2 and st2 <= 16:
        A(f"s_cmp_lg_u32 s{sCNT}, {nsteps + 1 - st2}"); A("s_cbranch_scc1 L_nost"); stamp(2); A("L_nost:")
    A(f"s_sub_u32 s{sCNT}, s{sCNT}, 1"); A(f"s_cmp_lg_u32 s{sCNT}, 0"); A("s_cbranch_scc1 L_kloop")

    def vstep(kind):
        first, pre = kind == "first", kind == "pre"
        issued = dk if first else dv
        for r in range(8):
            n = r + dv
            if pre:
                x = (min(issued, 8) - r - 1) + 4 * max(issued - 8, 0)
                if tlbo and 1 <= r <= dv: x += 1
            else:
                x = min(dv - 1 - (sv[r] == "1"), issued - r - 1) if issued <= n else issued - r - 1
            dl = dlo if (str(slo) * 8)[r] == "1" else dlo + 1
            if first and dlo: x = min(x, dl - 1)
            if kind == "mid" and dlo and dl < dv:
                A(f"s_cbranch_vccnz L_deep{r}"); A(f"s_waitcnt vmcnt({dl-1})"); A(f"L_deep{r}:")
            A(f"s_waitcnt vmcnt({x})")
            late = dv == 7 and (r & 1) and r < 7
            if late: perms(r >> 1)
            if r == 8 - dv and not pre: advance(None if first else 7)
            did = False
            def issue():
                nonlocal issued, did
                while issued <= n:
                    if pre and issued >= 8: lload(issued - 8)
                    else: load(issued & 7)
                    issued += 1; did = True
            if not (dv == 7 and r == 7): issue()
            if not did and r != 7: A("s_nop 0")
            if pre and r == 0 and tlbo:
                A(f"buffer_load_dword v{PD}, v{vZ}, s[{sOUT}:{sOUT+3}], 0 offen {'nt' if tlbo == 1 else ''}")
            if pre and r == 0 and qdiag == 1:
                for j in range(2): A(f"buffer_load_dwordx4 {vr(Y+4*j)}, v190, s[{sQ}:{sQ+3}], 0 offen offset:{j*1024} {qpol}")
            if first:
                if r == 0: stage2(Y)
                if r == 1: chains()
                if r == 2:
                    if late or dv == 7: A("s_nop 1")
                    diag()
                if r == 3:
                    if not late: perms(1)
                    phi(P+2)
                if r == 4: pstore(); A(f"v_subrev_u32 v{vP}, {16*1024}, v{vP}"); zmfma(P)
                if r == 5: pread()
            else:
                if r == 2: pread()
                if r == 3 and not late: perms(1)
                if r == 4 and not pre:
                    A(f"s_cmp_eq_u32 s{sCNT}, s{sQIT}"); A("s_cbranch_scc1 L_q"); A("L_qret:")
            if r == 1 and not late: perms(0)
            if r == 5 and not late: perms(2)
            if r == 6:
                A("s_waitcnt lgkmcnt(0)")
                zmfma(PV)
            if r == 7:
                if dv == 7:
                    perms(3); issue()
                    for i in range(8): vmfma(i)
                else:
                    perms(3, mf=True)
    vstep("first")
    A(f"s_mov_b32 s{sCNT}, {nsteps-3}")
    if dlo: A("s_mov_b64 vcc, 0")
    if align: A(f".p2align {align}")
    A("L_vloop:")
    vstep("mid")
    if st2 > 16:
        A(f"s_cmp_lg_u32 s{sCNT}, {31 - st2}"); A("s_cbranch_scc1 L_nost"); stamp(2); A("L_nost:")
    A(f"s_sub_u32 s{sCNT}, s{sCNT}, 1")
    if dlo:
        A(f"s_cmp_le_u32 s{sCNT}, {nsteps-3-nlo}"); A("s_cselect_b64 vcc, -1, 0")
    A(f"s_cmp_lg_u32 s{sCNT}, 0"); A("s_cbranch_scc1 L_vloop")
    vstep("pre")
    A("s_mov_b32 exec_hi, 0")
    A(f"ds_write_b128 v5, {vr(ACC+32)} offset:{8*ISTR}")
    for i in range(8):
        A(f"ds_write_b128 v5, {vr(ACC+4*i)} offset:{i*ISTR}")
    A("s_mov_b32 exec_hi, -1")
    def lperms(u):
        B = VT + 8 * (u >> 1); X = R + 4 * u
        for i in range(2):
            for h in range(2):
                perm(B + 4*i + 2*(u & 1) + h, X + 2*h, X + 2*h + 1, i)
    def lmfma(wp):
        for i in range(2):
            A(f"v_mfma_f32_16x16x32_bf16 {vr(E+4*i)}, {vr(PL+4*wp)}, {vr(VT+8*wp+4*i)}, {vr(E+4*i)}")
    for u in range(8 - dv):
        A(f"s_waitcnt vmcnt({4*(dv-1)})")
        lload(u + dv)
        lperms(u)
    A("s_waitcnt lgkmcnt(0)")
    A("s_barrier")
    if epist: stamp(1)
    RZ, RE = U, ACC
    for x in range(4): A(f"ds_read_b128 {vr(RZ+4*x)}, v7 offset:{x*WSTR + 8*ISTR}")
    for i in range(2):
        for x in range(4): A(f"ds_read_b128 {vr(RE+16*i+4*x)}, v6 offset:{x*WSTR + i*ISTR}")
    A("s_waitcnt lgkmcnt(8)")
    for x in range(4):
        A(f"ds_read_b128 {vr(PL+4*x)}, v{vPL} offset:{x*PSTR}")
    for r in range(4): A(f"v_add_f32 v{RZ+r}, v{RZ+r}, v{RZ+4+r}")
    for r in range(4): A(f"v_add_f32 v{RZ+8+r}, v{RZ+8+r}, v{RZ+12+r}")
    for r in range(4): A(f"v_add_f32 v{RZ+r}, v{RZ+r}, v{RZ+8+r}")
    D0, D1 = Y, Y + 2
    for t in range(2): A(f"v_mul_f32 v{D0+t}, v{FQ+4*t}, v{RZ}")
    for r in range(1, 4):
        for t in range(2): A(f"v_fmac_f32 v{D0+t}, v{FQ+4*t+r}, v{RZ+r}")
    for t in range(2): A(f"v_mov_b32 v{D1+t}, v{D0+t}")
    A("s_nop 1")
    for t in range(2): A(f"v_permlane16_swap_b32 v{D0+t}, v{D1+t}")
    A("s_nop 1")
    for t in range(2): A(f"v_add_f32 v{D0+t}, v{D0+t}, v{D1+t}")
    for t in range(2): A(f"v_add_f32 v{D0+t}, {EPS:#x}, v{D0+t}")
    for t in range(2): A(f"v_rcp_f32 v{D0+t}, v{D0+t}")
    A("s_mov_b32 vcc_lo, 0"); A("s_mov_b32 vcc_hi, -1")
    for t in range(2):
        for r in range(4): A(f"v_mul_f32 v{FQ+4*t+r}, v{FQ+4*t+r}, v{D0+t}")
    T0, T1, HI = Y + 4, Y + 8, Y + 12
    for p in range(4): A(f"v_cvt_pk_bf16_f32 v{HI+p}, v{FQ+2*p}, v{FQ+2*p+1}")
    for p in range(4): A(f"v_lshlrev_b32 v{T0+p}, 16, v{HI+p}")
    for p in range(4): A(f"v_and_b32 v{T1+p}, 0xffff0000, v{HI+p}")
    for p in range(4): A(f"v_sub_f32 v{T0+p}, v{FQ+2*p}, v{T0+p}")
    for p in range(4): A(f"v_sub_f32 v{T1+p}, v{FQ+2*p+1}, v{T1+p}")
    for p in range(4): A(f"v_cvt_pk_bf16_f32 v{T0+p}, v{T0+p}, v{T1+p}")
    for p in range(4): A(f"v_cndmask_b32 v{WQ+p}, v{HI+p}, v{T0+p}, vcc")
    A("s_waitcnt lgkmcnt(4)")
    for i in range(2):
        B = RE + 16 * i
        for r in range(4): A(f"v_add_f32 v{B+r}, v{B+r}, v{B+4+r}")
        for r in range(4): A(f"v_add_f32 v{B+8+r}, v{B+8+r}, v{B+12+r}")
        for r in range(4): A(f"v_add_f32 v{E+4*i+r}, v{B+r}, v{B+8+r}")
    A("s_waitcnt lgkmcnt(0)")
    done = 0
    for u in range(8 - dv, 8):
        A(f"s_waitcnt vmcnt({4*(7-u)})")
        if u == 7: stamp(3)
        lperms(u)
        if u & 1:
            A("s_nop 1")
            while done <= (u >> 1):
                lmfma(done); done += 1
    PA = U
    A("s_nop 6")
    for i in range(2):
        A(f"v_cvt_pk_bf16_f32 v{PA+2*i}, v{E+4*i}, v{E+4*i+1}")
        A(f"v_cvt_pk_bf16_f32 v{PA+2*i+1}, v{E+4*i+2}, v{E+4*i+3}")
    A("s_nop 0")
    DD = ACC
    for t in range(2):
        for i in range(2):
            A(f"v_mfma_f32_16x16x16_bf16 {vr(DD+8*t+4*i)}, {vr(PA+2*i,2)}, {vr(WQ+2*t,2)}, 0")
    A("s_nop 5")
    for t in range(2):
        O = Y + 4*t
        for r in range(4): A(f"v_cvt_pk_bf16_f32 v{O+r}, v{DD+8*t+r}, v{DD+8*t+4+r}")
        if nostore == 3 and t == 0: A("s_mov_b64 exec, 1")
        if not nostore or (nostore in (2, 3) and t == 0): A(f"buffer_store_dwordx4 {vr(O)}, v{8+t}, s[{sOUT}:{sOUT+3}], 0 offen {spol}")
    if epist: stamp(2)
    if stamps >= 3:
        A("s_waitcnt vmcnt(0)")
        stamp(4)
        A(f"s_cmp_lg_u32 s{sW}, 0"); A("s_cbranch_scc1 L_end")
        A("s_waitcnt lgkmcnt(0)")
        if stamps == 7: A("s_sub_u32 s3, s72, s64"); A("s_lshl_b32 s3, s3, 1"); A("s_sub_u32 s3, 12000, s3")
        if stamps == 5: A("s_sub_u32 s3, s72, s70"); A("s_mul_i32 s3, s3, 20")
        if stamps == 4: A("s_sub_u32 s3, s68, s64"); A("s_mul_i32 s3, s3, 20")
        if stamps in (10, 11, 12, 13):
            A("s_getreg_b32 s78, hwreg(HW_REG_XCC_ID)"); A("s_and_b32 s78, s78, 15")
            if stamps in (10, 11): A("s_cmp_ge_u32 s78, 4"); A(f"s_cbranch_scc{0 if stamps == 10 else 1} L_end")
            else: A(f"s_cmp_eq_u32 s78, {1 if stamps == 12 else 4}"); A("s_cbranch_scc0 L_end")
            A("s_sub_u32 s3, s72, s64"); A("s_sub_u32 s3, 6000, s3")
        if stamps == 3: A("s_sub_u32 s3, s72, s64")
        A("s_min_u32 s3, s3, 50000")
        A("L_spin:")
        A("s_memrealtime s[74:75]"); A("s_waitcnt lgkmcnt(0)")
        A("s_sub_u32 s74, s74, s72"); A("s_cmp_lt_u32 s74, s3"); A("s_cbranch_scc1 L_spin")
    if stamps == 1:
        A("s_waitcnt vmcnt(0)")
        A("s_barrier")
        stamp(4)
        A(f"s_cmp_lg_u32 s{sW}, {rw}"); A("s_cbranch_scc1 L_end")
        A("s_getreg_b32 s3, hwreg(HW_REG_XCC_ID)")
        A("s_waitcnt lgkmcnt(0)")
        A("v_mov_b32 v12, s64"); A("v_mov_b32 v13, s65"); A("v_mov_b32 v14, s72"); A("v_mov_b32 v15, s73")
        A("v_mov_b32 v16, s3"); A("v_mov_b32 v17, 0")
        A("s_sub_u32 s66, s66, s64"); A("s_sub_u32 s68, s68, s64"); A("s_sub_u32 s70, s70, s64")
        A("s_lshl_b32 s68, s68, 16"); A("s_or_b32 s66, s66, s68")
        A("v_mov_b32 v18, s66"); A("v_mov_b32 v19, s70")
        A("s_lshl_b32 s3, s2, 5"); A("v_mov_b32 v11, s3")
        A("s_mov_b64 exec, 1")
        A("global_store_dwordx4 v11, v[12:15], s[14:15]")
        A("global_store_dwordx4 v11, v[16:19], s[14:15] offset:16")
    A("L_end:")
    A("s_endpgm")
    A("L_q:")
    for t in range(2):
        for jj in range(4):
            A(f"ds_read_b128 {vr(U+16*t+4*jj)}, v{vQR} offset:{t*16*RSTR + jj*16}")
    for t in range(2):
        A(f"s_waitcnt lgkmcnt({4*(1-t)})")
        chains(isq=True, X=U+16*t)
        A("s_nop 3")
        diag(isq=True)
        A("s_nop 9")
        phi(FQ+4*t, f32=True)
    A("s_branch L_qret")
    A("L_codeend:")
    nv = (NV + 7) // 8 * 8
    A('.section .rodata,"a"'); A(".p2align 6"); A(f".amdhsa_kernel {KN}")
    A(f"  .amdhsa_next_free_vgpr {nv}"); A("  .amdhsa_next_free_sgpr 80"); A(f"  .amdhsa_accum_offset {nv}")
    A("  .amdhsa_group_segment_fixed_size 0"); A("  .amdhsa_kernarg_size 56"); A("  .amdhsa_user_sgpr_count 2")
    A("  .amdhsa_user_sgpr_kernarg_segment_ptr 1"); A("  .amdhsa_system_sgpr_workgroup_id_x 1")
    A("  .amdhsa_float_denorm_mode_32 3")
    A(".end_amdhsa_kernel")
    return "\n".join(L) + "\n"

if __name__ == "__main__":
    name = sys.argv[1]; kw = {}
    for a in sys.argv[2:]:
        k, v = a.split("=")
        kw[k] = v if k in ("sk", "sv", "slo") else (int(v) if v.lstrip("-").isdigit() else v.replace("+", " "))
    open(name, "w").write(gen(**kw))
```

```python
import sys, struct, math
KN = "standalone__linear_kernel_rfa__sampling_kernel"

def f2u(x):
    return struct.unpack("<I", struct.pack("<f", x))[0]

HEADER = """; FAVOR+ linear attention (positive random features), one workgroup of 4 waves per (b,h).
"""

def gen(dk=6, dv=5, sk="0", sv="0", pol="nt", stamps=0, opol="", qpol="nt", spol="", qit=1, qstag=1,
        align=0, pf=1, st2=0, st1=0, epist=0, lpol=None, kfirst=0, prost=0, rw=0, spread=1, dlo=0, nlo=0, slo="1", nostore=0, ilv=0, ohalf=0, linst=0, oadj=0, qdiag=0, tlbo=0, tlbv=0, pmap=0, bhp="x01234567", lord=0, vsp=0, aearly=0):
    nw = 4
    L = []
    A = L.append
    nsteps = 16
    STEPB = 32 * nw * 256
    ISTR = 544
    WSTR = 9 * ISTR
    PSTR = 17 * 1024
    PBASE = nw * WSTR
    RSTR = 272
    OBASE = PBASE + nw * PSTR
    QBASE = OBASE + 8 * RSTR
    lds = QBASE + 32 * RSTR
    scale = 128.0 ** -0.25
    C1 = scale * math.log2(math.e)
    C2 = -1.5
    CF = -0.5 * scale
    EPS = f2u(1e-6)
    sk = str(sk) * 8; sv = str(sv) * 8
    if lpol is None: lpol = pol
    assert dk <= 7 and dv <= 7

    vA, vV0, vP, vL = 10, 11, 38, 39
    OM, ONES, vCF, vC2 = 12, 28, 32, 33
    WQ = 34
    R, VT = 40, 72
    U, Y = 104, 120
    G, S, PD, P, PV = 136, 140, 144, 148, 152
    FQ = 156
    PL = 164
    E = 180
    vZ = 191
    vQR, vPL = 188, 189
    ACC = 192
    NV = 228
    sS, sQ, sO, sOUT = 16, 24, 28, 32
    sVB = 20
    sM = 36
    sSELLO, sSELHI, sC1, sW, sCNT, sQIT = 44, 45, 46, 47, 48, 49
    sOFF0 = 50
    sX1, sX2 = 60, 62
    soffs = {}
    def soff(c):
        hi, lo = c & ~4095, c & 4095
        if hi == 0:
            return "0", lo
        if hi not in soffs:
            soffs[hi] = sOFF0 + len(soffs)
        return f"s{soffs[hi]}", lo
    def vr(b, n=4): return f"v[{b}:{b+n-1}]"
    TOFF = 32768 if pmap else nw * 4096
    def stepoff(st): return (st & 7) * 65536 + (st >> 3) * 16384 if pmap else st * STEPB
    def off(j8): return (j8 >> 2) * TOFF + (j8 & 3) * 1024
    def uwt(u): return (u & 3, u >> 2) if lord else (u >> 1, u & 1)
    def loff(u, r): return uwt(u)[0] * 4096 + uwt(u)[1] * TOFF + r * 1024
    sDP = 58
    def advance(cnt_at_7):
        if not pmap: A(f"v_add_u32 v{vA}, {STEPB}, v{vA}"); return
        if cnt_at_7 is None: A(f"v_add_u32 v{vA}, 65536, v{vA}"); return
        A(f"s_cmp_eq_u32 s{sCNT}, {cnt_at_7}")
        A(f"s_cselect_b32 s3, {(stepoff(8) - stepoff(7)) & 0xffffffff:#x}, s{sDP}")
        A(f"v_add_u32 v{vA}, s3, v{vA}")
    for j8 in range(8): soff(off(j8))
    for u in range(8): soff(loff(u, 0))
    def load(n):
        so, im = soff(off(n))
        A(f"buffer_load_dwordx4 {vr(R+4*n)}, v{vA}, s[{sS}:{sS+3}], {so} offen offset:{im} {pol}")
    def lload(u):
        for r in range(4):
            so, im = soff(loff(u, r))
            A(f"buffer_load_dword v{R+4*u+r}, v{vL}, s[{sS}:{sS+3}], {so} offen offset:{im} {lpol}")
    def stamp(i):
        if stamps: A(f"s_memrealtime s[{64+2*i}:{65+2*i}]")

    def dppsel(dst, own, other, perm):
        A(f"v_cndmask_b32_dpp v{dst}, v{other}, v{own}, vcc quad_perm:{perm} row_mask:0xf bank_mask:0xf")
    def stage1(X, j):
        A(f"s_mov_b64 vcc, s[{sX1}:{sX1+1}]")
        for dw in range(4): dppsel(U+4*j+dw, X+4*j+dw, X+4*(j+1)+dw, "[1,0,3,2]")
        A("s_not_b64 vcc, vcc")
        for dw in range(4): dppsel(U+4*(j+1)+dw, X+4*(j+1)+dw, X+4*j+dw, "[1,0,3,2]")
    def stage2(dst):
        A(f"s_mov_b64 vcc, s[{sX2}:{sX2+1}]")
        for j in (0, 1):
            for dw in range(4): dppsel(dst+4*j+dw, U+4*j+dw, U+4*(j+2)+dw, "[2,3,0,1]")
        A("s_not_b64 vcc, vcc")
        for j in (0, 1):
            for dw in range(4): dppsel(dst+4*(j+2)+dw, U+4*(j+2)+dw, U+4*j+dw, "[2,3,0,1]")
    def chains(isq=False, X=Y):
        for jj in range(4):
            k = X + 4*jj
            A(f"v_mfma_f32_16x16x32_bf16 {vr(G)}, {vr(k)}, {vr(k)}, {'0' if jj==0 else vr(G)}")
        for jj in range(4):
            k = X + 4*jj
            a, b = (OM+4*jj, k) if isq else (k, OM+4*jj)
            A(f"v_mfma_f32_16x16x32_bf16 {vr(S)}, {vr(a)}, {vr(b)}, {'0' if jj==0 else vr(S)}")
    def gs(jj):
        k = Y + 4*jj
        return [f"v_mfma_f32_16x16x32_bf16 {vr(G)}, {vr(k)}, {vr(k)}, {'0' if jj==0 else vr(G)}",
                f"v_mfma_f32_16x16x32_bf16 {vr(S)}, {vr(k)}, {vr(OM+4*jj)}, {'0' if jj==0 else vr(S)}"]
    def weave(valu, mf, start):
        mf = list(mf); cnt = 0
        for i, x in enumerate(valu):
            A(x)
            if i >= start and x.startswith("v_"):
                cnt += 1
                if cnt % 2 == 0 and mf: A(mf.pop(0))
        for x in mf: A(x)
    def diag(isq=False):
        A(f"v_cndmask_b32 v{PD}, 0, v{G}, s[{sM}:{sM+1}]")
        for r in range(1, 4):
            A(f"v_cndmask_b32 v{PD}, v{PD}, v{G+r}, s[{sM+2*r}:{sM+2*r+1}]")
        A("s_nop 1")
        a, b = (vCF, PD) if isq else (PD, vCF)
        A(f"v_mfma_f32_16x16x4_f32 {vr(S)}, v{a}, v{b}, {vr(S)}")
    def phi(dst, f32=False):
        for r in range(4): A(f"v_fma_f32 v{S+r}, v{S+r}, s{sC1}, v{vC2}")
        for r in range(4): A(f"v_exp_f32 v{S+r}, v{S+r}")
        if f32:
            for r in range(4): A(f"v_add_f32 v{dst+r}, {EPS:#x}, v{S+r}")
            return
        for r in range(4): A(f"v_add_f32 v{S+r}, {EPS:#x}, v{S+r}")
        A(f"v_cvt_pk_bf16_f32 v{dst}, v{S}, v{S+1}")
        A(f"v_cvt_pk_bf16_f32 v{dst+1}, v{S+2}, v{S+3}")
    def vmfma(i):
        A(f"v_mfma_f32_16x16x32_bf16 {vr(ACC+4*i)}, {vr(PV)}, {vr(VT+4*i)}, {vr(ACC+4*i)}")
    def zmfma(src):
        A(f"v_mfma_f32_16x16x32_bf16 {vr(ACC+32)}, {vr(src)}, {vr(ONES)}, {vr(ACC+32)}")
    def perm(dst, a, b, hi):
        A(f"v_perm_b32 v{dst}, v{b}, v{a}, s{sSELHI if hi else sSELLO}")
    def perms(jp, mf=False, nmf=8):
        a, b = R + 8*jp, R + 8*jp + 4
        if mf and nmf == 4:
            for i in range(8):
                perm(VT+4*i+jp, a+(i>>1), b+(i>>1), i & 1)
                if i in (2, 4, 6, 7): vmfma({2: 0, 4: 1, 6: 2, 7: 3}[i])
            return
        for i in range(8):
            perm(VT+4*i+jp, a+(i>>1), b+(i>>1), i & 1)
            if mf and i >= 2: vmfma(i-2)
        if mf:
            vmfma(6); vmfma(7)
    def pstore():
        A(f"ds_write_b128 v{vP}, {vr(P)}")
        A(f"v_add_u32 v{vP}, 1024, v{vP}")
    def pread():
        A(f"ds_read_b128 {vr(PV)}, v{vP}"); A(f"v_add_u32 v{vP}, 1024, v{vP}")

    A(HEADER + f"; @launch grid=(256,1,1) block=({nw*64},1,1) lds={lds}")
    A('.amdgcn_target "amdgcn-amd-amdhsa--gfx950"')
    A(".text"); A(f".globl {KN}"); A(".p2align 8"); A(f".type {KN},@function"); A(f"{KN}:")
    stamp(0)
    A("s_cmp_ge_u32 s2, 256"); A("s_cbranch_scc1 L_end")
    A("s_load_dwordx8 s[4:11], s[0:1], 0         ; q k v omega")
    if pf:
        A("s_getpc_b64 s[76:77]")
        A("L_pc:")
        A(f"v_lshlrev_b32 v3, {7 if pf == 1 else 6}, v0")
        A("v_min_u32 v3, L_codeend-L_pc-4, v3")
        A(f"global_load_dword v{PD}, v3, s[76:77]")
    A("s_load_dwordx2 s[12:13], s[0:1], 32       ; out")
    if stamps:
        A(f"s_load_dwordx2 s[14:15], s[0:1], {48 if stamps==1 else 40}")
    A("v_lshrrev_b32 v1, 6, v0            ; wave")
    A("v_and_b32 v2, 63, v0               ; lane")
    A("v_lshrrev_b32 v4, 4, v2            ; g = l>>4")
    A("v_bfe_u32 v6, v2, 2, 2             ; a = l3l2")
    A(f"v_readfirstlane_b32 s{sW}, v1")
    A("v_and_b32 v5, 3, v2"); A("v_lshlrev_b32 v5, 4, v5"); A("v_lshl_add_u32 v5, v4, 6, v5")
    A(f"v_lshl_add_u32 v{vA}, v6, 8, v5")
    A(f"v_lshl_add_u32 v{vA}, v1, 12, v{vA}")
    A("v_lshlrev_b32 v5, 4, v2            ; lane*16")
    A("v_and_b32 v7, 0x7f, v0"); A("v_lshlrev_b32 v7, 4, v7")
    A("v_lshl_add_u32 v8, v1, 11, v5      ; q offset")
    for hi, s in soffs.items():
        A(f"s_mov_b32 s{s}, {hi}")
    if pmap: A(f"s_mov_b32 s{sDP}, 65536")
    src = [int(c) for c in bhp[1:]]
    if src == list(range(8)):
        A("s_lshl_b32 s3, s2, 19"); A("s_lshl_b32 s22, s2, 13")
    else:
        groups = {}
        for i, b in enumerate(src): groups[i - b] = groups.get(i - b, 0) | (1 << b)
        firstg = True
        for sh, mask in sorted(groups.items()):
            t = "s22" if firstg else "s3"
            A(f"s_and_b32 {t}, s2, {mask:#x}")
            if sh > 0: A(f"s_lshl_b32 {t}, {t}, {sh}")
            if sh < 0: A(f"s_lshr_b32 {t}, {t}, {-sh}")
            if not firstg: A("s_or_b32 s22, s22, s3")
            firstg = False
        A("s_lshl_b32 s3, s22, 19"); A("s_lshl_b32 s22, s22, 13")
    A(f"s_mov_b32 s{sS+2}, 524288"); A(f"s_mov_b32 s{sS+3}, 0x20000")
    A(f"s_mov_b32 s{sO+2}, 2048"); A(f"s_mov_b32 s{sO+3}, 0x20000")
    A(f"s_mov_b32 s{sQ+2}, 8192"); A(f"s_mov_b32 s{sQ+3}, 0x20000")
    A("s_waitcnt lgkmcnt(0)")
    if not epist and not st1 and not prost: stamp(1)
    A(f"s_mov_b32 s{sO}, s10"); A(f"s_mov_b32 s{sO+1}, s11")
    lds_ = []
    def grab(fn):
        n0 = len(L); fn(); out = L[n0:]; del L[n0:]; return out
    ld_lines = []
    ld_lines += [f"buffer_load_dwordx4 {vr(VT)}, v7, s[{sO}:{sO+3}], 0 offen {opol}"]
    for j in range(2):
        if not qdiag: ld_lines += [f"buffer_load_dwordx4 {vr(VT+4+4*j)}, v8, s[{sQ}:{sQ+3}], 0 offen offset:{j*1024} {qpol}"]
    if qdiag: A("v_mov_b32 v190, v8")
    for n in range(dk): ld_lines += grab(lambda: load(n))
    def setup():
        A(f"s_add_u32 s{sQ}, s4, s22"); A(f"s_addc_u32 s{sQ+1}, s5, 0")
        A(f"s_add_u32 s{sS}, s6, s3"); A(f"s_addc_u32 s{sS+1}, s7, 0")
        A(f"s_add_u32 s{sVB}, s8, s3"); A(f"s_addc_u32 s{sVB+1}, s9, 0")
        A(f"s_add_u32 s{sOUT}, s12, s22"); A(f"s_addc_u32 s{sOUT+1}, s13, 0")
        A(f"s_mov_b32 s{sOUT+2}, 8192"); A(f"s_mov_b32 s{sOUT+3}, 0x20000")
        A("v_and_b32 v3, 15, v2               ; n = l&15")
        A(f"v_bfe_u32 v{G}, v0, 4, 3"); A(f"v_mul_u32_u24 v{G}, {RSTR}, v{G}"); A(f"v_lshl_add_u32 v{G}, v3, 4, v{G}")
        A(f"v_lshl_add_u32 v{G+1}, v1, 3, v4"); A(f"v_mul_u32_u24 v{G+1}, {RSTR}, v{G+1}"); A(f"v_lshl_add_u32 v{G+1}, v3, 4, v{G+1}")
        A("v_and_b32 v9, 7, v2"); A(f"v_mul_u32_u24 v9, {RSTR}, v9"); A("v_lshl_add_u32 v9, v4, 6, v9")
        A(f"v_mul_u32_u24 v{vQR}, {RSTR}, v3"); A(f"v_lshl_add_u32 v{vQR}, v4, 6, v{vQR}")
        A(f"v_add_u32 v{vQR}, {QBASE}, v{vQR}")
        A(f"v_add_u32 v{G}, {OBASE}, v{G}"); A(f"v_add_u32 v{G+1}, {QBASE}, v{G+1}"); A(f"v_add_u32 v9, {OBASE}, v9")
        for r in range(4):
            A(f"s_mov_b32 s{sM+2*r}, {(1<<r)|(1<<(20+r))}"); A(f"s_mov_b32 s{sM+2*r+1}, {(1<<(8+r))|(1<<(28+r))}")
        A(f"s_mov_b32 s{sSELLO}, 0x05040100"); A(f"s_mov_b32 s{sSELHI}, 0x07060302")
        A(f"s_mov_b32 s{sC1}, {f2u(C1):#x}")
        A(f"s_mov_b32 s{sX1}, 0x55555555"); A(f"s_mov_b32 s{sX1+1}, 0x55555555")
        A(f"s_mov_b32 s{sX2}, 0x33333333"); A(f"s_mov_b32 s{sX2+1}, 0x33333333")
        if tlbo or tlbv: A(f"v_mov_b32 v{vZ}, 0")
        A(f"v_mov_b32 v{vCF}, {f2u(CF):#x}"); A(f"v_mov_b32 v{vC2}, {f2u(C2):#x}")
        for r in range(4): A(f"v_mov_b32 v{ONES+r}, 0x3f803f80")
        for r in range(36): A(f"v_mov_b32 v{ACC+r}, 0")
        if qstag:
            A(f"s_sub_u32 s{sQIT}, {nsteps-2-qit}, s{sW}")
        else:
            A(f"s_mov_b32 s{sQIT}, {nsteps-2-qit}")
        A(f"s_mov_b32 s{sCNT}, {nsteps}")
        A(f"v_lshl_add_u32 v{vV0}, v1, 12, v5")
        A(f"s_mul_i32 s3, s{sW}, {PSTR}"); A(f"s_add_u32 s3, s3, {PBASE}")
        A(f"v_add_u32 v{vP}, s3, v5")
        A(f"v_add_u32 v{vPL}, {PBASE + 16*1024}, v5")
        A(f"v_lshlrev_b32 v{vL}, 8, v4"); A(f"v_lshl_add_u32 v{vL}, v1, 6, v{vL}"); A(f"v_lshl_add_u32 v{vL}, v3, 2, v{vL}")
        A(f"v_add_u32 v{vL}, {stepoff(15)}, v{vL}")
    su = grab(setup)
    if spread:
        gaps = len(ld_lines) - 1 - (1 if oadj else 0)
        per = -(-(len(su) - (2 if oadj else 0)) // gaps) if spread == 1 else spread
        if oadj == 2:
            for x in su[:2]: A(x)
            su = su[2:]
            ld_lines[0], ld_lines[1] = ld_lines[1], ld_lines[0]
        for k, ld in enumerate(ld_lines):
            A(ld)
            cnt = max(per, 4 if k == 0 else 0)
            if oadj and k == 0: cnt = 2 if oadj == 1 else 0
            take = su[:cnt]; su = su[len(take):]
            for x in take: A(x)
        for x in su: A(x)
    else:
        for x in su[:4]: A(x)
        for ld in ld_lines: A(ld)
        for x in su[4:]: A(x)
    if prost == 1: stamp(1)
    if tlbv: A(f"global_load_dword v{PD+1}, v{vZ}, s[{sVB}:{sVB+1}] nt")
    A(f"s_waitcnt vmcnt({dk + (1 if tlbv else 0)})")
    if prost == 1: stamp(2)
    if prost == 2: stamp(1)
    if not st2 and not epist and not prost: stamp(2)
    A(f"ds_write_b128 v{G}, {vr(VT)}")
    A(f"ds_write_b128 v{G+1}, {vr(VT+4)}")
    A(f"ds_write_b128 v{G+1}, {vr(VT+8)} offset:{4*RSTR}")
    A(f"s_mul_i32 s3, s{sW}, {WSTR}")
    A("v_add_u32 v5, s3, v5")
    A("v_and_b32 v7, 3, v2"); A(f"v_mul_u32_u24 v7, {2*ISTR}, v7")
    A("v_lshl_add_u32 v6, v6, 4, v7")
    A("v_and_b32 v7, 1, v4"); A("v_lshlrev_b32 v7, 8, v7"); A("v_add_u32 v6, v6, v7")
    A(f"s_lshl_b32 s3, s{sW}, 6"); A("v_add_u32 v6, s3, v6")
    A("v_lshlrev_b32 v8, 8, v3"); A("v_lshl_add_u32 v8, v4, 4, v8"); A("v_add_u32 v8, s3, v8")
    A("s_waitcnt lgkmcnt(0)")
    if prost == 2: stamp(2)
    A("s_barrier")
    for jj in range(4):
        A(f"ds_read_b128 {vr(OM+4*jj)}, v9 offset:{jj*16}")
    A("v_add_u32 v9, 4096, v8")
    if linst:
        A("v_lshlrev_b32 v8, 4, v2"); A("v_lshl_add_u32 v8, v1, 11, v8"); A("v_add_u32 v9, 1024, v8")
    if st1: stamp(1)

    if align: A(f".p2align {align}")
    A("L_kloop:")
    for r in range(8):
        x = dk - 1
        if sk[r] == "1": x -= 1
        A(f"s_waitcnt vmcnt({x})" + (" lgkmcnt(0)" if r == (4 if ilv else 5) else ""))
        late = dk == 7 and (r & 1)
        def kadv():
            advance(9)
            A(f"s_cmp_lg_u32 s{sCNT}, 1"); A("s_cbranch_scc1 L_nosw")
            A(f"s_mov_b32 s{sS}, s{sVB}"); A(f"s_mov_b32 s{sS+1}, s{sVB+1}"); A(f"v_mov_b32 v{vA}, v{vV0}")
            A("L_nosw:")
        def issue():
            if r == 8 - dk and not aearly: kadv()
            load((r + dk) & 7)
            if r == 7 - dk and aearly: kadv()
        if late and ilv:
            if r in (1, 5):
                g3, s3 = gs(3); g2, s2 = gs(2)
                weave(grab(lambda: stage1(R + 16 * (r >> 2), 0)), [g2, g3, s2, s3], 0); issue()
            else:
                stage1(R + 16 * (r >> 2), 2); issue(); phi(P + (2 if r == 3 else 0))
            continue
        if late:
            stage1(R + 16 * (r >> 2), r & 2); issue()
            if r in (1, 5): chains()
            if r == 3: phi(P+2)
            if r == 7: phi(P)
            continue
        issue()
        if dk == 7 and r in (2, 6) and not ilv: A("s_nop 1")
        if ilv:
            if r == 4: pstore()
            if r in (0, 4): weave(grab(lambda: stage2(Y)), gs(0) + gs(1), 10)
            if r in (1, 5):
                g3, s3 = gs(3); g2, s2 = gs(2)
                weave(grab(lambda: stage1(R + 16 * (r >> 2), 0)), [g2, g3, s2, s3], 0)
            if r in (2, 6): diag()
            if r in (3, 7): stage1(R + 16 * (r >> 2), 2); phi(P + (2 if r == 3 else 0))
            continue
        if r == 0: stage2(Y)
        if r == 1: chains(); stage1(R, 0)
        if r == 2: diag()
        if r == 3: stage1(R, 2); phi(P+2)
        if r == 4: pstore(); stage2(Y)
        if r == 5: chains(); stage1(R+16, 0)
        if r == 6: diag()
        if r == 7: stage1(R+16, 2); phi(P)
    if st2 and st2 <= 16:
        A(f"s_cmp_lg_u32 s{sCNT}, {nsteps + 1 - st2}"); A("s_cbranch_scc1 L_nost"); stamp(2); A("L_nost:")
    A(f"s_sub_u32 s{sCNT}, s{sCNT}, 1"); A(f"s_cmp_lg_u32 s{sCNT}, 0"); A("s_cbranch_scc1 L_kloop")

    def vstep(kind):
        first, pre = kind == "first", kind == "pre"
        issued = dk if first else dv
        for r in range(8):
            n = r + dv
            if pre:
                x = (min(issued, 8) - r - 1) + 4 * max(issued - 8, 0)
                if tlbo and 1 <= r <= dv: x += 1
            else:
                x = min(dv - 1 - (sv[r] == "1"), issued - r - 1) if issued <= n else issued - r - 1
            dl = dlo if (str(slo) * 8)[r] == "1" else dlo + 1
            if first and dlo: x = min(x, dl - 1)
            if kind == "mid" and dlo and dl < dv:
                A(f"s_cbranch_vccnz L_deep{r}"); A(f"s_waitcnt vmcnt({dl-1})"); A(f"L_deep{r}:")
            A(f"s_waitcnt vmcnt({x})")
            late = dv == 7 and (r & 1) and r < 7
            if late: perms(r >> 1)
            if r == 8 - dv and not pre and not aearly: advance(None if first else 7)
            did = False
            def issue():
                nonlocal issued, did
                while issued <= n:
                    if pre and issued >= 8: lload(issued - 8)
                    else: load(issued & 7)
                    issued += 1; did = True
            if not (dv == 7 and r == 7): issue()
            if not did and r != 7: A("s_nop 0")
            if r == 7 - dv and not pre and aearly: advance(None if first else 7)
            if pre and r == 0 and tlbo:
                A(f"buffer_load_dword v{PD}, v{vZ}, s[{sOUT}:{sOUT+3}], 0 offen {'nt' if tlbo == 1 else ''}")
            if pre and r == 0 and qdiag == 1:
                for j in range(2): A(f"buffer_load_dwordx4 {vr(Y+4*j)}, v190, s[{sQ}:{sQ+3}], 0 offen offset:{j*1024} {qpol}")
            if first:
                if r == 0: stage2(Y)
                if r == 1: chains()
                if r == 2:
                    if late or dv == 7: A("s_nop 1")
                    diag()
                if r == 3:
                    if not late: perms(1)
                    phi(P+2)
                if r == 4: pstore(); A(f"v_subrev_u32 v{vP}, {16*1024}, v{vP}"); zmfma(P)
                if r == 5: pread()
            else:
                if r == 0 and vsp:
                    assert dv < 7
                    for i in range(4, 8): vmfma(i)
                if r == 2: pread()
                if r == 3 and not late: perms(1)
                if r == 4 and not pre:
                    A(f"s_cmp_eq_u32 s{sCNT}, s{sQIT}"); A("s_cbranch_scc1 L_q"); A("L_qret:")
            if r == 1 and not late: perms(0)
            if r == 5 and not late: perms(2)
            if r == 6:
                A("s_waitcnt lgkmcnt(0)")
                zmfma(PV)
            if r == 7:
                if dv == 7:
                    perms(3); issue()
                    for i in range(8): vmfma(i)
                else:
                    perms(3, mf=True, nmf=4 if (vsp and not pre) else 8)
    vstep("first")
    A(f"s_mov_b32 s{sCNT}, {nsteps-3}")
    if dlo: A("s_mov_b64 vcc, 0")
    if align: A(f".p2align {align}")
    A("L_vloop:")
    vstep("mid")
    if st2 > 16:
        A(f"s_cmp_lg_u32 s{sCNT}, {31 - st2}"); A("s_cbranch_scc1 L_nost"); stamp(2); A("L_nost:")
    A(f"s_sub_u32 s{sCNT}, s{sCNT}, 1")
    if dlo:
        A(f"s_cmp_le_u32 s{sCNT}, {nsteps-3-nlo}"); A("s_cselect_b64 vcc, -1, 0")
    A(f"s_cmp_lg_u32 s{sCNT}, 0"); A("s_cbranch_scc1 L_vloop")
    vstep("pre")
    A("s_mov_b32 exec_hi, 0")
    A(f"ds_write_b128 v5, {vr(ACC+32)} offset:{8*ISTR}")
    for i in range(8):
        A(f"ds_write_b128 v5, {vr(ACC+4*i)} offset:{i*ISTR}")
    A("s_mov_b32 exec_hi, -1")
    def lperms(u):
        wp, T = uwt(u)
        B = VT + 8 * wp; X = R + 4 * u
        for i in range(2):
            for h in range(2):
                perm(B + 4*i + 2*T + h, X + 2*h, X + 2*h + 1, i)
    def lmfma(wp):
        for i in range(2):
            A(f"v_mfma_f32_16x16x32_bf16 {vr(E+4*i)}, {vr(PL+4*wp)}, {vr(VT+8*wp+4*i)}, {vr(E+4*i)}")
    for u in range(8 - dv):
        A(f"s_waitcnt vmcnt({4*(dv-1)})")
        lload(u + dv)
        lperms(u)
    A("s_waitcnt lgkmcnt(0)")
    A("s_barrier")
    if epist: stamp(1)
    RZ, RE = U, ACC
    for x in range(4): A(f"ds_read_b128 {vr(RZ+4*x)}, v7 offset:{x*WSTR + 8*ISTR}")
    for i in range(2):
        for x in range(4): A(f"ds_read_b128 {vr(RE+16*i+4*x)}, v6 offset:{x*WSTR + i*ISTR}")
    A("s_waitcnt lgkmcnt(8)")
    for x in range(4):
        A(f"ds_read_b128 {vr(PL+4*x)}, v{vPL} offset:{x*PSTR}")
    for r in range(4): A(f"v_add_f32 v{RZ+r}, v{RZ+r}, v{RZ+4+r}")
    for r in range(4): A(f"v_add_f32 v{RZ+8+r}, v{RZ+8+r}, v{RZ+12+r}")
    for r in range(4): A(f"v_add_f32 v{RZ+r}, v{RZ+r}, v{RZ+8+r}")
    D0, D1 = Y, Y + 2
    for t in range(2): A(f"v_mul_f32 v{D0+t}, v{FQ+4*t}, v{RZ}")
    for r in range(1, 4):
        for t in range(2): A(f"v_fmac_f32 v{D0+t}, v{FQ+4*t+r}, v{RZ+r}")
    for t in range(2): A(f"v_mov_b32 v{D1+t}, v{D0+t}")
    A("s_nop 1")
    for t in range(2): A(f"v_permlane16_swap_b32 v{D0+t}, v{D1+t}")
    A("s_nop 1")
    for t in range(2): A(f"v_add_f32 v{D0+t}, v{D0+t}, v{D1+t}")
    for t in range(2): A(f"v_add_f32 v{D0+t}, {EPS:#x}, v{D0+t}")
    for t in range(2): A(f"v_rcp_f32 v{D0+t}, v{D0+t}")
    A("s_mov_b32 vcc_lo, 0"); A("s_mov_b32 vcc_hi, -1")
    for t in range(2):
        for r in range(4): A(f"v_mul_f32 v{FQ+4*t+r}, v{FQ+4*t+r}, v{D0+t}")
    T0, T1, HI = Y + 4, Y + 8, Y + 12
    for p in range(4): A(f"v_cvt_pk_bf16_f32 v{HI+p}, v{FQ+2*p}, v{FQ+2*p+1}")
    for p in range(4): A(f"v_lshlrev_b32 v{T0+p}, 16, v{HI+p}")
    for p in range(4): A(f"v_and_b32 v{T1+p}, 0xffff0000, v{HI+p}")
    for p in range(4): A(f"v_sub_f32 v{T0+p}, v{FQ+2*p}, v{T0+p}")
    for p in range(4): A(f"v_sub_f32 v{T1+p}, v{FQ+2*p+1}, v{T1+p}")
    for p in range(4): A(f"v_cvt_pk_bf16_f32 v{T0+p}, v{T0+p}, v{T1+p}")
    for p in range(4): A(f"v_cndmask_b32 v{WQ+p}, v{HI+p}, v{T0+p}, vcc")
    A("s_waitcnt lgkmcnt(4)")
    for i in range(2):
        B = RE + 16 * i
        for r in range(4): A(f"v_add_f32 v{B+r}, v{B+r}, v{B+4+r}")
        for r in range(4): A(f"v_add_f32 v{B+8+r}, v{B+8+r}, v{B+12+r}")
        for r in range(4): A(f"v_add_f32 v{E+4*i+r}, v{B+r}, v{B+8+r}")
    A("s_waitcnt lgkmcnt(0)")
    done = 0
    for u in range(8 - dv, 8):
        A(f"s_waitcnt vmcnt({4*(7-u)})")
        if u == 7: stamp(3)
        lperms(u)
        if uwt(u)[1]:
            A("s_nop 1")
            while done <= uwt(u)[0]:
                lmfma(done); done += 1
    PA = U
    A("s_nop 6")
    for i in range(2):
        A(f"v_cvt_pk_bf16_f32 v{PA+2*i}, v{E+4*i}, v{E+4*i+1}")
        A(f"v_cvt_pk_bf16_f32 v{PA+2*i+1}, v{E+4*i+2}, v{E+4*i+3}")
    A("s_nop 0")
    DD = ACC
    for t in range(2):
        for i in range(2):
            A(f"v_mfma_f32_16x16x16_bf16 {vr(DD+8*t+4*i)}, {vr(PA+2*i,2)}, {vr(WQ+2*t,2)}, 0")
    A("s_nop 5")
    for t in range(2):
        O = Y + 4*t
        for r in range(4): A(f"v_cvt_pk_bf16_f32 v{O+r}, v{DD+8*t+r}, v{DD+8*t+4+r}")
        if nostore == 3 and t == 0: A("s_mov_b64 exec, 1")
        if not nostore or (nostore in (2, 3) and t == 0): A(f"buffer_store_dwordx4 {vr(O)}, v{8+t}, s[{sOUT}:{sOUT+3}], 0 offen {spol}")
    if epist: stamp(2)
    if stamps >= 3:
        A("s_waitcnt vmcnt(0)")
        stamp(4)
        A(f"s_cmp_lg_u32 s{sW}, 0"); A("s_cbranch_scc1 L_end")
        A("s_waitcnt lgkmcnt(0)")
        if stamps == 7: A("s_sub_u32 s3, s72, s64"); A("s_lshl_b32 s3, s3, 1"); A("s_sub_u32 s3, 12000, s3")
        if stamps == 5: A("s_sub_u32 s3, s72, s70"); A("s_mul_i32 s3, s3, 20")
        if stamps == 4: A("s_sub_u32 s3, s68, s64"); A("s_mul_i32 s3, s3, 20")
        if stamps in (10, 11, 12, 13):
            A("s_getreg_b32 s78, hwreg(HW_REG_XCC_ID)"); A("s_and_b32 s78, s78, 15")
            if stamps in (10, 11): A("s_cmp_ge_u32 s78, 4"); A(f"s_cbranch_scc{0 if stamps == 10 else 1} L_end")
            else: A(f"s_cmp_eq_u32 s78, {1 if stamps == 12 else 4}"); A("s_cbranch_scc0 L_end")
            A("s_sub_u32 s3, s72, s64"); A("s_sub_u32 s3, 6000, s3")
        if stamps == 14: A("s_sub_u32 s3, s72, s64"); A("s_mul_i32 s3, s3, 4")
        if stamps == 3: A("s_sub_u32 s3, s72, s64")
        A("s_min_u32 s3, s3, 50000")
        A("L_spin:")
        A("s_memrealtime s[74:75]"); A("s_waitcnt lgkmcnt(0)")
        A("s_sub_u32 s74, s74, s72"); A("s_cmp_lt_u32 s74, s3"); A("s_cbranch_scc1 L_spin")
    if stamps == 1:
        A("s_waitcnt vmcnt(0)")
        A("s_barrier")
        stamp(4)
        A(f"s_cmp_lg_u32 s{sW}, {rw}"); A("s_cbranch_scc1 L_end")
        A("s_getreg_b32 s3, hwreg(HW_REG_XCC_ID)")
        A("s_waitcnt lgkmcnt(0)")
        A("v_mov_b32 v12, s64"); A("v_mov_b32 v13, s65"); A("v_mov_b32 v14, s72"); A("v_mov_b32 v15, s73")
        A("v_mov_b32 v16, s3"); A("v_mov_b32 v17, 0")
        A("s_sub_u32 s66, s66, s64"); A("s_sub_u32 s68, s68, s64"); A("s_sub_u32 s70, s70, s64")
        A("s_lshl_b32 s68, s68, 16"); A("s_or_b32 s66, s66, s68")
        A("v_mov_b32 v18, s66"); A("v_mov_b32 v19, s70")
        A("s_lshl_b32 s3, s2, 5"); A("v_mov_b32 v11, s3")
        A("s_mov_b64 exec, 1")
        A("global_store_dwordx4 v11, v[12:15], s[14:15]")
        A("global_store_dwordx4 v11, v[16:19], s[14:15] offset:16")
    A("L_end:")
    A("s_endpgm")
    A("L_q:")
    for t in range(2):
        for jj in range(4):
            A(f"ds_read_b128 {vr(U+16*t+4*jj)}, v{vQR} offset:{t*16*RSTR + jj*16}")
    for t in range(2):
        A(f"s_waitcnt lgkmcnt({4*(1-t)})")
        chains(isq=True, X=U+16*t)
        A("s_nop 3")
        diag(isq=True)
        A("s_nop 9")
        phi(FQ+4*t, f32=True)
    A("s_branch L_qret")
    A("L_codeend:")
    nv = (NV + 7) // 8 * 8
    A('.section .rodata,"a"'); A(".p2align 6"); A(f".amdhsa_kernel {KN}")
    A(f"  .amdhsa_next_free_vgpr {nv}"); A("  .amdhsa_next_free_sgpr 80"); A(f"  .amdhsa_accum_offset {nv}")
    A("  .amdhsa_group_segment_fixed_size 0"); A("  .amdhsa_kernarg_size 56"); A("  .amdhsa_user_sgpr_count 2")
    A("  .amdhsa_user_sgpr_kernarg_segment_ptr 1"); A("  .amdhsa_system_sgpr_workgroup_id_x 1")
    A("  .amdhsa_float_denorm_mode_32 3")
    A(".end_amdhsa_kernel")
    return "\n".join(L) + "\n"

if __name__ == "__main__":
    name = sys.argv[1]; kw = {}
    for a in sys.argv[2:]:
        k, v = a.split("=")
        kw[k] = v if k in ("sk", "sv", "slo") else (int(v) if v.lstrip("-").isdigit() else v.replace("+", " "))
    open(name, "w").write(gen(**kw))
```

```python
import sys, struct, math
KN = "standalone__linear_kernel_rfa__sampling_kernel"

def f2u(x):
    return struct.unpack("<I", struct.pack("<f", x))[0]

HEADER = """; FAVOR+ linear attention (positive random features), one workgroup of 4 waves per (b,h).
"""

def gen(dk=6, dv=5, sk="0", sv="0", pol="nt", stamps=0, opol="", qpol="nt", spol="", qit=1, qstag=1,
        align=0, pf=1, st2=0, st1=0, epist=0, lpol=None, kfirst=0, prost=0, rw=0, spread=1, dlo=0, nlo=0, slo="1", nostore=0, ilv=0, ohalf=0, linst=0, oadj=0, qdiag=0, tlbo=0, tlbv=0, pmap=0, bhp="x01234567", lord=0, vsp=0, aearly=0, bhadd=0):
    nw = 4
    L = []
    A = L.append
    nsteps = 16
    STEPB = 32 * nw * 256
    ISTR = 544
    WSTR = 9 * ISTR
    PSTR = 17 * 1024
    PBASE = nw * WSTR
    RSTR = 272
    OBASE = PBASE + nw * PSTR
    QBASE = OBASE + 8 * RSTR
    lds = QBASE + 32 * RSTR
    scale = 128.0 ** -0.25
    C1 = scale * math.log2(math.e)
    C2 = -1.5
    CF = -0.5 * scale
    EPS = f2u(1e-6)
    sk = str(sk) * 8; sv = str(sv) * 8
    if lpol is None: lpol = pol
    assert dk <= 7 and dv <= 7

    vA, vV0, vP, vL = 10, 11, 38, 39
    OM, ONES, vCF, vC2 = 12, 28, 32, 33
    WQ = 34
    R, VT = 40, 72
    U, Y = 104, 120
    G, S, PD, P, PV = 136, 140, 144, 148, 152
    FQ = 156
    PL = 164
    E = 180
    vZ = 191
    vQR, vPL = 188, 189
    ACC = 192
    NV = 228
    sS, sQ, sO, sOUT = 16, 24, 28, 32
    sVB = 20
    sM = 36
    sSELLO, sSELHI, sC1, sW, sCNT, sQIT = 44, 45, 46, 47, 48, 49
    sOFF0 = 50
    sX1, sX2 = 60, 62
    soffs = {}
    def soff(c):
        hi, lo = c & ~4095, c & 4095
        if hi == 0:
            return "0", lo
        if hi not in soffs:
            soffs[hi] = sOFF0 + len(soffs)
        return f"s{soffs[hi]}", lo
    def vr(b, n=4): return f"v[{b}:{b+n-1}]"
    TOFF = 32768 if pmap else nw * 4096
    def stepoff(st): return (st & 7) * 65536 + (st >> 3) * 16384 if pmap else st * STEPB
    def off(j8): return (j8 >> 2) * TOFF + (j8 & 3) * 1024
    def uwt(u): return (u & 3, u >> 2) if lord else (u >> 1, u & 1)
    def loff(u, r): return uwt(u)[0] * 4096 + uwt(u)[1] * TOFF + r * 1024
    sDP = 58
    def advance(cnt_at_7):
        if not pmap: A(f"v_add_u32 v{vA}, {STEPB}, v{vA}"); return
        if cnt_at_7 is None: A(f"v_add_u32 v{vA}, 65536, v{vA}"); return
        A(f"s_cmp_eq_u32 s{sCNT}, {cnt_at_7}")
        A(f"s_cselect_b32 s3, {(stepoff(8) - stepoff(7)) & 0xffffffff:#x}, s{sDP}")
        A(f"v_add_u32 v{vA}, s3, v{vA}")
    for j8 in range(8): soff(off(j8))
    for u in range(8): soff(loff(u, 0))
    def load(n):
        so, im = soff(off(n))
        A(f"buffer_load_dwordx4 {vr(R+4*n)}, v{vA}, s[{sS}:{sS+3}], {so} offen offset:{im} {pol}")
    def lload(u):
        for r in range(4):
            so, im = soff(loff(u, r))
            A(f"buffer_load_dword v{R+4*u+r}, v{vL}, s[{sS}:{sS+3}], {so} offen offset:{im} {lpol}")
    def stamp(i):
        if stamps: A(f"s_memrealtime s[{64+2*i}:{65+2*i}]")

    def dppsel(dst, own, other, perm):
        A(f"v_cndmask_b32_dpp v{dst}, v{other}, v{own}, vcc quad_perm:{perm} row_mask:0xf bank_mask:0xf")
    def stage1(X, j):
        A(f"s_mov_b64 vcc, s[{sX1}:{sX1+1}]")
        for dw in range(4): dppsel(U+4*j+dw, X+4*j+dw, X+4*(j+1)+dw, "[1,0,3,2]")
        A("s_not_b64 vcc, vcc")
        for dw in range(4): dppsel(U+4*(j+1)+dw, X+4*(j+1)+dw, X+4*j+dw, "[1,0,3,2]")
    def stage2(dst):
        A(f"s_mov_b64 vcc, s[{sX2}:{sX2+1}]")
        for j in (0, 1):
            for dw in range(4): dppsel(dst+4*j+dw, U+4*j+dw, U+4*(j+2)+dw, "[2,3,0,1]")
        A("s_not_b64 vcc, vcc")
        for j in (0, 1):
            for dw in range(4): dppsel(dst+4*(j+2)+dw, U+4*(j+2)+dw, U+4*j+dw, "[2,3,0,1]")
    def chains(isq=False, X=Y):
        for jj in range(4):
            k = X + 4*jj
            A(f"v_mfma_f32_16x16x32_bf16 {vr(G)}, {vr(k)}, {vr(k)}, {'0' if jj==0 else vr(G)}")
        for jj in range(4):
            k = X + 4*jj
            a, b = (OM+4*jj, k) if isq else (k, OM+4*jj)
            A(f"v_mfma_f32_16x16x32_bf16 {vr(S)}, {vr(a)}, {vr(b)}, {'0' if jj==0 else vr(S)}")
    def gs(jj):
        k = Y + 4*jj
        return [f"v_mfma_f32_16x16x32_bf16 {vr(G)}, {vr(k)}, {vr(k)}, {'0' if jj==0 else vr(G)}",
                f"v_mfma_f32_16x16x32_bf16 {vr(S)}, {vr(k)}, {vr(OM+4*jj)}, {'0' if jj==0 else vr(S)}"]
    def weave(valu, mf, start):
        mf = list(mf); cnt = 0
        for i, x in enumerate(valu):
            A(x)
            if i >= start and x.startswith("v_"):
                cnt += 1
                if cnt % 2 == 0 and mf: A(mf.pop(0))
        for x in mf: A(x)
    def diag(isq=False):
        A(f"v_cndmask_b32 v{PD}, 0, v{G}, s[{sM}:{sM+1}]")
        for r in range(1, 4):
            A(f"v_cndmask_b32 v{PD}, v{PD}, v{G+r}, s[{sM+2*r}:{sM+2*r+1}]")
        A("s_nop 1")
        a, b = (vCF, PD) if isq else (PD, vCF)
        A(f"v_mfma_f32_16x16x4_f32 {vr(S)}, v{a}, v{b}, {vr(S)}")
    def phi(dst, f32=False):
        for r in range(4): A(f"v_fma_f32 v{S+r}, v{S+r}, s{sC1}, v{vC2}")
        for r in range(4): A(f"v_exp_f32 v{S+r}, v{S+r}")
        if f32:
            for r in range(4): A(f"v_add_f32 v{dst+r}, {EPS:#x}, v{S+r}")
            return
        for r in range(4): A(f"v_add_f32 v{S+r}, {EPS:#x}, v{S+r}")
        A(f"v_cvt_pk_bf16_f32 v{dst}, v{S}, v{S+1}")
        A(f"v_cvt_pk_bf16_f32 v{dst+1}, v{S+2}, v{S+3}")
    def vmfma(i):
        A(f"v_mfma_f32_16x16x32_bf16 {vr(ACC+4*i)}, {vr(PV)}, {vr(VT+4*i)}, {vr(ACC+4*i)}")
    def zmfma(src):
        A(f"v_mfma_f32_16x16x32_bf16 {vr(ACC+32)}, {vr(src)}, {vr(ONES)}, {vr(ACC+32)}")
    def perm(dst, a, b, hi):
        A(f"v_perm_b32 v{dst}, v{b}, v{a}, s{sSELHI if hi else sSELLO}")
    def perms(jp, mf=False, nmf=8):
        a, b = R + 8*jp, R + 8*jp + 4
        if mf and nmf == 4:
            for i in range(8):
                perm(VT+4*i+jp, a+(i>>1), b+(i>>1), i & 1)
                if i in (2, 4, 6, 7): vmfma({2: 0, 4: 1, 6: 2, 7: 3}[i])
            return
        for i in range(8):
            perm(VT+4*i+jp, a+(i>>1), b+(i>>1), i & 1)
            if mf and i >= 2: vmfma(i-2)
        if mf:
            vmfma(6); vmfma(7)
    def pstore():
        A(f"ds_write_b128 v{vP}, {vr(P)}")
        A(f"v_add_u32 v{vP}, 1024, v{vP}")
    def pread():
        A(f"ds_read_b128 {vr(PV)}, v{vP}"); A(f"v_add_u32 v{vP}, 1024, v{vP}")

    A(HEADER + f"; @launch grid=(256,1,1) block=({nw*64},1,1) lds={lds}")
    A('.amdgcn_target "amdgcn-amd-amdhsa--gfx950"')
    A(".text"); A(f".globl {KN}"); A(".p2align 8"); A(f".type {KN},@function"); A(f"{KN}:")
    stamp(0)
    A("s_cmp_ge_u32 s2, 256"); A("s_cbranch_scc1 L_end")
    A("s_load_dwordx8 s[4:11], s[0:1], 0         ; q k v omega")
    if pf:
        A("s_getpc_b64 s[76:77]")
        A("L_pc:")
        A(f"v_lshlrev_b32 v3, {7 if pf == 1 else 6}, v0")
        A("v_min_u32 v3, L_codeend-L_pc-4, v3")
        A(f"global_load_dword v{PD}, v3, s[76:77]")
    A("s_load_dwordx2 s[12:13], s[0:1], 32       ; out")
    if stamps:
        A(f"s_load_dwordx2 s[14:15], s[0:1], {48 if stamps==1 else 40}")
    A("v_lshrrev_b32 v1, 6, v0            ; wave")
    A("v_and_b32 v2, 63, v0               ; lane")
    A("v_lshrrev_b32 v4, 4, v2            ; g = l>>4")
    A("v_bfe_u32 v6, v2, 2, 2             ; a = l3l2")
    A(f"v_readfirstlane_b32 s{sW}, v1")
    A("v_and_b32 v5, 3, v2"); A("v_lshlrev_b32 v5, 4, v5"); A("v_lshl_add_u32 v5, v4, 6, v5")
    A(f"v_lshl_add_u32 v{vA}, v6, 8, v5")
    A(f"v_lshl_add_u32 v{vA}, v1, 12, v{vA}")
    A("v_lshlrev_b32 v5, 4, v2            ; lane*16")
    A("v_and_b32 v7, 0x7f, v0"); A("v_lshlrev_b32 v7, 4, v7")
    A("v_lshl_add_u32 v8, v1, 11, v5      ; q offset")
    for hi, s in soffs.items():
        A(f"s_mov_b32 s{s}, {hi}")
    if pmap: A(f"s_mov_b32 s{sDP}, 65536")
    src = [int(c) for c in bhp[1:]]
    if src == list(range(8)):
        A("s_lshl_b32 s3, s2, 19"); A("s_lshl_b32 s22, s2, 13")
    else:
        groups = {}
        for i, b in enumerate(src): groups[i - b] = groups.get(i - b, 0) | (1 << b)
        firstg = True
        for sh, mask in sorted(groups.items()):
            t = "s22" if firstg else "s3"
            A(f"s_and_b32 {t}, s2, {mask:#x}")
            if sh > 0: A(f"s_lshl_b32 {t}, {t}, {sh}")
            if sh < 0: A(f"s_lshr_b32 {t}, {t}, {-sh}")
            if not firstg: A("s_or_b32 s22, s22, s3")
            firstg = False
        if bhadd: A(f"s_add_u32 s22, s22, {bhadd}"); A("s_and_b32 s22, s22, 255")
        A("s_lshl_b32 s3, s22, 19"); A("s_lshl_b32 s22, s22, 13")
    A(f"s_mov_b32 s{sS+2}, 524288"); A(f"s_mov_b32 s{sS+3}, 0x20000")
    A(f"s_mov_b32 s{sO+2}, 2048"); A(f"s_mov_b32 s{sO+3}, 0x20000")
    A(f"s_mov_b32 s{sQ+2}, 8192"); A(f"s_mov_b32 s{sQ+3}, 0x20000")
    A("s_waitcnt lgkmcnt(0)")
    if not epist and not st1 and not prost: stamp(1)
    A(f"s_mov_b32 s{sO}, s10"); A(f"s_mov_b32 s{sO+1}, s11")
    lds_ = []
    def grab(fn):
        n0 = len(L); fn(); out = L[n0:]; del L[n0:]; return out
    ld_lines = []
    ld_lines += [f"buffer_load_dwordx4 {vr(VT)}, v7, s[{sO}:{sO+3}], 0 offen {opol}"]
    for j in range(2):
        if not qdiag: ld_lines += [f"buffer_load_dwordx4 {vr(VT+4+4*j)}, v8, s[{sQ}:{sQ+3}], 0 offen offset:{j*1024} {qpol}"]
    if qdiag: A("v_mov_b32 v190, v8")
    for n in range(dk): ld_lines += grab(lambda: load(n))
    def setup():
        A(f"s_add_u32 s{sQ}, s4, s22"); A(f"s_addc_u32 s{sQ+1}, s5, 0")
        A(f"s_add_u32 s{sS}, s6, s3"); A(f"s_addc_u32 s{sS+1}, s7, 0")
        A(f"s_add_u32 s{sVB}, s8, s3"); A(f"s_addc_u32 s{sVB+1}, s9, 0")
        A(f"s_add_u32 s{sOUT}, s12, s22"); A(f"s_addc_u32 s{sOUT+1}, s13, 0")
        A(f"s_mov_b32 s{sOUT+2}, 8192"); A(f"s_mov_b32 s{sOUT+3}, 0x20000")
        A("v_and_b32 v3, 15, v2               ; n = l&15")
        A(f"v_bfe_u32 v{G}, v0, 4, 3"); A(f"v_mul_u32_u24 v{G}, {RSTR}, v{G}"); A(f"v_lshl_add_u32 v{G}, v3, 4, v{G}")
        A(f"v_lshl_add_u32 v{G+1}, v1, 3, v4"); A(f"v_mul_u32_u24 v{G+1}, {RSTR}, v{G+1}"); A(f"v_lshl_add_u32 v{G+1}, v3, 4, v{G+1}")
        A("v_and_b32 v9, 7, v2"); A(f"v_mul_u32_u24 v9, {RSTR}, v9"); A("v_lshl_add_u32 v9, v4, 6, v9")
        A(f"v_mul_u32_u24 v{vQR}, {RSTR}, v3"); A(f"v_lshl_add_u32 v{vQR}, v4, 6, v{vQR}")
        A(f"v_add_u32 v{vQR}, {QBASE}, v{vQR}")
        A(f"v_add_u32 v{G}, {OBASE}, v{G}"); A(f"v_add_u32 v{G+1}, {QBASE}, v{G+1}"); A(f"v_add_u32 v9, {OBASE}, v9")
        for r in range(4):
            A(f"s_mov_b32 s{sM+2*r}, {(1<<r)|(1<<(20+r))}"); A(f"s_mov_b32 s{sM+2*r+1}, {(1<<(8+r))|(1<<(28+r))}")
        A(f"s_mov_b32 s{sSELLO}, 0x05040100"); A(f"s_mov_b32 s{sSELHI}, 0x07060302")
        A(f"s_mov_b32 s{sC1}, {f2u(C1):#x}")
        A(f"s_mov_b32 s{sX1}, 0x55555555"); A(f"s_mov_b32 s{sX1+1}, 0x55555555")
        A(f"s_mov_b32 s{sX2}, 0x33333333"); A(f"s_mov_b32 s{sX2+1}, 0x33333333")
        if tlbo or tlbv: A(f"v_mov_b32 v{vZ}, 0")
        A(f"v_mov_b32 v{vCF}, {f2u(CF):#x}"); A(f"v_mov_b32 v{vC2}, {f2u(C2):#x}")
        for r in range(4): A(f"v_mov_b32 v{ONES+r}, 0x3f803f80")
        for r in range(36): A(f"v_mov_b32 v{ACC+r}, 0")
        if qstag:
            A(f"s_sub_u32 s{sQIT}, {nsteps-2-qit}, s{sW}")
        else:
            A(f"s_mov_b32 s{sQIT}, {nsteps-2-qit}")
        A(f"s_mov_b32 s{sCNT}, {nsteps}")
        A(f"v_lshl_add_u32 v{vV0}, v1, 12, v5")
        A(f"s_mul_i32 s3, s{sW}, {PSTR}"); A(f"s_add_u32 s3, s3, {PBASE}")
        A(f"v_add_u32 v{vP}, s3, v5")
        A(f"v_add_u32 v{vPL}, {PBASE + 16*1024}, v5")
        A(f"v_lshlrev_b32 v{vL}, 8, v4"); A(f"v_lshl_add_u32 v{vL}, v1, 6, v{vL}"); A(f"v_lshl_add_u32 v{vL}, v3, 2, v{vL}")
        A(f"v_add_u32 v{vL}, {stepoff(15)}, v{vL}")
    su = grab(setup)
    if spread:
        gaps = len(ld_lines) - 1 - (1 if oadj else 0)
        per = -(-(len(su) - (2 if oadj else 0)) // gaps) if spread == 1 else spread
        if oadj == 2:
            for x in su[:2]: A(x)
            su = su[2:]
            ld_lines[0], ld_lines[1] = ld_lines[1], ld_lines[0]
        for k, ld in enumerate(ld_lines):
            A(ld)
            cnt = max(per, 4 if k == 0 else 0)
            if oadj and k == 0: cnt = 2 if oadj == 1 else 0
            take = su[:cnt]; su = su[len(take):]
            for x in take: A(x)
        for x in su: A(x)
    else:
        for x in su[:4]: A(x)
        for ld in ld_lines: A(ld)
        for x in su[4:]: A(x)
    if prost == 1: stamp(1)
    if tlbv: A(f"global_load_dword v{PD+1}, v{vZ}, s[{sVB}:{sVB+1}] nt")
    A(f"s_waitcnt vmcnt({dk + (1 if tlbv else 0)})")
    if prost == 1: stamp(2)
    if prost == 2: stamp(1)
    if not st2 and not epist and not prost: stamp(2)
    A(f"ds_write_b128 v{G}, {vr(VT)}")
    A(f"ds_write_b128 v{G+1}, {vr(VT+4)}")
    A(f"ds_write_b128 v{G+1}, {vr(VT+8)} offset:{4*RSTR}")
    A(f"s_mul_i32 s3, s{sW}, {WSTR}")
    A("v_add_u32 v5, s3, v5")
    A("v_and_b32 v7, 3, v2"); A(f"v_mul_u32_u24 v7, {2*ISTR}, v7")
    A("v_lshl_add_u32 v6, v6, 4, v7")
    A("v_and_b32 v7, 1, v4"); A("v_lshlrev_b32 v7, 8, v7"); A("v_add_u32 v6, v6, v7")
    A(f"s_lshl_b32 s3, s{sW}, 6"); A("v_add_u32 v6, s3, v6")
    A("v_lshlrev_b32 v8, 8, v3"); A("v_lshl_add_u32 v8, v4, 4, v8"); A("v_add_u32 v8, s3, v8")
    A("s_waitcnt lgkmcnt(0)")
    if prost == 2: stamp(2)
    A("s_barrier")
    for jj in range(4):
        A(f"ds_read_b128 {vr(OM+4*jj)}, v9 offset:{jj*16}")
    A("v_add_u32 v9, 4096, v8")
    if linst:
        A("v_lshlrev_b32 v8, 4, v2"); A("v_lshl_add_u32 v8, v1, 11, v8"); A("v_add_u32 v9, 1024, v8")
    if st1: stamp(1)

    if align: A(f".p2align {align}")
    A("L_kloop:")
    for r in range(8):
        x = dk - 1
        if sk[r] == "1": x -= 1
        A(f"s_waitcnt vmcnt({x})" + (" lgkmcnt(0)" if r == (4 if ilv else 5) else ""))
        late = dk == 7 and (r & 1)
        def kadv():
            advance(9)
            A(f"s_cmp_lg_u32 s{sCNT}, 1"); A("s_cbranch_scc1 L_nosw")
            A(f"s_mov_b32 s{sS}, s{sVB}"); A(f"s_mov_b32 s{sS+1}, s{sVB+1}"); A(f"v_mov_b32 v{vA}, v{vV0}")
            A("L_nosw:")
        def issue():
            if r == 8 - dk and not aearly: kadv()
            load((r + dk) & 7)
            if r == 7 - dk and aearly: kadv()
        if late and ilv:
            if r in (1, 5):
                g3, s3 = gs(3); g2, s2 = gs(2)
                weave(grab(lambda: stage1(R + 16 * (r >> 2), 0)), [g2, g3, s2, s3], 0); issue()
            else:
                stage1(R + 16 * (r >> 2), 2); issue(); phi(P + (2 if r == 3 else 0))
            continue
        if late:
            stage1(R + 16 * (r >> 2), r & 2); issue()
            if r in (1, 5): chains()
            if r == 3: phi(P+2)
            if r == 7: phi(P)
            continue
        issue()
        if dk == 7 and r in (2, 6) and not ilv: A("s_nop 1")
        if ilv:
            if r == 4: pstore()
            if r in (0, 4): weave(grab(lambda: stage2(Y)), gs(0) + gs(1), 10)
            if r in (1, 5):
                g3, s3 = gs(3); g2, s2 = gs(2)
                weave(grab(lambda: stage1(R + 16 * (r >> 2), 0)), [g2, g3, s2, s3], 0)
            if r in (2, 6): diag()
            if r in (3, 7): stage1(R + 16 * (r >> 2), 2); phi(P + (2 if r == 3 else 0))
            continue
        if r == 0: stage2(Y)
        if r == 1: chains(); stage1(R, 0)
        if r == 2: diag()
        if r == 3: stage1(R, 2); phi(P+2)
        if r == 4: pstore(); stage2(Y)
        if r == 5: chains(); stage1(R+16, 0)
        if r == 6: diag()
        if r == 7: stage1(R+16, 2); phi(P)
    if st2 and st2 <= 16:
        A(f"s_cmp_lg_u32 s{sCNT}, {nsteps + 1 - st2}"); A("s_cbranch_scc1 L_nost"); stamp(2); A("L_nost:")
    A(f"s_sub_u32 s{sCNT}, s{sCNT}, 1"); A(f"s_cmp_lg_u32 s{sCNT}, 0"); A("s_cbranch_scc1 L_kloop")

    def vstep(kind):
        first, pre = kind == "first", kind == "pre"
        issued = dk if first else dv
        for r in range(8):
            n = r + dv
            if pre:
                x = (min(issued, 8) - r - 1) + 4 * max(issued - 8, 0)
                if tlbo and 1 <= r <= dv: x += 1
            else:
                x = min(dv - 1 - (sv[r] == "1"), issued - r - 1) if issued <= n else issued - r - 1
            dl = dlo if (str(slo) * 8)[r] == "1" else dlo + 1
            if first and dlo: x = min(x, dl - 1)
            if kind == "mid" and dlo and dl < dv:
                A(f"s_cbranch_vccnz L_deep{r}"); A(f"s_waitcnt vmcnt({dl-1})"); A(f"L_deep{r}:")
            A(f"s_waitcnt vmcnt({x})")
            late = dv == 7 and (r & 1) and r < 7
            if late: perms(r >> 1)
            if r == 8 - dv and not pre and not aearly: advance(None if first else 7)
            did = False
            def issue():
                nonlocal issued, did
                while issued <= n:
                    if pre and issued >= 8: lload(issued - 8)
                    else: load(issued & 7)
                    issued += 1; did = True
            if not (dv == 7 and r == 7): issue()
            if not did and r != 7: A("s_nop 0")
            if r == 7 - dv and not pre and aearly: advance(None if first else 7)
            if pre and r == 0 and tlbo:
                A(f"buffer_load_dword v{PD}, v{vZ}, s[{sOUT}:{sOUT+3}], 0 offen {'nt' if tlbo == 1 else ''}")
            if pre and r == 0 and qdiag == 1:
                for j in range(2): A(f"buffer_load_dwordx4 {vr(Y+4*j)}, v190, s[{sQ}:{sQ+3}], 0 offen offset:{j*1024} {qpol}")
            if first:
                if r == 0: stage2(Y)
                if r == 1: chains()
                if r == 2:
                    if late or dv == 7: A("s_nop 1")
                    diag()
                if r == 3:
                    if not late: perms(1)
                    phi(P+2)
                if r == 4: pstore(); A(f"v_subrev_u32 v{vP}, {16*1024}, v{vP}"); zmfma(P)
                if r == 5: pread()
            else:
                if r == 0 and vsp:
                    assert dv < 7
                    for i in range(4, 8): vmfma(i)
                if r == 2: pread()
                if r == 3 and not late: perms(1)
                if r == 4 and not pre:
                    A(f"s_cmp_eq_u32 s{sCNT}, s{sQIT}"); A("s_cbranch_scc1 L_q"); A("L_qret:")
            if r == 1 and not late: perms(0)
            if r == 5 and not late: perms(2)
            if r == 6:
                A("s_waitcnt lgkmcnt(0)")
                zmfma(PV)
            if r == 7:
                if dv == 7:
                    perms(3); issue()
                    for i in range(8): vmfma(i)
                else:
                    perms(3, mf=True, nmf=4 if (vsp and not pre) else 8)
    vstep("first")
    A(f"s_mov_b32 s{sCNT}, {nsteps-3}")
    if dlo: A("s_mov_b64 vcc, 0")
    if align: A(f".p2align {align}")
    A("L_vloop:")
    vstep("mid")
    if st2 > 16:
        A(f"s_cmp_lg_u32 s{sCNT}, {31 - st2}"); A("s_cbranch_scc1 L_nost"); stamp(2); A("L_nost:")
    A(f"s_sub_u32 s{sCNT}, s{sCNT}, 1")
    if dlo:
        A(f"s_cmp_le_u32 s{sCNT}, {nsteps-3-nlo}"); A("s_cselect_b64 vcc, -1, 0")
    A(f"s_cmp_lg_u32 s{sCNT}, 0"); A("s_cbranch_scc1 L_vloop")
    vstep("pre")
    A("s_mov_b32 exec_hi, 0")
    A(f"ds_write_b128 v5, {vr(ACC+32)} offset:{8*ISTR}")
    for i in range(8):
        A(f"ds_write_b128 v5, {vr(ACC+4*i)} offset:{i*ISTR}")
    A("s_mov_b32 exec_hi, -1")
    def lperms(u):
        wp, T = uwt(u)
        B = VT + 8 * wp; X = R + 4 * u
        for i in range(2):
            for h in range(2):
                perm(B + 4*i + 2*T + h, X + 2*h, X + 2*h + 1, i)
    def lmfma(wp):
        for i in range(2):
            A(f"v_mfma_f32_16x16x32_bf16 {vr(E+4*i)}, {vr(PL+4*wp)}, {vr(VT+8*wp+4*i)}, {vr(E+4*i)}")
    for u in range(8 - dv):
        A(f"s_waitcnt vmcnt({4*(dv-1)})")
        lload(u + dv)
        lperms(u)
    A("s_waitcnt lgkmcnt(0)")
    A("s_barrier")
    if epist: stamp(1)
    RZ, RE = U, ACC
    for x in range(4): A(f"ds_read_b128 {vr(RZ+4*x)}, v7 offset:{x*WSTR + 8*ISTR}")
    for i in range(2):
        for x in range(4): A(f"ds_read_b128 {vr(RE+16*i+4*x)}, v6 offset:{x*WSTR + i*ISTR}")
    A("s_waitcnt lgkmcnt(8)")
    for x in range(4):
        A(f"ds_read_b128 {vr(PL+4*x)}, v{vPL} offset:{x*PSTR}")
    for r in range(4): A(f"v_add_f32 v{RZ+r}, v{RZ+r}, v{RZ+4+r}")
    for r in range(4): A(f"v_add_f32 v{RZ+8+r}, v{RZ+8+r}, v{RZ+12+r}")
    for r in range(4): A(f"v_add_f32 v{RZ+r}, v{RZ+r}, v{RZ+8+r}")
    D0, D1 = Y, Y + 2
    for t in range(2): A(f"v_mul_f32 v{D0+t}, v{FQ+4*t}, v{RZ}")
    for r in range(1, 4):
        for t in range(2): A(f"v_fmac_f32 v{D0+t}, v{FQ+4*t+r}, v{RZ+r}")
    for t in range(2): A(f"v_mov_b32 v{D1+t}, v{D0+t}")
    A("s_nop 1")
    for t in range(2): A(f"v_permlane16_swap_b32 v{D0+t}, v{D1+t}")
    A("s_nop 1")
    for t in range(2): A(f"v_add_f32 v{D0+t}, v{D0+t}, v{D1+t}")
    for t in range(2): A(f"v_add_f32 v{D0+t}, {EPS:#x}, v{D0+t}")
    for t in range(2): A(f"v_rcp_f32 v{D0+t}, v{D0+t}")
    A("s_mov_b32 vcc_lo, 0"); A("s_mov_b32 vcc_hi, -1")
    for t in range(2):
        for r in range(4): A(f"v_mul_f32 v{FQ+4*t+r}, v{FQ+4*t+r}, v{D0+t}")
    T0, T1, HI = Y + 4, Y + 8, Y + 12
    for p in range(4): A(f"v_cvt_pk_bf16_f32 v{HI+p}, v{FQ+2*p}, v{FQ+2*p+1}")
    for p in range(4): A(f"v_lshlrev_b32 v{T0+p}, 16, v{HI+p}")
    for p in range(4): A(f"v_and_b32 v{T1+p}, 0xffff0000, v{HI+p}")
    for p in range(4): A(f"v_sub_f32 v{T0+p}, v{FQ+2*p}, v{T0+p}")
    for p in range(4): A(f"v_sub_f32 v{T1+p}, v{FQ+2*p+1}, v{T1+p}")
    for p in range(4): A(f"v_cvt_pk_bf16_f32 v{T0+p}, v{T0+p}, v{T1+p}")
    for p in range(4): A(f"v_cndmask_b32 v{WQ+p}, v{HI+p}, v{T0+p}, vcc")
    A("s_waitcnt lgkmcnt(4)")
    for i in range(2):
        B = RE + 16 * i
        for r in range(4): A(f"v_add_f32 v{B+r}, v{B+r}, v{B+4+r}")
        for r in range(4): A(f"v_add_f32 v{B+8+r}, v{B+8+r}, v{B+12+r}")
        for r in range(4): A(f"v_add_f32 v{E+4*i+r}, v{B+r}, v{B+8+r}")
    A("s_waitcnt lgkmcnt(0)")
    done = 0
    for u in range(8 - dv, 8):
        A(f"s_waitcnt vmcnt({4*(7-u)})")
        if u == 7: stamp(3)
        lperms(u)
        if uwt(u)[1]:
            A("s_nop 1")
            while done <= uwt(u)[0]:
                lmfma(done); done += 1
    PA = U
    A("s_nop 6")
    for i in range(2):
        A(f"v_cvt_pk_bf16_f32 v{PA+2*i}, v{E+4*i}, v{E+4*i+1}")
        A(f"v_cvt_pk_bf16_f32 v{PA+2*i+1}, v{E+4*i+2}, v{E+4*i+3}")
    A("s_nop 0")
    DD = ACC
    for t in range(2):
        for i in range(2):
            A(f"v_mfma_f32_16x16x16_bf16 {vr(DD+8*t+4*i)}, {vr(PA+2*i,2)}, {vr(WQ+2*t,2)}, 0")
    A("s_nop 5")
    for t in range(2):
        O = Y + 4*t
        for r in range(4): A(f"v_cvt_pk_bf16_f32 v{O+r}, v{DD+8*t+r}, v{DD+8*t+4+r}")
        if nostore == 3 and t == 0: A("s_mov_b64 exec, 1")
        if not nostore or (nostore in (2, 3) and t == 0): A(f"buffer_store_dwordx4 {vr(O)}, v{8+t}, s[{sOUT}:{sOUT+3}], 0 offen {spol}")
    if epist: stamp(2)
    if stamps >= 3:
        A("s_waitcnt vmcnt(0)")
        stamp(4)
        A(f"s_cmp_lg_u32 s{sW}, 0"); A("s_cbranch_scc1 L_end")
        A("s_waitcnt lgkmcnt(0)")
        if stamps == 7: A("s_sub_u32 s3, s72, s64"); A("s_lshl_b32 s3, s3, 1"); A("s_sub_u32 s3, 12000, s3")
        if stamps == 5: A("s_sub_u32 s3, s72, s70"); A("s_mul_i32 s3, s3, 20")
        if stamps == 4: A("s_sub_u32 s3, s68, s64"); A("s_mul_i32 s3, s3, 20")
        if stamps in (10, 11, 12, 13):
            A("s_getreg_b32 s78, hwreg(HW_REG_XCC_ID)"); A("s_and_b32 s78, s78, 15")
            if stamps in (10, 11): A("s_cmp_ge_u32 s78, 4"); A(f"s_cbranch_scc{0 if stamps == 10 else 1} L_end")
            else: A(f"s_cmp_eq_u32 s78, {1 if stamps == 12 else 4}"); A("s_cbranch_scc0 L_end")
            A("s_sub_u32 s3, s72, s64"); A("s_sub_u32 s3, 6000, s3")
        if stamps == 14: A("s_sub_u32 s3, s72, s64"); A("s_mul_i32 s3, s3, 4")
        if stamps in (15, 16):
            A("s_getreg_b32 s78, hwreg(HW_REG_XCC_ID)"); A("s_and_b32 s78, s78, 15")
            if stamps == 15: A("s_cmp_lg_u32 s2, 0"); A("s_cbranch_scc1 L_end"); A("s_mul_i32 s3, s78, 1000")
            else: A("s_sub_u32 s78, s78, s2"); A("s_and_b32 s78, s78, 7"); A("s_mul_i32 s3, s78, 1000")
        if stamps == 17:
            A("s_sub_u32 s3, s68, s64"); A("s_mul_i32 s3, s3, 5"); A("s_add_u32 s3, s3, 6000"); A("s_sub_u32 s78, s72, s64"); A("s_sub_u32 s3, s3, s78")
        if stamps == 3: A("s_sub_u32 s3, s72, s64")
        A("s_min_u32 s3, s3, 50000")
        A("L_spin:")
        A("s_memrealtime s[74:75]"); A("s_waitcnt lgkmcnt(0)")
        A("s_sub_u32 s74, s74, s72"); A("s_cmp_lt_u32 s74, s3"); A("s_cbranch_scc1 L_spin")
    if stamps == 1:
        A("s_waitcnt vmcnt(0)")
        A("s_barrier")
        stamp(4)
        A(f"s_cmp_lg_u32 s{sW}, {rw}"); A("s_cbranch_scc1 L_end")
        A("s_getreg_b32 s3, hwreg(HW_REG_XCC_ID)")
        A("s_waitcnt lgkmcnt(0)")
        A("v_mov_b32 v12, s64"); A("v_mov_b32 v13, s65"); A("v_mov_b32 v14, s72"); A("v_mov_b32 v15, s73")
        A("v_mov_b32 v16, s3"); A("v_mov_b32 v17, 0")
        A("s_sub_u32 s66, s66, s64"); A("s_sub_u32 s68, s68, s64"); A("s_sub_u32 s70, s70, s64")
        A("s_lshl_b32 s68, s68, 16"); A("s_or_b32 s66, s66, s68")
        A("v_mov_b32 v18, s66"); A("v_mov_b32 v19, s70")
        A("s_lshl_b32 s3, s2, 5"); A("v_mov_b32 v11, s3")
        A("s_mov_b64 exec, 1")
        A("global_store_dwordx4 v11, v[12:15], s[14:15]")
        A("global_store_dwordx4 v11, v[16:19], s[14:15] offset:16")
    A("L_end:")
    A("s_endpgm")
    A("L_q:")
    for t in range(2):
        for jj in range(4):
            A(f"ds_read_b128 {vr(U+16*t+4*jj)}, v{vQR} offset:{t*16*RSTR + jj*16}")
    for t in range(2):
        A(f"s_waitcnt lgkmcnt({4*(1-t)})")
        chains(isq=True, X=U+16*t)
        A("s_nop 3")
        diag(isq=True)
        A("s_nop 9")
        phi(FQ+4*t, f32=True)
    A("s_branch L_qret")
    A("L_codeend:")
    nv = (NV + 7) // 8 * 8
    A('.section .rodata,"a"'); A(".p2align 6"); A(f".amdhsa_kernel {KN}")
    A(f"  .amdhsa_next_free_vgpr {nv}"); A("  .amdhsa_next_free_sgpr 80"); A(f"  .amdhsa_accum_offset {nv}")
    A("  .amdhsa_group_segment_fixed_size 0"); A("  .amdhsa_kernarg_size 56"); A("  .amdhsa_user_sgpr_count 2")
    A("  .amdhsa_user_sgpr_kernarg_segment_ptr 1"); A("  .amdhsa_system_sgpr_workgroup_id_x 1")
    A("  .amdhsa_float_denorm_mode_32 3")
    A(".end_amdhsa_kernel")
    return "\n".join(L) + "\n"

if __name__ == "__main__":
    name = sys.argv[1]; kw = {}
    for a in sys.argv[2:]:
        k, v = a.split("=")
        kw[k] = v if k in ("sk", "sv", "slo") else (int(v) if v.lstrip("-").isdigit() else v.replace("+", " "))
    open(name, "w").write(gen(**kw))
```

```python
import sys, struct, math
KN = "standalone__linear_kernel_rfa__sampling_kernel"

def f2u(x):
    return struct.unpack("<I", struct.pack("<f", x))[0]

HEADER = """; FAVOR+ linear attention (positive random features), one workgroup of 4 waves per (b,h).
"""

def gen(dk=6, dv=5, sk="0", sv="0", pol="nt", stamps=0, opol="", qpol="nt", spol="", qit=1, qstag=1,
        align=0, pf=1, st2=0, st1=0, epist=0, lpol=None, kfirst=0, prost=0, rw=0, spread=1, dlo=0, nlo=0, slo="1", nostore=0, ilv=0, ohalf=0, linst=0, oadj=0, qdiag=0, tlbo=0, tlbv=0, pmap=0, bhp="x01234567", lord=0, vsp=0, aearly=0, bhadd=0, hold=0, qh=0, qgap=0, more=0, klo=0, kd=5):
    nw = 4
    L = []
    A = L.append
    nsteps = 16
    STEPB = 32 * nw * 256
    ISTR = 544
    WSTR = 9 * ISTR
    PSTR = 17 * 1024
    PBASE = nw * WSTR
    RSTR = 272
    OBASE = PBASE + nw * PSTR
    QBASE = OBASE + 8 * RSTR
    FBASE = QBASE + 32 * RSTR
    lds = FBASE + (2048 if qh else 0)
    scale = 128.0 ** -0.25
    C1 = scale * math.log2(math.e)
    C2 = -1.5
    CF = -0.5 * scale
    EPS = f2u(1e-6)
    sk = str(sk) * 8; sv = str(sv) * 8
    if lpol is None: lpol = pol
    assert dk <= 7 and dv <= 7

    vA, vV0, vP, vL = 10, 11, 38, 39
    OM, ONES, vCF, vC2 = 12, 28, 32, 33
    WQ = 34
    R, VT = 40, 72
    U, Y = 104, 120
    G, S, PD, P, PV = 136, 140, 144, 148, 152
    FQ = 156
    PL = 164
    E = 180
    vZ = 191
    vQR, vPL = 188, 189
    ACC = 192
    NV = 228
    sS, sQ, sO, sOUT = 16, 24, 28, 32
    sVB = 20
    sM = 36
    sSELLO, sSELHI, sC1, sW, sCNT, sQIT = 44, 45, 46, 47, 48, 49
    sOFF0 = 50
    sX1, sX2 = 60, 62
    soffs = {}
    def soff(c):
        hi, lo = c & ~4095, c & 4095
        if hi == 0:
            return "0", lo
        if hi not in soffs:
            soffs[hi] = sOFF0 + len(soffs)
        return f"s{soffs[hi]}", lo
    def vr(b, n=4): return f"v[{b}:{b+n-1}]"
    TOFF = 32768 if pmap else nw * 4096
    def stepoff(st): return (st & 7) * 65536 + (st >> 3) * 16384 if pmap else st * STEPB
    def off(j8): return (j8 >> 2) * TOFF + (j8 & 3) * 1024
    def uwt(u): return (u & 3, u >> 2) if lord else (u >> 1, u & 1)
    def loff(u, r): return uwt(u)[0] * 4096 + uwt(u)[1] * TOFF + r * 1024
    sDP = 58
    def advance(cnt_at_7):
        if not pmap: A(f"v_add_u32 v{vA}, {STEPB}, v{vA}"); return
        if cnt_at_7 is None: A(f"v_add_u32 v{vA}, 65536, v{vA}"); return
        A(f"s_cmp_eq_u32 s{sCNT}, {cnt_at_7}")
        A(f"s_cselect_b32 s3, {(stepoff(8) - stepoff(7)) & 0xffffffff:#x}, s{sDP}")
        A(f"v_add_u32 v{vA}, s3, v{vA}")
    for j8 in range(8): soff(off(j8))
    for u in range(8): soff(loff(u, 0))
    def load(n):
        so, im = soff(off(n))
        A(f"buffer_load_dwordx4 {vr(R+4*n)}, v{vA}, s[{sS}:{sS+3}], {so} offen offset:{im} {pol}")
    def lload(u):
        for r in range(4):
            so, im = soff(loff(u, r))
            A(f"buffer_load_dword v{R+4*u+r}, v{vL}, s[{sS}:{sS+3}], {so} offen offset:{im} {lpol}")
    def stamp(i):
        if stamps: A(f"s_memrealtime s[{64+2*i}:{65+2*i}]")

    def dppsel(dst, own, other, perm):
        A(f"v_cndmask_b32_dpp v{dst}, v{other}, v{own}, vcc quad_perm:{perm} row_mask:0xf bank_mask:0xf")
    def stage1(X, j):
        A(f"s_mov_b64 vcc, s[{sX1}:{sX1+1}]")
        for dw in range(4): dppsel(U+4*j+dw, X+4*j+dw, X+4*(j+1)+dw, "[1,0,3,2]")
        A("s_not_b64 vcc, vcc")
        for dw in range(4): dppsel(U+4*(j+1)+dw, X+4*(j+1)+dw, X+4*j+dw, "[1,0,3,2]")
    def stage2(dst):
        A(f"s_mov_b64 vcc, s[{sX2}:{sX2+1}]")
        for j in (0, 1):
            for dw in range(4): dppsel(dst+4*j+dw, U+4*j+dw, U+4*(j+2)+dw, "[2,3,0,1]")
        A("s_not_b64 vcc, vcc")
        for j in (0, 1):
            for dw in range(4): dppsel(dst+4*(j+2)+dw, U+4*(j+2)+dw, U+4*j+dw, "[2,3,0,1]")
    def chains(isq=False, X=Y):
        for jj in range(4):
            k = X + 4*jj
            A(f"v_mfma_f32_16x16x32_bf16 {vr(G)}, {vr(k)}, {vr(k)}, {'0' if jj==0 else vr(G)}")
        for jj in range(4):
            k = X + 4*jj
            a, b = (OM+4*jj, k) if isq else (k, OM+4*jj)
            A(f"v_mfma_f32_16x16x32_bf16 {vr(S)}, {vr(a)}, {vr(b)}, {'0' if jj==0 else vr(S)}")
    def gs(jj):
        k = Y + 4*jj
        return [f"v_mfma_f32_16x16x32_bf16 {vr(G)}, {vr(k)}, {vr(k)}, {'0' if jj==0 else vr(G)}",
                f"v_mfma_f32_16x16x32_bf16 {vr(S)}, {vr(k)}, {vr(OM+4*jj)}, {'0' if jj==0 else vr(S)}"]
    def weave(valu, mf, start):
        mf = list(mf); cnt = 0
        for i, x in enumerate(valu):
            A(x)
            if i >= start and x.startswith("v_"):
                cnt += 1
                if cnt % 2 == 0 and mf: A(mf.pop(0))
        for x in mf: A(x)
    def diag(isq=False):
        A(f"v_cndmask_b32 v{PD}, 0, v{G}, s[{sM}:{sM+1}]")
        for r in range(1, 4):
            A(f"v_cndmask_b32 v{PD}, v{PD}, v{G+r}, s[{sM+2*r}:{sM+2*r+1}]")
        A("s_nop 1")
        a, b = (vCF, PD) if isq else (PD, vCF)
        A(f"v_mfma_f32_16x16x4_f32 {vr(S)}, v{a}, v{b}, {vr(S)}")
    def phi(dst, f32=False):
        for r in range(4): A(f"v_fma_f32 v{S+r}, v{S+r}, s{sC1}, v{vC2}")
        for r in range(4): A(f"v_exp_f32 v{S+r}, v{S+r}")
        if f32:
            for r in range(4): A(f"v_add_f32 v{dst+r}, {EPS:#x}, v{S+r}")
            return
        for r in range(4): A(f"v_add_f32 v{S+r}, {EPS:#x}, v{S+r}")
        A(f"v_cvt_pk_bf16_f32 v{dst}, v{S}, v{S+1}")
        A(f"v_cvt_pk_bf16_f32 v{dst+1}, v{S+2}, v{S+3}")
    def vmfma(i):
        A(f"v_mfma_f32_16x16x32_bf16 {vr(ACC+4*i)}, {vr(PV)}, {vr(VT+4*i)}, {vr(ACC+4*i)}")
    def zmfma(src):
        A(f"v_mfma_f32_16x16x32_bf16 {vr(ACC+32)}, {vr(src)}, {vr(ONES)}, {vr(ACC+32)}")
    def perm(dst, a, b, hi):
        A(f"v_perm_b32 v{dst}, v{b}, v{a}, s{sSELHI if hi else sSELLO}")
    def perms(jp, mf=False, nmf=8):
        a, b = R + 8*jp, R + 8*jp + 4
        if mf and nmf == 4:
            for i in range(8):
                perm(VT+4*i+jp, a+(i>>1), b+(i>>1), i & 1)
                if i in (2, 4, 6, 7): vmfma({2: 0, 4: 1, 6: 2, 7: 3}[i])
            return
        for i in range(8):
            perm(VT+4*i+jp, a+(i>>1), b+(i>>1), i & 1)
            if mf and i >= 2: vmfma(i-2)
        if mf:
            vmfma(6); vmfma(7)
    def pstore():
        A(f"ds_write_b128 v{vP}, {vr(P)}")
        A(f"v_add_u32 v{vP}, 1024, v{vP}")
    def pread():
        A(f"ds_read_b128 {vr(PV)}, v{vP}"); A(f"v_add_u32 v{vP}, 1024, v{vP}")

    A(HEADER + f"; @launch grid=(256,1,1) block=({(nw + (1 if qh else 0))*64},1,1) lds={lds}")
    A('.amdgcn_target "amdgcn-amd-amdhsa--gfx950"')
    A(".text"); A(f".globl {KN}"); A(".p2align 8"); A(f".type {KN},@function"); A(f"{KN}:")
    stamp(0)
    A("s_cmp_ge_u32 s2, 256"); A("s_cbranch_scc1 L_end")
    A("s_load_dwordx8 s[4:11], s[0:1], 0         ; q k v omega")
    if pf:
        A("s_getpc_b64 s[76:77]")
        A("L_pc:")
        A(f"v_lshlrev_b32 v3, {7 if pf == 1 else 6}, v0")
        A("v_min_u32 v3, L_codeend-L_pc-4, v3")
        A(f"global_load_dword v{PD}, v3, s[76:77]")
    A("s_load_dwordx2 s[12:13], s[0:1], 32       ; out")
    if stamps:
        A(f"s_load_dwordx2 s[14:15], s[0:1], {48 if stamps==1 else 40}")
    A("v_lshrrev_b32 v1, 6, v0            ; wave")
    A("v_and_b32 v2, 63, v0               ; lane")
    A("v_lshrrev_b32 v4, 4, v2            ; g = l>>4")
    A("v_bfe_u32 v6, v2, 2, 2             ; a = l3l2")
    A(f"v_readfirstlane_b32 s{sW}, v1")
    A("v_and_b32 v5, 3, v2"); A("v_lshlrev_b32 v5, 4, v5"); A("v_lshl_add_u32 v5, v4, 6, v5")
    A(f"v_lshl_add_u32 v{vA}, v6, 8, v5")
    A(f"v_lshl_add_u32 v{vA}, v1, 12, v{vA}")
    A("v_lshlrev_b32 v5, 4, v2            ; lane*16")
    A("v_and_b32 v7, 0x7f, v0"); A("v_lshlrev_b32 v7, 4, v7")
    A("v_lshl_add_u32 v8, v1, 11, v5      ; q offset")
    for hi, s in soffs.items():
        if not more: A(f"s_mov_b32 s{s}, {hi}")
    if pmap and not more: A(f"s_mov_b32 s{sDP}, 65536")
    src = [int(c) for c in bhp[1:]]
    if src == list(range(8)):
        A("s_lshl_b32 s3, s2, 19"); A("s_lshl_b32 s22, s2, 13")
    else:
        groups = {}
        for i, b in enumerate(src): groups[i - b] = groups.get(i - b, 0) | (1 << b)
        firstg = True
        for sh, mask in sorted(groups.items()):
            t = "s22" if firstg else "s3"
            A(f"s_and_b32 {t}, s2, {mask:#x}")
            if sh > 0: A(f"s_lshl_b32 {t}, {t}, {sh}")
            if sh < 0: A(f"s_lshr_b32 {t}, {t}, {-sh}")
            if not firstg: A("s_or_b32 s22, s22, s3")
            firstg = False
        if bhadd: A(f"s_add_u32 s22, s22, {bhadd}"); A("s_and_b32 s22, s22, 255")
        A("s_lshl_b32 s3, s22, 19"); A("s_lshl_b32 s22, s22, 13")
    A(f"s_mov_b32 s{sS+2}, 524288"); A(f"s_mov_b32 s{sS+3}, 0x20000")
    A(f"s_mov_b32 s{sO+2}, 2048"); A(f"s_mov_b32 s{sO+3}, 0x20000")
    A(f"s_mov_b32 s{sQ+2}, 8192"); A(f"s_mov_b32 s{sQ+3}, 0x20000")
    A("s_waitcnt lgkmcnt(0)")
    if not epist and not st1 and not prost: stamp(1)
    def helper_head():
        A(f"s_add_u32 s{sQ}, s4, s22"); A(f"s_addc_u32 s{sQ+1}, s5, 0")
        A("v_add_u32 v8, 4096, v5")
        for j in range(8):
            A(f"buffer_load_dwordx4 {vr(R+4*j)}, v{5 if j < 4 else 8}, s[{sQ}:{sQ+3}], 0 offen offset:{(j&3)*1024} {qpol}")
    if qh == 1:
        A(f"s_cmp_eq_u32 s{sW}, 4"); A("s_cbranch_scc1 L_helper")
    if qh == 2:
        A(f"s_cmp_lg_u32 s{sW}, 4"); A("s_cbranch_scc1 L_stream")
        helper_head(); A("s_branch L_helper"); A("L_stream:")
    A(f"s_mov_b32 s{sO}, s10"); A(f"s_mov_b32 s{sO+1}, s11")
    lds_ = []
    def grab(fn):
        n0 = len(L); fn(); out = L[n0:]; del L[n0:]; return out
    ld_lines = []
    ld_lines += [f"buffer_load_dwordx4 {vr(VT)}, v7, s[{sO}:{sO+3}], 0 offen {opol}"]
    for j in range(2):
        if not qdiag and not qh: ld_lines += [f"buffer_load_dwordx4 {vr(VT+4+4*j)}, v8, s[{sQ}:{sQ+3}], 0 offen offset:{j*1024} {qpol}"]
    if qdiag: A("v_mov_b32 v190, v8")
    if qdiag == 3: A("s_lshr_b32 s59, s2, 4"); A("s_add_u32 s59, s59, 1")
    if qdiag == 4: A("s_mov_b32 s59, 10")
    for n in range(dk - hold): ld_lines += grab(lambda: load(n))
    def setup():
        if not qh: A(f"s_add_u32 s{sQ}, s4, s22"); A(f"s_addc_u32 s{sQ+1}, s5, 0")
        A(f"s_add_u32 s{sS}, s6, s3"); A(f"s_addc_u32 s{sS+1}, s7, 0")
        A(f"s_add_u32 s{sVB}, s8, s3"); A(f"s_addc_u32 s{sVB+1}, s9, 0")
        A(f"s_add_u32 s{sOUT}, s12, s22"); A(f"s_addc_u32 s{sOUT+1}, s13, 0")
        A(f"s_mov_b32 s{sOUT+2}, 8192"); A(f"s_mov_b32 s{sOUT+3}, 0x20000")
        A("v_and_b32 v3, 15, v2               ; n = l&15")
        A(f"v_bfe_u32 v{G}, v0, 4, 3"); A(f"v_mul_u32_u24 v{G}, {RSTR}, v{G}"); A(f"v_lshl_add_u32 v{G}, v3, 4, v{G}")
        if not qh: A(f"v_lshl_add_u32 v{G+1}, v1, 3, v4"); A(f"v_mul_u32_u24 v{G+1}, {RSTR}, v{G+1}"); A(f"v_lshl_add_u32 v{G+1}, v3, 4, v{G+1}")
        A("v_and_b32 v9, 7, v2"); A(f"v_mul_u32_u24 v9, {RSTR}, v9"); A("v_lshl_add_u32 v9, v4, 6, v9")
        if qh:
            A(f"v_add_u32 v{vQR}, {FBASE}, v5")
        else:
            A(f"v_mul_u32_u24 v{vQR}, {RSTR}, v3"); A(f"v_lshl_add_u32 v{vQR}, v4, 6, v{vQR}")
            A(f"v_add_u32 v{vQR}, {QBASE}, v{vQR}")
        A(f"v_add_u32 v{G}, {OBASE}, v{G}"); A(f"v_add_u32 v9, {OBASE}, v9")
        if not qh: A(f"v_add_u32 v{G+1}, {QBASE}, v{G+1}")
        for r in range(4):
            A(f"s_mov_b32 s{sM+2*r}, {(1<<r)|(1<<(20+r))}"); A(f"s_mov_b32 s{sM+2*r+1}, {(1<<(8+r))|(1<<(28+r))}")
        A(f"s_mov_b32 s{sSELLO}, 0x05040100"); A(f"s_mov_b32 s{sSELHI}, 0x07060302")
        A(f"s_mov_b32 s{sC1}, {f2u(C1):#x}")
        A(f"s_mov_b32 s{sX1}, 0x55555555"); A(f"s_mov_b32 s{sX1+1}, 0x55555555")
        A(f"s_mov_b32 s{sX2}, 0x33333333"); A(f"s_mov_b32 s{sX2+1}, 0x33333333")
        if tlbo or tlbv: A(f"v_mov_b32 v{vZ}, 0")
        A(f"v_mov_b32 v{vCF}, {f2u(CF):#x}"); A(f"v_mov_b32 v{vC2}, {f2u(C2):#x}")
        for r in range(4): A(f"v_mov_b32 v{ONES+r}, 0x3f803f80")
        for r in range(36): A(f"v_mov_b32 v{ACC+r}, 0")
        if qh: pass
        elif qstag:
            A(f"s_sub_u32 s{sQIT}, {nsteps-2-qit}, s{sW}")
        else:
            A(f"s_mov_b32 s{sQIT}, {nsteps-2-qit}")
        A(f"s_mov_b32 s{sCNT}, {nsteps}")
        A(f"v_lshl_add_u32 v{vV0}, v1, 12, v5")
        A(f"s_mul_i32 s3, s{sW}, {PSTR}"); A(f"s_add_u32 s3, s3, {PBASE}")
        A(f"v_add_u32 v{vP}, s3, v5")
        A(f"v_add_u32 v{vPL}, {PBASE + 16*1024}, v5")
        A(f"v_lshlrev_b32 v{vL}, 8, v4"); A(f"v_lshl_add_u32 v{vL}, v1, 6, v{vL}"); A(f"v_lshl_add_u32 v{vL}, v3, 2, v{vL}")
        A(f"v_add_u32 v{vL}, {stepoff(15)}, v{vL}")
    def psaddr():
        A(f"s_mul_i32 s3, s{sW}, {WSTR}")
        A("v_add_u32 v5, s3, v5")
        A("v_and_b32 v7, 3, v2"); A(f"v_mul_u32_u24 v7, {2*ISTR}, v7")
        A("v_lshl_add_u32 v6, v6, 4, v7")
        A("v_and_b32 v7, 1, v4"); A("v_lshlrev_b32 v7, 8, v7"); A("v_add_u32 v6, v6, v7")
        A(f"s_lshl_b32 s3, s{sW}, 6"); A("v_add_u32 v6, s3, v6")
        A("v_lshlrev_b32 v8, 8, v3"); A("v_lshl_add_u32 v8, v4, 4, v8"); A("v_add_u32 v8, s3, v8")
    su = grab(setup)
    if more:
        assert qgap
        su = su[:12] + [f"s_mov_b32 s{s_}, {hi}" for hi, s_ in soffs.items()] + ([f"s_mov_b32 s{sDP}, 65536"] if pmap else []) + su[12:] + grab(psaddr)
    if qgap:
        for x in su[:2]: A(x)
        su = su[2:]
        for ld in (ld_lines[1], ld_lines[2], ld_lines[0]): A(ld)
        for x in su[:qgap]: A(x)
        su = su[qgap:]
        rest = ld_lines[3:]
        per = len(su) // (len(rest) - 1)
        for k, ld in enumerate(rest):
            A(ld)
            for x in su[:per]: A(x)
            su = su[per:]
        for x in su: A(x)
    elif spread:
        gaps = len(ld_lines) - 1 - (1 if oadj else 0)
        per = -(-(len(su) - (2 if oadj else 0)) // gaps) if spread == 1 else spread
        if oadj == 2:
            for x in su[:2]: A(x)
            su = su[2:]
            ld_lines[0], ld_lines[1] = ld_lines[1], ld_lines[0]
        for k, ld in enumerate(ld_lines):
            A(ld)
            cnt = max(per, 4 if k == 0 else 0)
            if oadj and k == 0: cnt = 2 if oadj == 1 else 0
            take = su[:cnt]; su = su[len(take):]
            for x in take: A(x)
        for x in su: A(x)
    else:
        for x in su[:4]: A(x)
        for ld in ld_lines: A(ld)
        for x in su[4:]: A(x)
    if prost == 1: stamp(1)
    for h in range(hold):
        A(f"s_waitcnt vmcnt({dk - hold + 2})"); load(dk - hold + h)
    if tlbv: A(f"global_load_dword v{PD+1}, v{vZ}, s[{sVB}:{sVB+1}] nt")
    A(f"s_waitcnt vmcnt({dk + (1 if tlbv else 0)})")
    if prost == 1: stamp(2)
    if prost == 2: stamp(1)
    if not st2 and not epist and not prost: stamp(2)
    A(f"ds_write_b128 v{G}, {vr(VT)}")
    if not qh:
        A(f"ds_write_b128 v{G+1}, {vr(VT+4)}")
        A(f"ds_write_b128 v{G+1}, {vr(VT+8)} offset:{4*RSTR}")
    if not more: psaddr()
    A("s_waitcnt lgkmcnt(0)")
    if prost == 2: stamp(2)
    A("s_barrier")
    for jj in range(4):
        A(f"ds_read_b128 {vr(OM+4*jj)}, v9 offset:{jj*16}")
    A("v_add_u32 v9, 4096, v8")
    if linst:
        A("v_lshlrev_b32 v8, 4, v2"); A("v_lshl_add_u32 v8, v1, 11, v8"); A("v_add_u32 v9, 1024, v8")
    if st1: stamp(1)

    if align: A(f".p2align {align}")
    A("L_kloop:")
    for r in range(8):
        x = dk - 1
        if sk[r] == "1": x -= 1
        if klo:
            A(f"s_cmp_le_u32 s{sCNT}, {nsteps - klo}"); A(f"s_cbranch_scc1 L_kd{r}"); A(f"s_waitcnt vmcnt({kd-1})"); A(f"L_kd{r}:")
        A(f"s_waitcnt vmcnt({x})" + (" lgkmcnt(0)" if r == (4 if ilv else 5) else ""))
        late = dk == 7 and (r & 1)
        def kadv():
            advance(9)
            A(f"s_cmp_lg_u32 s{sCNT}, 1"); A("s_cbranch_scc1 L_nosw")
            A(f"s_mov_b32 s{sS}, s{sVB}"); A(f"s_mov_b32 s{sS+1}, s{sVB+1}"); A(f"v_mov_b32 v{vA}, v{vV0}")
            A("L_nosw:")
        def issue():
            if r == 8 - dk and not aearly: kadv()
            load((r + dk) & 7)
            if r == 7 - dk and aearly: kadv()
        if late and ilv:
            if r in (1, 5):
                g3, s3 = gs(3); g2, s2 = gs(2)
                weave(grab(lambda: stage1(R + 16 * (r >> 2), 0)), [g2, g3, s2, s3], 0); issue()
            else:
                stage1(R + 16 * (r >> 2), 2); issue(); phi(P + (2 if r == 3 else 0))
            continue
        if late:
            stage1(R + 16 * (r >> 2), r & 2); issue()
            if r in (1, 5): chains()
            if r == 3: phi(P+2)
            if r == 7: phi(P)
            continue
        issue()
        if dk == 7 and r in (2, 6) and not ilv: A("s_nop 1")
        if ilv:
            if r == 4: pstore()
            if r in (0, 4): weave(grab(lambda: stage2(Y)), gs(0) + gs(1), 10)
            if r in (1, 5):
                g3, s3 = gs(3); g2, s2 = gs(2)
                weave(grab(lambda: stage1(R + 16 * (r >> 2), 0)), [g2, g3, s2, s3], 0)
            if r in (2, 6): diag()
            if r == 2 and qdiag in (3, 4):
                A(f"s_cmp_lg_u32 s{sCNT}, s59"); A("s_cbranch_scc1 L_noq")
                for j in range(2): A(f"buffer_load_dwordx4 {vr(PL+4*j)}, v190, s[{sQ}:{sQ+3}], 0 offen offset:{j*1024} {qpol}")
                A("L_noq:")
            if r in (3, 7): stage1(R + 16 * (r >> 2), 2); phi(P + (2 if r == 3 else 0))
            continue
        if r == 0: stage2(Y)
        if r == 1: chains(); stage1(R, 0)
        if r == 2: diag()
        if r == 3: stage1(R, 2); phi(P+2)
        if r == 4: pstore(); stage2(Y)
        if r == 5: chains(); stage1(R+16, 0)
        if r == 6: diag()
        if r == 7: stage1(R+16, 2); phi(P)
    if st2 and st2 <= 16:
        A(f"s_cmp_lg_u32 s{sCNT}, {nsteps + 1 - st2}"); A("s_cbranch_scc1 L_nost"); stamp(2); A("L_nost:")
    A(f"s_sub_u32 s{sCNT}, s{sCNT}, 1"); A(f"s_cmp_lg_u32 s{sCNT}, 0"); A("s_cbranch_scc1 L_kloop")

    def vstep(kind):
        first, pre = kind == "first", kind == "pre"
        issued = dk if first else dv
        for r in range(8):
            n = r + dv
            if pre:
                x = (min(issued, 8) - r - 1) + 4 * max(issued - 8, 0)
                if tlbo and 1 <= r <= dv: x += 1
            else:
                x = min(dv - 1 - (sv[r] == "1"), issued - r - 1) if issued <= n else issued - r - 1
            dl = dlo if (str(slo) * 8)[r] == "1" else dlo + 1
            if first and dlo: x = min(x, dl - 1)
            if kind == "mid" and dlo and dl < dv:
                A(f"s_cbranch_vccnz L_deep{r}"); A(f"s_waitcnt vmcnt({dl-1})"); A(f"L_deep{r}:")
            A(f"s_waitcnt vmcnt({x})")
            late = dv == 7 and (r & 1) and r < 7
            if late: perms(r >> 1)
            if r == 8 - dv and not pre and not aearly: advance(None if first else 7)
            did = False
            def issue():
                nonlocal issued, did
                while issued <= n:
                    if pre and issued >= 8: lload(issued - 8)
                    else: load(issued & 7)
                    issued += 1; did = True
            if not (dv == 7 and r == 7): issue()
            if not did and r != 7: A("s_nop 0")
            if r == 7 - dv and not pre and aearly: advance(None if first else 7)
            if pre and r == 0 and tlbo:
                A(f"buffer_load_dword v{PD}, v{vZ}, s[{sOUT}:{sOUT+3}], 0 offen {'nt' if tlbo == 1 else ''}")
            if pre and r == 0 and qdiag == 1:
                for j in range(2): A(f"buffer_load_dwordx4 {vr(Y+4*j)}, v190, s[{sQ}:{sQ+3}], 0 offen offset:{j*1024} {qpol}")
            if first:
                if r == 0: stage2(Y)
                if r == 1: chains()
                if r == 2:
                    if late or dv == 7: A("s_nop 1")
                    diag()
                if r == 3:
                    if not late: perms(1)
                    phi(P+2)
                if r == 4: pstore(); A(f"v_subrev_u32 v{vP}, {16*1024}, v{vP}"); zmfma(P)
                if r == 5: pread()
            else:
                if r == 0 and vsp:
                    assert dv < 7
                    for i in range(4, 8): vmfma(i)
                if r == 2: pread()
                if r == 3 and not late: perms(1)
                if r == 4 and not pre and not qh:
                    A(f"s_cmp_eq_u32 s{sCNT}, s{sQIT}"); A("s_cbranch_scc1 L_q"); A("L_qret:")
            if r == 1 and not late: perms(0)
            if r == 5 and not late: perms(2)
            if r == 6:
                A("s_waitcnt lgkmcnt(0)")
                zmfma(PV)
            if r == 7:
                if dv == 7:
                    perms(3); issue()
                    for i in range(8): vmfma(i)
                else:
                    perms(3, mf=True, nmf=4 if (vsp and not pre) else 8)
    vstep("first")
    A(f"s_mov_b32 s{sCNT}, {nsteps-3}")
    if dlo: A("s_mov_b64 vcc, 0")
    if align: A(f".p2align {align}")
    A("L_vloop:")
    vstep("mid")
    if st2 > 16:
        A(f"s_cmp_lg_u32 s{sCNT}, {31 - st2}"); A("s_cbranch_scc1 L_nost"); stamp(2); A("L_nost:")
    A(f"s_sub_u32 s{sCNT}, s{sCNT}, 1")
    if dlo:
        A(f"s_cmp_le_u32 s{sCNT}, {nsteps-3-nlo}"); A("s_cselect_b64 vcc, -1, 0")
    A(f"s_cmp_lg_u32 s{sCNT}, 0"); A("s_cbranch_scc1 L_vloop")
    vstep("pre")
    A("s_mov_b32 exec_hi, 0")
    A(f"ds_write_b128 v5, {vr(ACC+32)} offset:{8*ISTR}")
    for i in range(8):
        A(f"ds_write_b128 v5, {vr(ACC+4*i)} offset:{i*ISTR}")
    A("s_mov_b32 exec_hi, -1")
    def lperms(u):
        wp, T = uwt(u)
        B = VT + 8 * wp; X = R + 4 * u
        for i in range(2):
            for h in range(2):
                perm(B + 4*i + 2*T + h, X + 2*h, X + 2*h + 1, i)
    def lmfma(wp):
        for i in range(2):
            A(f"v_mfma_f32_16x16x32_bf16 {vr(E+4*i)}, {vr(PL+4*wp)}, {vr(VT+8*wp+4*i)}, {vr(E+4*i)}")
    for u in range(8 - dv):
        A(f"s_waitcnt vmcnt({4*(dv-1)})")
        lload(u + dv)
        lperms(u)
    A("s_waitcnt lgkmcnt(0)")
    A("s_barrier")
    if epist: stamp(1)
    RZ, RE = U, ACC
    if qh:
        for t in range(2): A(f"ds_read_b128 {vr(FQ+4*t)}, v{vQR} offset:{t*1024}")
    for x in range(4): A(f"ds_read_b128 {vr(RZ+4*x)}, v7 offset:{x*WSTR + 8*ISTR}")
    for i in range(2):
        for x in range(4): A(f"ds_read_b128 {vr(RE+16*i+4*x)}, v6 offset:{x*WSTR + i*ISTR}")
    A("s_waitcnt lgkmcnt(8)")
    for x in range(4):
        A(f"ds_read_b128 {vr(PL+4*x)}, v{vPL} offset:{x*PSTR}")
    for r in range(4): A(f"v_add_f32 v{RZ+r}, v{RZ+r}, v{RZ+4+r}")
    for r in range(4): A(f"v_add_f32 v{RZ+8+r}, v{RZ+8+r}, v{RZ+12+r}")
    for r in range(4): A(f"v_add_f32 v{RZ+r}, v{RZ+r}, v{RZ+8+r}")
    D0, D1 = Y, Y + 2
    for t in range(2): A(f"v_mul_f32 v{D0+t}, v{FQ+4*t}, v{RZ}")
    for r in range(1, 4):
        for t in range(2): A(f"v_fmac_f32 v{D0+t}, v{FQ+4*t+r}, v{RZ+r}")
    for t in range(2): A(f"v_mov_b32 v{D1+t}, v{D0+t}")
    A("s_nop 1")
    for t in range(2): A(f"v_permlane16_swap_b32 v{D0+t}, v{D1+t}")
    A("s_nop 1")
    for t in range(2): A(f"v_add_f32 v{D0+t}, v{D0+t}, v{D1+t}")
    for t in range(2): A(f"v_add_f32 v{D0+t}, {EPS:#x}, v{D0+t}")
    for t in range(2): A(f"v_rcp_f32 v{D0+t}, v{D0+t}")
    A("s_mov_b32 vcc_lo, 0"); A("s_mov_b32 vcc_hi, -1")
    for t in range(2):
        for r in range(4): A(f"v_mul_f32 v{FQ+4*t+r}, v{FQ+4*t+r}, v{D0+t}")
    T0, T1, HI = Y + 4, Y + 8, Y + 12
    for p in range(4): A(f"v_cvt_pk_bf16_f32 v{HI+p}, v{FQ+2*p}, v{FQ+2*p+1}")
    for p in range(4): A(f"v_lshlrev_b32 v{T0+p}, 16, v{HI+p}")
    for p in range(4): A(f"v_and_b32 v{T1+p}, 0xffff0000, v{HI+p}")
    for p in range(4): A(f"v_sub_f32 v{T0+p}, v{FQ+2*p}, v{T0+p}")
    for p in range(4): A(f"v_sub_f32 v{T1+p}, v{FQ+2*p+1}, v{T1+p}")
    for p in range(4): A(f"v_cvt_pk_bf16_f32 v{T0+p}, v{T0+p}, v{T1+p}")
    for p in range(4): A(f"v_cndmask_b32 v{WQ+p}, v{HI+p}, v{T0+p}, vcc")
    A("s_waitcnt lgkmcnt(4)")
    for i in range(2):
        B = RE + 16 * i
        for r in range(4): A(f"v_add_f32 v{B+r}, v{B+r}, v{B+4+r}")
        for r in range(4): A(f"v_add_f32 v{B+8+r}, v{B+8+r}, v{B+12+r}")
        for r in range(4): A(f"v_add_f32 v{E+4*i+r}, v{B+r}, v{B+8+r}")
    A("s_waitcnt lgkmcnt(0)")
    done = 0
    for u in range(8 - dv, 8):
        A(f"s_waitcnt vmcnt({4*(7-u)})")
        if u == 7: stamp(3)
        lperms(u)
        if uwt(u)[1]:
            A("s_nop 1")
            while done <= uwt(u)[0]:
                lmfma(done); done += 1
    PA = U
    A("s_nop 6")
    for i in range(2):
        A(f"v_cvt_pk_bf16_f32 v{PA+2*i}, v{E+4*i}, v{E+4*i+1}")
        A(f"v_cvt_pk_bf16_f32 v{PA+2*i+1}, v{E+4*i+2}, v{E+4*i+3}")
    A("s_nop 0")
    DD = ACC
    for t in range(2):
        for i in range(2):
            A(f"v_mfma_f32_16x16x16_bf16 {vr(DD+8*t+4*i)}, {vr(PA+2*i,2)}, {vr(WQ+2*t,2)}, 0")
    A("s_nop 5")
    for t in range(2):
        O = Y + 4*t
        for r in range(4): A(f"v_cvt_pk_bf16_f32 v{O+r}, v{DD+8*t+r}, v{DD+8*t+4+r}")
        if nostore == 3 and t == 0: A("s_mov_b64 exec, 1")
        if not nostore or (nostore in (2, 3) and t == 0): A(f"buffer_store_dwordx4 {vr(O)}, v{8+t}, s[{sOUT}:{sOUT+3}], 0 offen {spol}")
    if epist: stamp(2)
    if stamps >= 3:
        A("s_waitcnt vmcnt(0)")
        stamp(4)
        A(f"s_cmp_lg_u32 s{sW}, 0"); A("s_cbranch_scc1 L_end")
        A("s_waitcnt lgkmcnt(0)")
        if stamps == 7: A("s_sub_u32 s3, s72, s64"); A("s_lshl_b32 s3, s3, 1"); A("s_sub_u32 s3, 12000, s3")
        if stamps == 5: A("s_sub_u32 s3, s72, s70"); A("s_mul_i32 s3, s3, 20")
        if stamps == 4: A("s_sub_u32 s3, s68, s64"); A("s_mul_i32 s3, s3, 20")
        if stamps in (10, 11, 12, 13):
            A("s_getreg_b32 s78, hwreg(HW_REG_XCC_ID)"); A("s_and_b32 s78, s78, 15")
            if stamps in (10, 11): A("s_cmp_ge_u32 s78, 4"); A(f"s_cbranch_scc{0 if stamps == 10 else 1} L_end")
            else: A(f"s_cmp_eq_u32 s78, {1 if stamps == 12 else 4}"); A("s_cbranch_scc0 L_end")
            A("s_sub_u32 s3, s72, s64"); A("s_sub_u32 s3, 6000, s3")
        if stamps == 14: A("s_sub_u32 s3, s72, s64"); A("s_mul_i32 s3, s3, 4")
        if stamps in (15, 16):
            A("s_getreg_b32 s78, hwreg(HW_REG_XCC_ID)"); A("s_and_b32 s78, s78, 15")
            if stamps == 15: A("s_cmp_lg_u32 s2, 0"); A("s_cbranch_scc1 L_end"); A("s_mul_i32 s3, s78, 1000")
            else: A("s_sub_u32 s78, s78, s2"); A("s_and_b32 s78, s78, 7"); A("s_mul_i32 s3, s78, 1000")
        if stamps == 17:
            A("s_sub_u32 s3, s68, s64"); A("s_mul_i32 s3, s3, 5"); A("s_add_u32 s3, s3, 6000"); A("s_sub_u32 s78, s72, s64"); A("s_sub_u32 s3, s3, s78")
        if stamps == 3: A("s_sub_u32 s3, s72, s64")
        A("s_min_u32 s3, s3, 50000")
        A("L_spin:")
        A("s_memrealtime s[74:75]"); A("s_waitcnt lgkmcnt(0)")
        A("s_sub_u32 s74, s74, s72"); A("s_cmp_lt_u32 s74, s3"); A("s_cbranch_scc1 L_spin")
    if stamps == 1:
        A("s_waitcnt vmcnt(0)")
        A("s_barrier")
        stamp(4)
        A(f"s_cmp_lg_u32 s{sW}, {rw}"); A("s_cbranch_scc1 L_end")
        A("s_getreg_b32 s3, hwreg(HW_REG_XCC_ID)")
        A("s_waitcnt lgkmcnt(0)")
        A("v_mov_b32 v12, s64"); A("v_mov_b32 v13, s65"); A("v_mov_b32 v14, s72"); A("v_mov_b32 v15, s73")
        A("v_mov_b32 v16, s3"); A("v_mov_b32 v17, 0")
        A("s_sub_u32 s66, s66, s64"); A("s_sub_u32 s68, s68, s64"); A("s_sub_u32 s70, s70, s64")
        A("s_lshl_b32 s68, s68, 16"); A("s_or_b32 s66, s66, s68")
        A("v_mov_b32 v18, s66"); A("v_mov_b32 v19, s70")
        A("s_lshl_b32 s3, s2, 5"); A("v_mov_b32 v11, s3")
        A("s_mov_b64 exec, 1")
        A("global_store_dwordx4 v11, v[12:15], s[14:15]")
        A("global_store_dwordx4 v11, v[16:19], s[14:15] offset:16")
    A("L_end:")
    A("s_endpgm")
    if qh:
        A("L_helper:")
        if qh == 1: helper_head()
        A("s_barrier")
        A("v_and_b32 v3, 15, v2")
        A("v_and_b32 v9, 7, v2"); A(f"v_mul_u32_u24 v9, {RSTR}, v9"); A("v_lshl_add_u32 v9, v4, 6, v9"); A(f"v_add_u32 v9, {OBASE}, v9")
        for jj in range(4): A(f"ds_read_b128 {vr(OM+4*jj)}, v9 offset:{jj*16}")
        A(f"v_mul_u32_u24 v7, {RSTR}, v4"); A("v_lshl_add_u32 v7, v3, 4, v7"); A(f"v_add_u32 v7, {QBASE}, v7")
        A(f"v_mul_u32_u24 v{vQR}, {RSTR}, v3"); A(f"v_lshl_add_u32 v{vQR}, v4, 6, v{vQR}"); A(f"v_add_u32 v{vQR}, {QBASE}, v{vQR}")
        for r in range(4):
            A(f"s_mov_b32 s{sM+2*r}, {(1<<r)|(1<<(20+r))}"); A(f"s_mov_b32 s{sM+2*r+1}, {(1<<(8+r))|(1<<(28+r))}")
        A(f"s_mov_b32 s{sC1}, {f2u(C1):#x}")
        A(f"v_mov_b32 v{vCF}, {f2u(CF):#x}"); A(f"v_mov_b32 v{vC2}, {f2u(C2):#x}")
        A(f"v_add_u32 v5, {FBASE}, v5")
        A("s_waitcnt vmcnt(0)")
        for j in range(8): A(f"ds_write_b128 v7, {vr(R+4*j)} offset:{j*4*RSTR}")
        A("s_waitcnt lgkmcnt(0)")
    else:
        A("L_q:")
    for t in range(2):
        for jj in range(4):
            A(f"ds_read_b128 {vr(U+16*t+4*jj)}, v{vQR} offset:{t*16*RSTR + jj*16}")
    for t in range(2):
        A(f"s_waitcnt lgkmcnt({4*(1-t)})")
        chains(isq=True, X=U+16*t)
        A("s_nop 3")
        diag(isq=True)
        A("s_nop 9")
        phi(FQ+4*t, f32=True)
    if qh:
        for t in range(2): A(f"ds_write_b128 v5, {vr(FQ+4*t)} offset:{t*1024}")
        A("s_waitcnt lgkmcnt(0)")
        A("s_barrier")
        A("s_endpgm")
    else:
        A("s_branch L_qret")
    A("L_codeend:")
    nv = (NV + 7) // 8 * 8
    A('.section .rodata,"a"'); A(".p2align 6"); A(f".amdhsa_kernel {KN}")
    A(f"  .amdhsa_next_free_vgpr {nv}"); A("  .amdhsa_next_free_sgpr 80"); A(f"  .amdhsa_accum_offset {nv}")
    A("  .amdhsa_group_segment_fixed_size 0"); A("  .amdhsa_kernarg_size 56"); A("  .amdhsa_user_sgpr_count 2")
    A("  .amdhsa_user_sgpr_kernarg_segment_ptr 1"); A("  .amdhsa_system_sgpr_workgroup_id_x 1")
    A("  .amdhsa_float_denorm_mode_32 3")
    A(".end_amdhsa_kernel")
    return "\n".join(L) + "\n"

if __name__ == "__main__":
    name = sys.argv[1]; kw = {}
    for a in sys.argv[2:]:
        k, v = a.split("=")
        kw[k] = v if k in ("sk", "sv", "slo") else (int(v) if v.lstrip("-").isdigit() else v.replace("+", " "))
    open(name, "w").write(gen(**kw))
```
